```python
import torch

def _softmax(x, axis=-1):
    return torch.softmax(x, dim=axis)
def _gelu(x):
    return torch.nn.functional.gelu(x, approximate="tanh")
def _silu(x):
    return torch.nn.functional.silu(x)
def _sigmoid(x):
    return torch.sigmoid(x)
def _layernorm(x, axis=-1, eps=1e-5):
    m = x.mean(dim=axis, keepdim=True)
    v = x.var(dim=axis, keepdim=True, unbiased=False)
    return (x - m) / torch.sqrt(v + eps)
def _scatter_add(tgt, idx, src, axis=0):
    return tgt.clone().index_add_(axis, idx, src)
def _segment_sum(src, seg, n):
    out = torch.zeros((n,) + src.shape[1:], dtype=src.dtype)
    return out.index_add_(0, seg, src)
def _pad(x, pw):
    flat = tuple(v for pair in reversed(pw) for v in pair)
    return torch.nn.functional.pad(x, flat)

kernel_name = 'gated_mix__linear_kernel_hedgehog__mixer_token_mlp__prompt'

def setup_inputs():

    _w = (lambda a: (lambda t: t.to(torch.bfloat16) if t.is_floating_point() else t)(torch.as_tensor(a)))
    def _A_setup():
        B, S, D, H = 1, 2048, 1024, 32
        Dh = D // H
        return {
            "x": _w((lambda *s: torch.randn(*s, dtype=torch.bfloat16) * 0.05)(B, S, D)),
            "wqkv": _w((lambda *s: torch.randn(*s, dtype=torch.bfloat16) * 0.8)(D, 3 * D)),
            "w_phi": _w((lambda *s: torch.randn(*s, dtype=torch.bfloat16) * 0.8)(H, Dh, Dh) * (Dh ** -0.5)),
            "wo": _w((lambda *s: torch.randn(*s, dtype=torch.bfloat16) * 0.05)(D, D)),
        }
    _A_in = _A_setup()

    def _B_setup():
        B, S, D, F = 1, 2048, 1024, 3584
        return {
            "x": _w((lambda *s: torch.randn(*s, dtype=torch.bfloat16) * 0.05)(B, S, D)),
            "w1": _w((lambda *s: torch.randn(*s, dtype=torch.bfloat16) * 0.8)(S, F) * (S ** -0.5)),
            "b1": _w((lambda *s: torch.randn(*s, dtype=torch.bfloat16) * 12.8)(F) * 0.02),
            "w2": _w((lambda *s: torch.randn(*s, dtype=torch.bfloat16) * 0.05)(F, S) * (F ** -0.5)),
            "b2": _w((lambda *s: torch.randn(*s, dtype=torch.bfloat16) * 0.8)(S) * 0.02),
        }
    _B_in = _B_setup()

    return {
        "A_x": _A_in["x"],
        "A_wqkv": _A_in["wqkv"],
        "A_w_phi": _A_in["w_phi"],
        "A_wo": _A_in["wo"],
        "B_x": _B_in["x"],
        "B_w1": _B_in["w1"],
        "B_b1": _B_in["b1"],
        "B_w2": _B_in["w2"],
        "B_b2": _B_in["b2"],
        "gate_w": _w((lambda *s: torch.randn(*s, dtype=torch.bfloat16) * 0.05)(1024) * 16.0),
    }

def reference(A_x, A_wqkv, A_w_phi, A_wo, B_x, B_w1, B_b1, B_w2, B_b2, gate_w):
    def _A_ref(x, wqkv, w_phi, wo):
        B, S, D = x.shape
        H = 32; Dh = D // H
        qkv = (lambda x, *d: x.permute(*d))((x @ wqkv).reshape(B, S, 3, H, Dh), 2, 0, 3, 1, 4)
        q, k, v = qkv[0], qkv[1], qkv[2]
        pq = torch.einsum("bhsd,hdf->bhsf", q, w_phi)
        pk = torch.einsum("bhsd,hdf->bhsf", k, w_phi)
        phi_q = torch.concatenate([_softmax(pq, axis=-1), _softmax(-pq, axis=-1)], axis=-1)
        phi_k = torch.concatenate([_softmax(pk, axis=-1), _softmax(-pk, axis=-1)], axis=-1)
        kv = torch.einsum("bhsf,bhsd->bhfd", phi_k, v)
        z  = torch.einsum("bhsf->bhf", phi_k)
        num = torch.einsum("bhqf,bhfd->bhqd", phi_q, kv)
        den = torch.einsum("bhqf,bhf->bhq", phi_q, z)[..., None] + 1e-6
        o = num / den
        return (lambda x, *d: x.permute(*d))(o, 0, 2, 1, 3).reshape(B, S, D) @ wo

    def _B_ref(x, w1, b1, w2, b2):
        B, S, D = x.shape
        h = _layernorm(x, axis=-1)
        u = torch.einsum("bsd,sf->bdf", h, w1) + b1
        u = _gelu(u)
        y = torch.einsum("bdf,fs->bds", u, w2) + b2
        return (lambda x, *d: x.permute(*d))(y, 0, 2, 1)

    x = A_x
    g = _sigmoid((x * gate_w).sum(-1, keepdims=True))
    a = _A_ref(x, A_wqkv, A_w_phi, A_wo)
    b = _B_ref(x, B_w1, B_b1, B_w2, B_b2)
    return g * a + (1 - g) * b
```

```python
class Asm:
    def __init__(self):
        self.lines = []
    def __call__(self, s):
        for l in s.strip("\n").split("\n"):
            self.lines.append("    " + l.strip())
    def label(self, n):
        self.lines.append(n + ":")
    def raw(self, s):
        self.lines.append(s)
    def text(self):
        return "\n".join(self.lines) + "\n"

def vr(b, n=1):
    return f"v{b}" if n == 1 else f"v[{b}:{b+n-1}]"
def ar(b, n=1):
    return f"a{b}" if n == 1 else f"a[{b}:{b+n-1}]"
def sr(b, n=1):
    return f"s{b}" if n == 1 else f"s[{b}:{b+n-1}]"

def kernel_header(a, name):
    a.raw(".text")
    a.raw(f".globl {name}")
    a.raw(".p2align 8")
    a.raw(f".type {name},@function")
    a.label(name)

def kernel_desc(name, vgpr, accum, sgpr=102):
    return f""".section .rodata,"a"
.p2align 6
.amdhsa_kernel {name}
  .amdhsa_next_free_vgpr {vgpr}
  .amdhsa_next_free_sgpr {sgpr}
  .amdhsa_accum_offset {accum}
  .amdhsa_group_segment_fixed_size 0
  .amdhsa_kernarg_size 104
  .amdhsa_user_sgpr_count 2
  .amdhsa_user_sgpr_kernarg_segment_ptr 1
  .amdhsa_system_sgpr_workgroup_id_x 1
  .amdhsa_float_denorm_mode_32 3
.end_amdhsa_kernel
"""

def interleave(mf, fill, start=0, per=1):
    out = []
    fi = 0
    for i, m in enumerate(mf):
        out.append(m)
        if i >= start:
            for _ in range(per):
                if fi < len(fill):
                    out.extend(fill[fi]); fi += 1
    while fi < len(fill):
        out.extend(fill[fi]); fi += 1
    return out

def spread(mf, fill, lo=0, hi=None):
    n = len(mf)
    if hi is None: hi = n - 1
    slots = [[] for _ in range(n)]
    m = len(fill)
    span = hi - lo + 1
    for j, f in enumerate(fill):
        pos = lo + (j * span) // max(m, 1)
        slots[pos].extend(f)
    out = []
    for i, x in enumerate(mf):
        out.append(x)
        out.extend(slots[i])
    return out
```

```python
import sys
from asmlib import *

NAME = "gated_mix__linear_kernel_hedgehog__mixer_token_mlp__prompt"
MB = 1 << 20
HT_OFF = 0
G_OFF = 4 * MB
U_OFF = 8 * MB
PQ_OFF = 16 * MB
KV_OFF = 24 * MB
OP_OFF = 28 * MB
XCH_OFF = 32 * MB
FLAG_OFF = 40 * MB
STAMP_OFF = 48 * MB
WS_BYTES = 268435456
A_X, A_WQKV, A_WPHI, A_WO, A_BX, A_W1, A_B1, A_W2, A_B2, A_GW, A_OUT, A_DBG, A_WS = [8 * i for i in range(13)]
STAMPS = False
NSTAMP = [2, 3, 2, 4]

def log2(x):
    l = x.bit_length() - 1
    assert 1 << l == x, x
    return l

def srd(a, s, base, nbytes, off=0):
    if off:
        a(f"s_add_u32 s{s}, s{base}, {off}")
        a(f"s_addc_u32 s{s+1}, s{base+1}, 0")
    else:
        a(f"s_mov_b32 s{s}, s{base}")
        a(f"s_mov_b32 s{s+1}, s{base+1}")
    a(f"s_mov_b32 s{s+2}, {nbytes}")
    a(f"s_mov_b32 s{s+3}, 0x20000")

def rnd_bf16(a, v, tmp=None):
    a(f"v_cvt_pk_bf16_f32 v{v}, v{v}, v{v}")
    a(f"v_and_b32 v{v}, 0xffff0000, v{v}")

def stamp_begin(a, s):
    if STAMPS:
        a(f"s_memrealtime s[{s}:{s+1}]")
def stamp_mid(a, s):
    if STAMPS:
        a(f"s_memrealtime s[{s}:{s+1}]")
def stamp_end(a, s, n, kidx, swave, v0, wsbase, sS, label):
    if not STAMPS: return
    a("s_waitcnt vmcnt(0)")
    a(f"s_memrealtime s[{s+2*(n-1)}:{s+2*(n-1)+1}]")
    a(f"s_cmp_lg_u32 s{swave}, 0")
    a(f"s_cbranch_scc1 {label}")
    a("s_waitcnt lgkmcnt(0)")
    srd(a, sS, wsbase, 64 * 1024, STAMP_OFF + kidx * 65536)
    for i in range(2 * n):
        a(f"v_mov_b32 v{v0+i}, s{s+i}")
    a(f"s_lshl_b32 s3, s2, 6")
    a(f"v_mov_b32 v{v0+2*n}, s3")
    a("s_mov_b64 exec, 1")
    for i in range(n):
        a(f"buffer_store_dwordx2 v[{v0+2*i}:{v0+2*i+1}], v{v0+2*n}, s[{sS}:{sS+3}], 0 offen offset:{8*i}")
    a.label(label)

def gen_k0(a):
    name = "k0_kernel"
    kernel_header(a, name)
    a("s_cmp_ge_u32 s2, 256")
    a("s_cbranch_scc1 L0_end")
    a(f"s_load_dwordx2 s[4:5], s[0:1], {A_X}")
    a(f"s_load_dwordx2 s[6:7], s[0:1], {A_GW}")
    a(f"s_load_dwordx2 s[24:25], s[0:1], {A_WS}")
    stamp_begin(a, 40)
    a("v_lshrrev_b32 v2, 6, v0")
    a("v_and_b32 v1, 63, v0")
    a("v_readfirstlane_b32 s20, v2")
    a("v_lshlrev_b32 v3, 3, v0")
    a("v_lshlrev_b32 v4, 4, v1")
    a("s_lshl_b32 s21, s2, 14")
    a("s_lshl_b32 s22, s20, 12")
    a("s_add_u32 s22, s22, s21")
    a("s_waitcnt lgkmcnt(0)")
    srd(a, 8, 4, 2048 * 1024 * 2)
    srd(a, 12, 6, 2048)
    srd(a, 16, 24, WS_BYTES)
    a("buffer_load_dwordx4 v[16:19], v4, s[8:11], s22 offen")
    a("buffer_load_dwordx4 v[20:23], v4, s[8:11], s22 offen offset:1024")
    a("buffer_load_dwordx4 v[24:27], v4, s[8:11], s22 offen offset:2048")
    a("buffer_load_dwordx4 v[28:31], v4, s[8:11], s22 offen offset:3072")
    a("buffer_load_dwordx4 v[32:35], v4, s[12:15], 0 offen")
    a("buffer_load_dwordx4 v[36:39], v4, s[12:15], 0 offen offset:1024")
    for r in range(8):
        if r % 2 == 0:
            a(f"s_add_u32 s23, s21, {r*2048}")
        a(f"buffer_load_dwordx2 v[{40+2*r}:{41+2*r}], v3, s[8:11], s23 offen offset:{(r%2)*2048}")
    for i in range(4):
        a(f"v_mov_b32 v{8+i}, 0")
    a("v_lshlrev_b32 v5, 4, v0")
    a("s_mul_i32 s23, s2, 1536")
    a(f"s_add_u32 s23, s23, {KV_OFF}")
    a("v_cmp_gt_u32 vcc, 96, v0")
    a("s_and_saveexec_b64 s[26:27], vcc")
    a("s_cbranch_execz L0_nz")
    a("buffer_store_dwordx4 v[8:11], v5, s[16:19], s23 offen")
    a("s_lshl_b32 s23, s2, 7")
    a(f"s_add_u32 s23, s23, {FLAG_OFF}")
    a("v_cmp_gt_u32 vcc, 8, v0")
    a("s_and_b64 exec, exec, vcc")
    a("s_cbranch_execz L0_nz")
    a("buffer_store_dwordx4 v[8:11], v5, s[16:19], s23 offen")
    a.label("L0_nz")
    a("s_mov_b64 exec, s[26:27]")
    a("s_mov_b32 s28, 0x3f803f80")
    a("v_mov_b32 v12, 0\nv_mov_b32 v13, 0\nv_mov_b32 v14, 0\nv_mov_b32 v15, 0")
    a("s_waitcnt vmcnt(8)")
    for i in range(8):
        a(f"v_dot2_f32_bf16 v12, v{16+i}, s28, v12")
        a(f"v_dot2_f32_bf16 v13, v{16+i}, v{32+i}, v13")
        a(f"v_dot2_f32_bf16 v14, v{24+i}, s28, v14")
        a(f"v_dot2_f32_bf16 v15, v{24+i}, v{32+i}, v15")
    def wave_reduce(regs):
        a("s_nop 2")
        for m in ("row_shr:1", "row_shr:2", "row_shr:4", "row_shr:8"):
            for r in regs:
                a(f"v_add_f32_dpp v{r}, v{r}, v{r} {m} row_mask:0xf bank_mask:0xf bound_ctrl:0")
            if len(regs) < 3: a("s_nop 1")
        for m, mask in (("row_bcast:15", "0xa"), ("row_bcast:31", "0xc")):
            for r in regs:
                a(f"v_add_f32_dpp v{r}, v{r}, v{r} {m} row_mask:{mask} bank_mask:0xf")
            if len(regs) < 3: a("s_nop 1")
        a("s_nop 0")
    wave_reduce([12, 13, 14, 15])
    a("v_readlane_b32 s30, v12, 63")
    a("v_readlane_b32 s31, v13, 63")
    a("v_readlane_b32 s32, v14, 63")
    a("v_readlane_b32 s33, v15, 63")
    a("s_mov_b32 s29, 0x3a800000")
    a("v_mov_b32 v6, s29")
    a("v_mul_f32 v8, s30, v6")
    a("v_mul_f32 v9, s32, v6")
    a("v_mov_b32 v12, 0\nv_mov_b32 v14, 0")
    for i in range(8):
        for base, mean, acc, t in ((16, 8, 12, 56), (24, 9, 14, 58)):
            a(f"v_lshlrev_b32 v{t}, 16, v{base+i}")
            a(f"v_and_b32 v{t+1}, 0xffff0000, v{base+i}")
            a(f"v_sub_f32 v{t}, v{t}, v{mean}")
            a(f"v_sub_f32 v{t+1}, v{t+1}, v{mean}")
            a(f"v_fmac_f32 v{acc}, v{t}, v{t}")
            a(f"v_fmac_f32 v{acc}, v{t+1}, v{t+1}")
    wave_reduce([12, 14])
    a("v_readlane_b32 s34, v12, 63")
    a("v_readlane_b32 s35, v14, 63")
    a("v_cmp_eq_u32 vcc, 1, v1")
    a("v_mov_b32 v10, s34\nv_mov_b32 v11, s35")
    a("v_mov_b32 v12, s31\nv_mov_b32 v13, s33")
    a("v_cndmask_b32 v10, v10, v11, vcc")
    a("v_cndmask_b32 v8, v8, v9, vcc")
    a("v_cndmask_b32 v12, v12, v13, vcc")
    a("v_mul_f32 v10, v10, v6")
    rnd_bf16(a, 10)
    rnd_bf16(a, 8)
    rnd_bf16(a, 12)
    a("v_add_f32 v10, 0x3727c5ac, v10")
    a("v_mul_f32 v12, 0xbfb8aa3b, v12")
    rnd_bf16(a, 10)
    a("v_exp_f32 v12, v12")
    a("v_sqrt_f32 v10, v10")
    a("s_nop 0")
    a("v_add_f32 v12, 1.0, v12")
    rnd_bf16(a, 10)
    a("v_rcp_f32 v12, v12")
    a("v_rcp_f32 v9, v10")
    a("s_nop 0")
    rnd_bf16(a, 12)
    a("v_sub_f32 v13, 1.0, v12")
    rnd_bf16(a, 13)
    a("s_lshl_b32 s23, s20, 4")
    a("v_lshlrev_b32 v5, 3, v1")
    a("v_add_u32 v7, s23, v5")
    a("s_lshl_b32 s22, s2, 6")
    a(f"s_add_u32 s22, s22, {G_OFF}")
    a("s_mov_b64 exec, 3")
    a("ds_write_b64 v7, v[8:9]")
    a("buffer_store_dwordx2 v[12:13], v7, s[16:19], s22 offen")
    a("s_mov_b64 exec, -1")
    a("v_mov_b32 v5, 0")
    a("s_waitcnt lgkmcnt(0)")
    a("s_barrier")
    for i in range(4):
        a(f"ds_read_b128 v[{16+4*i}:{19+4*i}], v5 offset:{16*i}")
    a("s_waitcnt vmcnt(0) lgkmcnt(0)")
    for r in range(8):
        b = 64 + 4 * r
        for k in range(2):
            a(f"v_lshlrev_b32 v{b+2*k}, 16, v{40+2*r+k}")
            a(f"v_and_b32 v{b+2*k+1}, 0xffff0000, v{40+2*r+k}")
        for cidx in range(4):
            a(f"v_sub_f32 v{b+cidx}, v{b+cidx}, v{16+2*r}")
        for k in range(2):
            a(f"v_cvt_pk_bf16_f32 v{56+k}, v{b+2*k}, v{b+2*k+1}")
        for k in range(2):
            a(f"v_lshlrev_b32 v{b+2*k}, 16, v{56+k}")
            a(f"v_and_b32 v{b+2*k+1}, 0xffff0000, v{56+k}")
        for cidx in range(4):
            a(f"v_mul_f32 v{b+cidx}, v{b+cidx}, v{17+2*r}")
    a("v_lshlrev_b32 v5, 6, v0")
    a("s_lshl_b32 s23, s2, 14")
    if HT_OFF: a(f"s_add_u32 s23, s23, {HT_OFF}")
    for cidx in range(4):
        o = 96 + 4 * cidx
        for p in range(4):
            a(f"v_cvt_pk_bf16_f32 v{o+p}, v{64 + 8*p + cidx}, v{64 + 8*p + 4 + cidx}")
        a(f"buffer_store_dwordx4 v[{o}:{o+3}], v5, s[16:19], s23 offen offset:{16*cidx}")
    stamp_end(a, 40, 2, 0, 20, 16, 24, 16, "L0_st")
    a.label("L0_end")
    a("s_endpgm")
    return dict(name=name, grid=256, block=256, lds=64, vgpr=112)


class Part:
    def __init__(self, **kw): self.__dict__.update(kw)

class Core:
    def __init__(self, a, tag, NS, SB, TB, MT, MW, vF, sW1024, sN, sRho, sKT, sKW, sT1, sT2, sCnt):
        self.__dict__.update(locals()); del self.__dict__['self']
        self.fs = 0
    def rot(self, p):
        return [f"s_add_u32 s{self.sT1}, s{self.sN}, s{self.sRho}",
                f"s_and_b32 s{self.sT1}, s{self.sT1}, 3",
                f"s_andn2_b32 s{self.sT2}, s{self.sN}, 3",
                f"s_or_b32 s{self.sT1}, s{self.sT1}, s{self.sT2}",
                f"s_mul_i32 s{self.sKT}, s{self.sT1}, {p.stT}",
                f"s_mul_i32 s{self.sKW}, s{self.sT1}, {p.stW}",
                f"s_add_u32 s{self.sN}, s{self.sN}, 1"]
    def dma(self, p, slot):
        g = []
        for j, v in enumerate(p.vDT):
            g.append([f"s_add_u32 m0, s{self.sW1024}, {slot*self.SB + j*4096}", "s_nop 0",
                      f"buffer_load_dwordx4 v{v}, s[{p.srdT}:{p.srdT+3}], s{self.sKT} offen lds"])
        for j, v in enumerate(p.vDW):
            g.append([f"s_add_u32 m0, s{self.sW1024}, {slot*self.SB + self.TB + j*4096}", "s_nop 0",
                      f"buffer_load_dwordx4 v{v}, s[{p.srdW}:{p.srdW+3}], s{self.sKW} offen lds"])
        r = self.rot(p)
        g[0] = r + g[0]
        return g
    def P(self, p): return len(p.vDT) + len(p.vDW)
    def fT(self, fs, i): return self.vF[fs] + 4 * i
    def fW(self, fs, j): return self.vF[fs] + 4 * self.MT + 4 * j
    def reads(self, p, slot, fs):
        tl = [[f"ds_read_b128 v[{self.fT(fs,i)}:{self.fT(fs,i)+3}], v{vb} offset:{o}"] for i, (vb, o) in enumerate(p.rdT(slot))]
        wl = []
        for j, (vb, o1, o2) in enumerate(p.rdW(slot)):
            b = self.fW(fs, j)
            wl.append([f"ds_read_b64_tr_b16 v[{b}:{b+1}], v{vb} offset:{o1}"])
            wl.append([f"ds_read_b64_tr_b16 v[{b+2}:{b+3}], v{vb} offset:{o2}"])
        out = []
        while tl or wl:
            if tl: out.append(tl.pop(0))
            if wl: out.append(wl.pop(0))
            if wl: out.append(wl.pop(0))
        return out
    def prologue(self, p, loader, extra_wait=None):
        a = self.a
        if loader:
            for s in range(self.NS):
                for g in self.dma(p, s):
                    for l in g: a(l)
    def first(self, p, loader):
        a = self.a
        if loader: a(f"s_waitcnt vmcnt({(self.NS-1)*self.P(p)})")
        a("s_barrier")
        for g in self.reads(p, 0, self.fs):
            for l in g: a(l)
    def stage(self, slot, cur, nxt, dmap, vm, loader, extra=None):
        a = self.a
        f = self.fs
        if nxt is not None:
            a(f"s_waitcnt vmcnt({vm}) lgkmcnt(0)" if loader else "s_waitcnt lgkmcnt(0)")
            a("s_barrier")
            rd = self.reads(nxt, (slot + 1) % self.NS, 1 - f)
        else:
            a("s_waitcnt lgkmcnt(0)")
            rd = []
        m = cur.mf(lambda i: self.fT(f, i), lambda j: self.fW(f, j))
        nm = len(m)
        slots = [[] for _ in range(nm)]
        for idx, g in enumerate(rd):
            slots[min(idx, nm - 1)].extend(g)
        fill = []
        if dmap is not None and loader: fill = self.dma(dmap, slot)
        if extra: fill = fill + extra
        for idx, g in enumerate(fill):
            slots[(idx * nm) // len(fill)].extend(g)
        for i in range(nm):
            a(m[i])
            for l in slots[i]: a(l)
        self.fs = 1 - f
    def run(self, p, nst, loader, nxt_part=None, count_reg_init=None, slot0=0, extra=None):
        a = self.a; NS = self.NS
        UN = NS if NS % 2 == 0 else 2 * NS
        nloop = (nst - NS) // UN
        ntail = nst - nloop * UN
        P = self.P(p)
        lab = f"L_{self.tag}_{len(a.lines)}"
        if nloop > 0:
            a(f"s_mov_b32 s{self.sCnt}, {nloop}" if count_reg_init is None else count_reg_init)
            a.label(lab)
            for s in range(UN):
                self.stage((slot0 + s) % NS, p, p, p, (NS - 2) * P, loader, extra)
            a(f"s_sub_u32 s{self.sCnt}, s{self.sCnt}, 1")
            a(f"s_cmp_lg_u32 s{self.sCnt}, 0")
            a(f"s_cbranch_scc1 {lab}")
        for s in range(ntail):
            rem = ntail - 1 - s
            slot = (slot0 + s) % NS
            if rem >= NS:
                self.stage(slot, p, p, p, (NS - 2) * P, loader, extra)
            elif nxt_part is None:
                self.stage(slot, p, p if rem else None, None, min(NS - 2, max(rem - 1, 0)) * P, loader)
            else:
                assert self.P(nxt_part) == P
                if rem == NS - 1 and loader: a(f"s_mov_b32 s{self.sN}, 0")
                self.stage(slot, p, p if rem else nxt_part, nxt_part, (NS - 2) * P, loader)
        return (slot0 + ntail) % NS

def lane_bits(a, vLane, vq, vr, vc):
    a(f"v_lshrrev_b32 v{vq}, 4, v{vLane}")
    a(f"v_bfe_u32 v{vr}, v{vLane}, 2, 2")
    a(f"v_and_b32 v{vc}, 3, v{vLane}")

L2E = 0x3fb8aa3b

def gen_k1(a):
    name = "k1_kernel"
    kernel_header(a, name)
    S_T, S_W, S_WS, S_AUX = 8, 12, 16, 24
    sWave, sW1024, sN, sRho, sKT, sKW, sT1, sT2, sCnt, sTT, sTW = 28, 29, 30, 31, 32, 33, 34, 35, 36, 37, 38
    sWSp = 44
    ST = 48
    vLane, vT1, vT2, vq, vr_, vc = 1, 2, 3, 4, 5, 6
    a("s_cmp_ge_u32 s2, 256")
    a("s_cbranch_scc1 L1_end")
    a(f"s_load_dwordx2 s[{sWSp}:{sWSp+1}], s[0:1], {A_WS}")
    a(f"s_load_dwordx4 s[4:7], s[0:1], {A_X}")
    a(f"s_load_dwordx2 s[20:21], s[0:1], {A_WPHI}")
    a(f"s_load_dwordx4 s[40:43], s[0:1], {A_W1}")
    stamp_begin(a, ST)
    a(f"v_lshrrev_b32 v{vT1}, 6, v0")
    a(f"v_and_b32 v{vLane}, 63, v0")
    a(f"v_readfirstlane_b32 s{sWave}, v{vT1}")
    lane_bits(a, vLane, vq, vr_, vc)
    a(f"s_and_b32 s{sT1}, s2, 7")
    a(f"s_lshr_b32 s{sT2}, s2, 3")
    a(f"s_and_b32 s{sTT}, s{sT1}, 1")
    a(f"s_lshl_b32 s{sTT}, s{sTT}, 2")
    a(f"s_and_b32 s3, s{sT2}, 3")
    a(f"s_add_u32 s{sTT}, s{sTT}, s3")
    a(f"s_lshr_b32 s{sTW}, s{sT1}, 1")
    a(f"s_lshl_b32 s{sTW}, s{sTW}, 2")
    a(f"s_bfe_u32 s{sRho}, s{sT2}, 0x20002")
    a(f"s_add_u32 s{sTW}, s{sTW}, s{sRho}")
    a(f"s_add_u32 s{sRho}, s{sRho}, s3")
    a(f"s_and_b32 s{sW1024}, s{sWave}, 3")
    a(f"s_lshl_b32 s{sW1024}, s{sW1024}, 10")
    a(f"s_mov_b32 s{sN}, 0")
    a(f"s_cmp_ge_u32 s{sT2}, 16")
    a("s_waitcnt lgkmcnt(0)")
    a("s_cbranch_scc1 L1_g1")

    NS, TB, WB = 4, 16384, 12288
    SB = TB + WB
    WPHI = NS * SB
    MT, MW = 4, 6
    vDT = [8, 9, 10, 11]; vDW = [12, 13, 14]
    vRT = [16, 17]; vRE = [18, 19]; vRO = [20, 21]
    vF = [24, 64]; ACC = 104
    srd(a, S_T, 4, 2048 * 1024 * 2)
    srd(a, S_W, 6, 1024 * 3072 * 2)
    srd(a, S_AUX, 20, 65536)
    srd(a, S_WS, sWSp, WS_BYTES)
    a(f"v_lshrrev_b32 v{vT1}, 2, v{vLane}")
    a(f"v_lshlrev_b32 v{vT1}, 11, v{vT1}")
    a(f"v_lshl_add_u32 v{vT1}, v{vc}, 4, v{vT1}")
    a(f"v_and_b32 v{vT2}, 32, v{vLane}")
    a(f"v_xor_b32 v{vT1}, v{vT2}, v{vT1}")
    a(f"s_lshl_b32 s{sT1}, s{sTT}, 19")
    a(f"s_lshl_b32 s{sT2}, s{sWave}, 15")
    a(f"s_add_u32 s{sT1}, s{sT1}, s{sT2}")
    for j, v in enumerate(vDT):
        a(f"s_add_u32 s{sT2}, s{sT1}, {j*64*2048}")
        a(f"v_add_u32 v{v}, s{sT2}, v{vT1}")
    a(f"v_bfe_u32 v{vT1}, v{vLane}, 2, 3")
    a(f"v_mul_u32_u24 v{vT1}, 6144, v{vT1}")
    a(f"v_lshrrev_b32 v{vT2}, 5, v{vLane}")
    a(f"v_lshl_add_u32 v{vT1}, v{vT2}, 6, v{vT1}")
    a(f"v_lshl_add_u32 v{vT1}, v{vc}, 4, v{vT1}")
    a(f"s_and_b32 s{sT1}, s{sWave}, 1")
    a(f"s_lshl_b32 s{sT1}, s{sT1}, 5")
    a(f"v_xor_b32 v{vT1}, s{sT1}, v{vT1}")
    a(f"s_mul_i32 s{sT1}, s{sWave}, {8*6144}")
    a(f"s_lshl_b32 s{sT2}, s{sTW}, 7")
    a(f"s_add_u32 s{sT1}, s{sT1}, s{sT2}")
    for j, v in enumerate(vDW):
        a(f"s_add_u32 s{sT2}, s{sT1}, {j*2048}")
        a(f"v_add_u32 v{v}, s{sT2}, v{vT1}")
    def q_rdT(slot): return [(vRT[slot // 2], (slot % 2) * SB + i * 1024) for i in range(MT)]
    def q_rdW(slot): return [((vRO if b & 1 else vRE)[slot // 2], (slot % 2) * SB + (b >> 1) * 4096, (slot % 2) * SB + (b >> 1) * 4096 + 256) for b in range(MW)]
    def q_mf(fT, fW):
        m = []
        for i in range(MT):
            for j in range(MW):
                d = ACC + (i * MW + j) * 4
                A, B = (fW(j), fT(i)) if j < 4 else (fT(i), fW(j))
                m.append(f"v_mfma_f32_16x16x32_bf16 v[{d}:{d+3}], v[{A}:{A+3}], v[{B}:{B+3}], v[{d}:{d+3}]")
        return m
    pq = Part(srdT=S_T, srdW=S_W, vDT=vDT, vDW=vDW, stT=64, stW=32 * 6144, rdT=q_rdT, rdW=q_rdW, mf=q_mf)
    core = Core(a, "q", NS, SB, TB, MT, MW, vF, sW1024, sN, sRho, sKT, sKW, sT1, sT2, sCnt)
    a(f"s_cmp_ge_u32 s{sWave}, 4")
    a("s_cbranch_scc1 L1q_nold0")
    a(f"v_lshlrev_b32 v{vT1}, 4, v{vLane}")
    a(f"s_lshl_b32 s{sT1}, s{sTW}, 12")
    a(f"s_add_u32 s{sT1}, s{sT1}, s{sW1024}")
    a(f"s_add_u32 m0, s{sW1024}, {WPHI}")
    a("s_nop 0")
    a(f"buffer_load_dwordx4 v{vT1}, s[{S_AUX}:{S_AUX+3}], s{sT1} offen lds")
    core.prologue(pq, True)
    a.label("L1q_nold0")
    a(f"v_and_b32 v{vT1}, 15, v{vLane}")
    a(f"v_lshlrev_b32 v{vT1}, 6, v{vT1}")
    a(f"v_lshl_add_u32 v{vT1}, v{vq}, 4, v{vT1}")
    a(f"v_and_b32 v{vT2}, 8, v{vLane}")
    a(f"v_lshlrev_b32 v{vT2}, 2, v{vT2}")
    a(f"v_xor_b32 v{vT1}, v{vT2}, v{vT1}")
    a(f"s_lshr_b32 s{sT1}, s{sWave}, 1")
    a(f"s_lshl_b32 s{sT1}, s{sT1}, 12")
    a(f"v_add_u32 v{vRT[0]}, s{sT1}, v{vT1}")
    a(f"v_add_u32 v{vRT[1]}, {2*SB}, v{vRT[0]}")
    a(f"v_lshlrev_b32 v{vT1}, 10, v{vq}")
    a(f"v_lshl_add_u32 v{vT1}, v{vr_}, 6, v{vT1}")
    a(f"v_and_b32 v{vT2}, 1, v{vq}")
    a(f"v_lshl_add_u32 v{vT1}, v{vT2}, 5, v{vT1}")
    a(f"v_lshl_add_u32 v{vT1}, v{vc}, 3, v{vT1}")
    a(f"s_and_b32 s{sT1}, s{sWave}, 1")
    a(f"s_lshl_b32 s{sT1}, s{sT1}, 9")
    a(f"s_add_u32 s{sT1}, s{sT1}, {TB}")
    a(f"v_add_u32 v{vRE[0]}, s{sT1}, v{vT1}")
    a(f"v_add_u32 v{vRE[1]}, {2*SB}, v{vRE[0]}")
    a(f"v_xor_b32 v{vRO[0]}, 32, v{vRE[0]}")
    a(f"v_xor_b32 v{vRO[1]}, 32, v{vRE[1]}")
    for i in range(MT * MW * 4):
        a(f"v_mov_b32 v{ACC+i}, 0")
    a(f"s_cmp_ge_u32 s{sWave}, 4")
    a("s_cbranch_scc1 L1q_nold")
    core.fs = 0; core.first(pq, True); core.run(pq, 32, True)
    a("s_branch L1q_epi")
    a.label("L1q_nold")
    core.fs = 0; core.first(pq, False); core.run(pq, 32, False)
    a.label("L1q_epi")
    stamp_mid(a, ST + 2)
    a("s_barrier")
    vPhiA = 8
    vAdr, vAdr2, vPQ = 16, 17, 18
    AREA = 12288
    a(f"v_lshl_add_u32 v{vT1}, v{vq}, 2, v{vr_}")
    a(f"v_lshlrev_b32 v{vT2}, 6, v{vT1}")
    a(f"v_lshl_add_u32 v{vT2}, v{vc}, 3, v{vT2}")
    a(f"s_and_b32 s{sT1}, s{sWave}, 1")
    a(f"s_lshl_b32 s{sT2}, s{sT1}, 11")
    a(f"v_add_u32 v{vT2}, s{sT2}, v{vT2}")
    a(f"v_add_u32 v{vT2}, {WPHI}, v{vT2}")
    for fb in range(2):
        a(f"ds_read_b64_tr_b16 v[{vPhiA+4*fb}:{vPhiA+4*fb+1}], v{vT2} offset:{fb*32}")
        a(f"ds_read_b64_tr_b16 v[{vPhiA+4*fb+2}:{vPhiA+4*fb+3}], v{vT2} offset:{fb*32+1024}")
    a(f"s_mul_i32 s{sT2}, s{sWave}, {AREA}")
    a(f"v_mul_u32_u24 v{vAdr2}, 160, v{vT1}")
    a(f"v_lshl_add_u32 v{vAdr2}, v{vc}, 3, v{vAdr2}")
    a(f"v_add_u32 v{vAdr2}, s{sT2}, v{vAdr2}")
    a(f"v_and_b32 v{vT1}, 15, v{vLane}")
    a(f"v_mul_u32_u24 v{vAdr}, 160, v{vT1}")
    a(f"v_lshl_add_u32 v{vAdr}, v{vq}, 3, v{vAdr}")
    a(f"v_add_u32 v{vAdr}, s{sT2}, v{vAdr}")
    a(f"v_lshlrev_b32 v{vPQ}, 4, v{vLane}")
    a(f"s_lshl_b32 s{sKT}, s{sTW}, 1")
    a(f"s_add_u32 s{sKT}, s{sKT}, s{sT1}")
    a(f"s_lshl_b32 s{sKW}, s{sKT}, 7")
    a(f"s_lshl_b32 s{sT2}, s{sTT}, 4")
    a(f"s_add_u32 s{sKW}, s{sKW}, s{sT2}")
    a(f"s_lshr_b32 s{sT2}, s{sWave}, 1")
    a(f"s_lshl_b32 s{sT2}, s{sT2}, 2")
    a(f"s_add_u32 s{sKW}, s{sKW}, s{sT2}")
    a(f"s_lshl_b32 s{sKW}, s{sKW}, 11")
    a(f"s_add_u32 s{sKW}, s{sKW}, {PQ_OFF}")
    a(f"s_mov_b32 s{sN}, {L2E}")
    def cross(regs, op):
        for sw in ("v_permlane16_swap_b32", "v_permlane32_swap_b32"):
            for n, r in enumerate(regs): a(f"v_mov_b32 v{88+n}, v{r}")
            a("s_nop 1")
            for n, r in enumerate(regs): a(f"{sw} v{r}, v{88+n}")
            a("s_nop 1")
            for n, r in enumerate(regs): a(f"{op} v{r}, v{r}, v{88+n}")
    for X in range(2):
        for i in range(4):
            for h in range(2):
                s0 = ACC + (i * MW + 2 * X + h) * 4
                a(f"v_cvt_pk_bf16_f32 v{24+4*i+2*h}, v{s0}, v{s0+1}")
                a(f"v_cvt_pk_bf16_f32 v{24+4*i+2*h+1}, v{s0+2}, v{s0+3}")
        if X == 0: a("s_waitcnt lgkmcnt(0)")
        a("s_nop 1")
        for i in range(4):
            for fb in range(2):
                d = 40 + 8 * i + 4 * fb
                a(f"v_mfma_f32_16x16x32_bf16 v[{d}:{d+3}], v[{vPhiA+4*fb}:{vPhiA+4*fb+3}], v[{24+4*i}:{27+4*i}], 0")
        a("s_nop 7")
        for i in range(4):
            p = 40 + 8 * i
            for (op3, op2, dst) in (("v_max3_f32", "v_max_f32", 72 + i), ("v_min3_f32", "v_min_f32", 76 + i)):
                a(f"{op3} v{dst}, v{p}, v{p+1}, v{p+2}")
                a(f"{op3} v{dst}, v{dst}, v{p+3}, v{p+4}")
                a(f"{op3} v{dst}, v{dst}, v{p+5}, v{p+6}")
                a(f"{op2} v{dst}, v{dst}, v{p+7}")
        cross([72, 73, 74, 75], "v_max_f32")
        cross([76, 77, 78, 79], "v_min_f32")
        for n in range(8):
            a(f"v_mul_f32 v{72+n}, s{sN}, v{72+n}")
        for i in range(4):
            p = 40 + 8 * i; e = ACC + (i * MW + 2 * X) * 4
            for n in range(8):
                a(f"v_fma_f32 v{e+n}, v{p+n}, s{sN}, -v{72+i}")
                a(f"v_fma_f32 v{p+n}, -v{p+n}, s{sN}, v{76+i}")
            for n in range(8):
                a(f"v_exp_f32 v{e+n}, v{e+n}")
                a(f"v_exp_f32 v{p+n}, v{p+n}")
        a("s_nop 0")
        for i in range(4):
            p = 40 + 8 * i; e = ACC + (i * MW + 2 * X) * 4
            for (src, dst) in ((e, 80 + i), (p, 84 + i)):
                a(f"v_add_f32 v{dst}, v{src}, v{src+1}")
            for n in range(2, 8):
                for (src, dst) in ((e, 80 + i), (p, 84 + i)):
                    a(f"v_add_f32 v{dst}, v{dst}, v{src+n}")
        cross(list(range(80, 88)), "v_add_f32")
        for n in range(8):
            a(f"v_rcp_f32 v{80+n}, v{80+n}")
        a("s_nop 0")
        for i in range(4):
            p = 40 + 8 * i; e = ACC + (i * MW + 2 * X) * 4
            for sg, (src, rs) in enumerate(((e, 80 + i), (p, 84 + i))):
                for n in range(8):
                    a(f"v_mul_f32 v{src+n}, v{src+n}, v{rs}")
                o = 88 + 8 * (i % 2) + 4 * sg
                for n in range(4):
                    a(f"v_cvt_pk_bf16_f32 v{o+n}, v{src+2*n}, v{src+2*n+1}")
                if X == 0:
                    if sg == 0 and i % 2 == 0 and i: a(f"s_add_u32 s{sKW}, s{sKW}, 4096")
                    a(f"buffer_store_dwordx4 v[{o}:{o+3}], v{vPQ}, s[{S_WS}:{S_WS+3}], s{sKW} offen offset:{(i%2)*2048 + sg*1024}")
                else:
                    for fb in range(2):
                        a(f"ds_write_b64 v{vAdr}, v[{o+2*fb}:{o+2*fb+1}] offset:{i*16*160 + sg*64 + fb*32}")
    for I in range(2):
        for db in range(2):
            o = 56 + 8 * I + 4 * db
            for h in range(2):
                s0 = ACC + ((2 * I + h) * MW + 4 + db) * 4
                a(f"v_cvt_pk_bf16_f32 v{o+2*h}, v{s0}, v{s0+1}")
                a(f"v_cvt_pk_bf16_f32 v{o+2*h+1}, v{s0+2}, v{s0+3}")
    for n in range(4): a(f"v_mov_b32 v{72+n}, 0x3f803f80")
    a("s_waitcnt lgkmcnt(0)")
    for I in range(2):
        for fk in range(4):
            o = 24 + 16 * I + 4 * fk
            a(f"ds_read_b64_tr_b16 v[{o}:{o+1}], v{vAdr2} offset:{I*32*160 + fk*32}")
            a(f"ds_read_b64_tr_b16 v[{o+2}:{o+3}], v{vAdr2} offset:{I*32*160 + fk*32 + 2560}")
    a("s_waitcnt lgkmcnt(0)")
    for I in range(2):
        for fk in range(4):
            o = 24 + 16 * I + 4 * fk
            for db in range(3):
                t = fk * 2 + db if db < 2 else 8 + fk
                d = ACC + 4 * t
                B = 56 + 8 * I + 4 * db if db < 2 else 72
                c = f"v[{d}:{d+3}]" if I else "0"
                a(f"v_mfma_f32_16x16x32_bf16 v[{d}:{d+3}], v[{o}:{o+3}], v[{B}:{B+3}], {c}")
    a(f"s_mul_i32 s{sT2}, s{sWave}, {AREA}")
    a(f"v_lshlrev_b32 v{vT1}, 4, v{vLane}")
    a(f"v_add_u32 v{vT1}, s{sT2}, v{vT1}")
    a("s_nop 4")
    for t in range(12):
        a(f"ds_write_b128 v{vT1}, v[{ACC+4*t}:{ACC+4*t+3}] offset:{t*1024}")
    a(f"s_and_b32 s{sT1}, s{sWave}, 1")
    a(f"s_mul_i32 s{sT1}, s{sT1}, {AREA}")
    a(f"s_lshr_b32 s{sT2}, s{sWave}, 1")
    a(f"s_mul_i32 s{sT2}, s{sT2}, 3072")
    a(f"s_add_u32 s{sT1}, s{sT1}, s{sT2}")
    a(f"v_lshlrev_b32 v{vT2}, 2, v{vLane}")
    a(f"v_add_u32 v{vT1}, s{sT1}, v{vT2}")
    a(f"v_add_u32 v{vAdr}, {4*AREA}, v{vT1}")
    a(f"s_mul_i32 s{sKT}, s{sKT}, 12288")
    a(f"s_add_u32 s{sKT}, s{sKT}, s{sT2}")
    a(f"s_add_u32 s{sKT}, s{sKT}, {KV_OFF}")
    a("s_waitcnt lgkmcnt(0)")
    a("s_barrier")
    for w4 in range(4):
        vb = vT1 if w4 < 2 else vAdr
        for n in range(6):
            o0 = ((w4 % 2) * 2 * AREA) // 256 + 2 * n
            a(f"ds_read2st64_b32 v[{24+12*w4+2*n}:{25+12*w4+2*n}], v{vb} offset0:{o0} offset1:{o0+1}")
    a("s_waitcnt lgkmcnt(0)")
    for n in range(12):
        a(f"v_add_f32 v{24+n}, v{24+n}, v{36+n}")
        a(f"v_add_f32 v{48+n}, v{48+n}, v{60+n}")
    for n in range(12):
        a(f"v_add_f32 v{24+n}, v{24+n}, v{48+n}")
    for n in range(12):
        a(f"buffer_atomic_add_f32 v{24+n}, v{vT2}, s[{S_WS}:{S_WS+3}], s{sKT} offen offset:{n*256}")
    a("s_branch L1_fin")

    a.label("L1_g1")
    NS, TB, WB = 3, 16384, 28672
    SB = TB + WB
    MT, MW = 4, 7
    vDT = [8, 9, 10, 11]; vDW = [12, 13, 14, 15, 16, 17, 18]
    vRT = [20, 21, 22]; vRE = [23, 24, 25]; vRO = [26, 27, 28]
    vF = [32, 76]; ACC = 120
    LDW = 7168
    srd(a, S_WS, sWSp, WS_BYTES)
    srd(a, S_T, sWSp, 4 * MB, HT_OFF)
    srd(a, S_W, 40, 2048 * 3584 * 2)
    srd(a, S_AUX, 42, 7168)
    a(f"v_lshlrev_b32 v{vT1}, 4, v{vLane}")
    a(f"s_lshr_b32 s{sT1}, s{sWave}, 1")
    a(f"s_lshl_b32 s{sT1}, s{sT1}, 14")
    a(f"s_and_b32 s{sT2}, s{sWave}, 1")
    a(f"s_lshl_b32 s{sT2}, s{sT2}, 10")
    a(f"s_add_u32 s{sT1}, s{sT1}, s{sT2}")
    a(f"s_lshl_b32 s{sT2}, s{sTT}, 11")
    a(f"s_add_u32 s{sT1}, s{sT1}, s{sT2}")
    for j, v in enumerate(vDT):
        a(f"s_add_u32 s{sT2}, s{sT1}, {j*2*16384}")
        a(f"v_add_u32 v{v}, s{sT2}, v{vT1}")
    a(f"v_lshrrev_b32 v{vT1}, 2, v{vLane}")
    a(f"v_mul_u32_u24 v{vT1}, {LDW}, v{vT1}")
    a(f"v_lshl_add_u32 v{vT1}, v{vc}, 4, v{vT1}")
    a(f"v_and_b32 v{vT2}, 32, v{vLane}")
    a(f"v_xor_b32 v{vT1}, v{vT2}, v{vT1}")
    a(f"s_mul_i32 s{sT1}, s{sWave}, {16*LDW}")
    a(f"s_mul_i32 s{sT2}, s{sTW}, 448")
    a(f"s_add_u32 s{sT1}, s{sT1}, s{sT2}")
    for j, v in enumerate(vDW):
        a(f"s_add_u32 s{sT2}, s{sT1}, {j*64}")
        a(f"v_add_u32 v{v}, s{sT2}, v{vT1}")
    def g_rdT(slot): return [(vRT[slot], i * 256) for i in range(MT)]
    def g_rdW(slot): return [((vRO if b & 1 else vRE)[slot], (b >> 1) * 4096, (b >> 1) * 4096 + 256) for b in range(MW)]
    def g_mf(fT, fW):
        m = []
        for i in range(MT):
            for j in range(MW):
                d = ACC + (i * MW + j) * 4
                m.append(f"v_mfma_f32_16x16x32_bf16 v[{d}:{d+3}], v[{fW(j)}:{fW(j)+3}], v[{fT(i)}:{fT(i)+3}], v[{d}:{d+3}]")
        return m
    pg = Part(srdT=S_T, srdW=S_W, vDT=vDT, vDW=vDW, stT=8 * 16384, stW=64 * LDW, rdT=g_rdT, rdW=g_rdW, mf=g_mf)
    core = Core(a, "g", NS, SB, TB, MT, MW, vF, sW1024, sN, sRho, sKT, sKW, sT1, sT2, sCnt)
    a(f"s_cmp_ge_u32 s{sWave}, 4")
    a("s_cbranch_scc1 L1g_nold0")
    a(f"s_mul_i32 s{sT1}, s{sTW}, 448")
    a(f"s_and_b32 s{sT2}, s{sWave}, 1")
    a(f"s_mul_i32 s{sT2}, s{sT2}, 224")
    a(f"s_add_u32 s{sT1}, s{sT1}, s{sT2}")
    a(f"v_lshlrev_b32 v{vT1}, 3, v{vq}")
    for b in range(7):
        a(f"buffer_load_dwordx2 v[{76+2*b}:{77+2*b}], v{vT1}, s[{S_AUX}:{S_AUX+3}], s{sT1} offen offset:{32*b}")
    core.prologue(pg, True)
    a.label("L1g_nold0")
    a(f"v_and_b32 v{vT1}, 15, v{vLane}")
    a(f"v_lshlrev_b32 v{vT1}, 4, v{vT1}")
    a(f"v_lshl_add_u32 v{vT1}, v{vq}, 11, v{vT1}")
    a(f"s_lshr_b32 s{sT1}, s{sWave}, 2")
    a(f"s_lshl_b32 s{sT1}, s{sT1}, 13")
    a(f"s_bfe_u32 s{sT2}, s{sWave}, 0x10001")
    a(f"s_lshl_b32 s{sT2}, s{sT2}, 10")
    a(f"s_add_u32 s{sT1}, s{sT1}, s{sT2}")
    for s in range(NS):
        a(f"s_add_u32 s{sT2}, s{sT1}, {s*SB}")
        a(f"v_add_u32 v{vRT[s]}, s{sT2}, v{vT1}")
    a(f"v_lshlrev_b32 v{vT1}, 9, v{vq}")
    a(f"v_lshl_add_u32 v{vT1}, v{vr_}, 6, v{vT1}")
    a(f"v_and_b32 v{vT2}, 1, v{vq}")
    a(f"v_lshl_add_u32 v{vT1}, v{vT2}, 5, v{vT1}")
    a(f"v_lshl_add_u32 v{vT1}, v{vc}, 3, v{vT1}")
    a(f"v_xor_b32 v{vT2}, 32, v{vT1}")
    a(f"s_lshr_b32 s{sT1}, s{sWave}, 2")
    a(f"s_lshl_b32 s{sT1}, s{sT1}, 11")
    a(f"s_add_u32 s{sT1}, s{sT1}, {TB}")
    a(f"s_and_b32 s{sT2}, s{sWave}, 1")
    a(f"s_cmp_eq_u32 s{sT2}, 0")
    a("s_cbranch_scc1 L1g_ww0")
    a(f"v_add_u32 v7, {4*4096}, v{vT1}")
    a(f"v_add_u32 v{vT1}, {3*4096}, v{vT2}")
    a(f"v_mov_b32 v{vT2}, v7")
    a.label("L1g_ww0")
    for s in range(NS):
        a(f"s_add_u32 s{sT2}, s{sT1}, {s*SB}")
        a(f"v_add_u32 v{vRE[s]}, s{sT2}, v{vT1}")
        a(f"v_add_u32 v{vRO[s]}, s{sT2}, v{vT2}")
    def g_epi(kg):
        stamp_mid(a, ST + 2)
        keep = (0, 1) if kg == 0 else (2, 3)
        send = (2, 3) if kg == 0 else (0, 1)
        a(f"s_mul_i32 s{sT1}, s{sW1024}, 28")
        a(f"v_lshlrev_b32 v{vT1}, 4, v{vLane}")
        a(f"v_add_u32 v{vT1}, s{sT1}, v{vT1}")
        a(f"v_and_b32 v{vT2}, 15, v{vLane}")
        a(f"v_lshlrev_b32 v{vT2}, 4, v{vT2}")
        a(f"v_lshl_add_u32 v{vT2}, v{vq}, 14, v{vT2}")
        a(f"s_lshl_b32 s{sT1}, s{sTT}, 11")
        a(f"s_bfe_u32 s{sT2}, s{sWave}, 0x10001")
        a(f"s_lshl_b32 s{sT2}, s{sT2}, 10")
        a(f"s_add_u32 s{sT1}, s{sT1}, s{sT2}")
        a(f"s_add_u32 s{sT1}, s{sT1}, {U_OFF}")
        a(f"v_add_u32 v{vT2}, s{sT1}, v{vT2}")
        a(f"s_mul_i32 s{sN}, s{sTW}, 14")
        a(f"s_and_b32 s{sT2}, s{sWave}, 1")
        a(f"s_mul_i32 s{sT2}, s{sT2}, 7")
        a(f"s_add_u32 s{sN}, s{sN}, s{sT2}")
        a("s_barrier")
        a("s_nop 4")
        for n in range(14):
            r = ACC + (send[0] * MW + n) * 4
            a(f"ds_write_b128 v{vT1}, v[{r}:{r+3}] offset:{kg*14336 + n*1024}")
        a("s_waitcnt lgkmcnt(0)")
        a("s_barrier")
        for n in range(14):
            a(f"ds_read_b128 v[{32+4*n}:{35+4*n}], v{vT1} offset:{(1-kg)*14336 + n*1024}")
        import struct, math
        f2u = lambda f: struct.unpack("<I", struct.pack("<f", f))[0]
        c0 = -2 * math.sqrt(2 / math.pi) * math.log2(math.e)
        a(f"s_mov_b32 s{sKT}, {f2u(c0 * 0.044715):#x}")
        a(f"v_mov_b32 v7, {f2u(c0):#x}")
        for n in range(14):
            a(f"s_waitcnt lgkmcnt({13-n})")
            i = keep[n // 7]; b = n % 7
            r = ACC + (i * MW + b) * 4; t = 32 + 4 * n; w = 96 + 4 * (n % 4)
            for e in range(4): a(f"v_add_f32 v{r+e}, v{r+e}, v{t+e}")
            for e in range(4): a(f"v_mul_f32 v{t+e}, v{r+e}, v{r+e}")
            for e in range(4): a(f"v_fma_f32 v{t+e}, v{t+e}, s{sKT}, v7")
            for e in range(4): a(f"v_mul_f32 v{t+e}, v{t+e}, v{r+e}")
            for e in range(4): a(f"v_exp_f32 v{t+e}, v{t+e}")
            a(f"s_add_u32 s{sT1}, s{sN}, {b}")
            for e in range(4): a(f"v_add_f32 v{t+e}, 1.0, v{t+e}")
            a(f"s_and_b32 s{sT2}, s{sT1}, 1")
            for e in range(4): a(f"v_rcp_f32 v{t+e}, v{t+e}")
            a(f"s_lshr_b32 s{sT1}, s{sT1}, 1")
            a(f"s_lshl_b32 s{sT1}, s{sT1}, 13")
            for e in range(4): a(f"v_mul_f32 v{r+e}, v{r+e}, v{t+e}")
            a(f"s_or_b32 s{sT1}, s{sT1}, s{sT2}")
            a(f"s_lshl_b32 s{sT1}, s{sT1}, 3")
            a(f"v_cvt_pk_bf16_f32 v{w}, v{r}, v{r+1}")
            a(f"v_cvt_pk_bf16_f32 v{w+1}, v{r+2}, v{r+3}")
            a(f"buffer_store_dwordx2 v[{w}:{w+1}], v{vT2}, s[{S_WS}:{S_WS+3}], s{sT1} offen offset:{i*256}")
    a(f"s_cmp_ge_u32 s{sWave}, 4")
    a("s_cbranch_scc1 L1g_nold")
    a(f"s_waitcnt vmcnt({NS*11})")
    for b in range(7):
        for h in range(2):
            d = ACC + b * 4 + 2 * h
            a(f"v_lshlrev_b32 v{d}, 16, v{76+2*b+h}")
            a(f"v_and_b32 v{d+1}, 0xffff0000, v{76+2*b+h}")
    for i in range(1, 4):
        for n in range(28):
            a(f"v_mov_b32 v{ACC+i*28+n}, v{ACC+n}")
    core.fs = 0; core.first(pg, True); core.run(pg, 32, True)
    g_epi(0)
    a("s_branch L1_fin")
    a.label("L1g_nold")
    for i in range(MT * MW * 4):
        a(f"v_mov_b32 v{ACC+i}, 0")
    core.fs = 0; core.first(pg, False); core.run(pg, 32, False)
    g_epi(1)
    a.label("L1_fin")
    stamp_end(a, ST, 3, 1, sWave, 8, sWSp, S_AUX, "L1_st")
    a.label("L1_end")
    a("s_endpgm")
    return dict(name=name, grid=256, block=512, lds=135168, vgpr=232)


def gen_k2(a):
    name = "k2_kernel"
    kernel_header(a, name)
    S_WS = 8
    a("s_cmp_ge_u32 s2, 256")
    a("s_cbranch_scc1 L2_end")
    a(f"s_load_dwordx2 s[4:5], s[0:1], {A_WS}")
    stamp_begin(a, 40)
    a("v_lshrrev_b32 v2, 6, v0")
    a("v_and_b32 v1, 63, v0")
    a("v_readfirstlane_b32 s20, v2")
    a("v_lshlrev_b32 v3, 4, v1")
    a("s_and_b32 s21, s2, 31")
    a("s_lshr_b32 s22, s2, 5")
    a("s_lshl_b32 s22, s22, 2")
    a("s_add_u32 s22, s22, s20")
    a("s_mul_i32 s23, s21, 12288")
    a(f"s_add_u32 s23, s23, {KV_OFF}")
    a("s_lshl_b32 s24, s21, 7")
    a("s_lshl_b32 s25, s22, 2")
    a("s_add_u32 s24, s24, s25")
    a("s_lshl_b32 s24, s24, 11")
    a(f"s_add_u32 s24, s24, {PQ_OFF}")
    a("v_and_b32 v4, 15, v1")
    a("v_lshlrev_b32 v5, 3, v4")
    a("s_lshl_b32 s25, s22, 9")
    a(f"s_add_u32 s25, s25, {G_OFF}")
    a("s_waitcnt lgkmcnt(0)")
    srd(a, S_WS, 4, WS_BYTES)
    for t in range(12):
        if t % 4 == 0 and t: a("s_add_u32 s23, s23, 4096")
        a(f"buffer_load_dwordx4 v[{16+4*t}:{19+4*t}], v3, s[8:11], s23 offen offset:{(t%4)*1024}")
    for n in range(8):
        if n == 4: a("s_add_u32 s24, s24, 4096")
        a(f"buffer_load_dwordx4 v[{64+4*n}:{67+4*n}], v3, s[8:11], s24 offen offset:{(n%4)*1024}")
    for i in range(4):
        a(f"buffer_load_dword v{8+i}, v5, s[8:11], s25 offen offset:{i*128}")
    a("v_lshrrev_b32 v6, 4, v1")
    a("v_lshlrev_b32 v6, 15, v6")
    a("v_lshl_add_u32 v6, v4, 4, v6")
    a("s_lshl_b32 s26, s21, 17")
    a("s_lshl_b32 s27, s22, 10")
    a("s_add_u32 s26, s26, s27")
    a(f"s_add_u32 s26, s26, {OP_OFF}")
    a("s_waitcnt vmcnt(12)")
    for db in range(3):
        for sg in range(2):
            o = 96 + (db * 2 + sg) * 4
            for h in range(2):
                fk = 2 * sg + h
                t = fk * 2 + db if db < 2 else 8 + fk
                a(f"v_cvt_pk_bf16_f32 v{o+2*h}, v{16+4*t}, v{17+4*t}")
                a(f"v_cvt_pk_bf16_f32 v{o+2*h+1}, v{18+4*t}, v{19+4*t}")
    a("s_waitcnt vmcnt(4)")
    for sg in range(2):
        for i in range(4):
            for db in range(3):
                d = 16 + (i * 3 + db) * 4; o = 96 + (db * 2 + sg) * 4; b = 64 + (i * 2 + sg) * 4
                c = f"v[{d}:{d+3}]" if sg else "0"
                a(f"v_mfma_f32_16x16x32_bf16 v[{d}:{d+3}], v[{o}:{o+3}], v[{b}:{b+3}], {c}")
    a("s_waitcnt vmcnt(0)")
    a("s_nop 7")
    for i in range(4):
        a(f"v_add_f32 v{12+i}, 0x358637bd, v{16+(i*3+2)*4}")
    for i in range(4):
        a(f"v_rcp_f32 v{12+i}, v{12+i}")
    a("s_nop 0")
    for i in range(4):
        a(f"v_mul_f32 v{12+i}, v{12+i}, v{8+i}")
    for i in range(4):
        d = 16 + i * 12
        for n in range(8):
            a(f"v_mul_f32 v{d+n}, v{d+n}, v{12+i}")
        for n in range(4):
            a(f"v_cvt_pk_bf16_f32 v{64+4*i+n}, v{d+2*n}, v{d+2*n+1}")
        a(f"buffer_store_dwordx4 v[{64+4*i}:{67+4*i}], v6, s[8:11], s26 offen offset:{i*256}")
    stamp_end(a, 40, 2, 2, 20, 16, 4, 12, "L2_st")
    a.label("L2_end")
    a("s_endpgm")
    return dict(name=name, grid=256, block=256, lds=0, vgpr=120)

def gen_k3(a):
    name = "k3_kernel"
    kernel_header(a, name)
    S_U, S_W2, S_OP, S_WO, S_WS, S_OUT = 8, 12, 16, 20, 24, 56
    sWave, sW1024, sN, sRho, sKT, sKW, sT1, sT2, sCnt, sTD, sTS = 28, 29, 30, 31, 32, 33, 34, 35, 36, 37, 38
    sWSp = 44
    ST = 48
    vLane, vT1, vT2, vq, vr_, vc = 1, 2, 3, 4, 5, 6
    NS, TB, SB = 4, 16384, 32768
    vD1T = [8, 9, 10, 11]; vD1W = [12, 13, 14, 15]; vD2T = [16, 17, 18, 19]; vD2W = [20, 21, 22, 23]
    vR1T = [24, 25]; vR1E = [26, 27]; vR1O = [28, 29]; vR2T = [30, 31]; vR2E = [32, 33]; vR2O = [34, 35]
    vOMG = 36; vB2 = 40
    vF = [44, 76]; ACC = 108
    a("s_cmp_ge_u32 s2, 256")
    a("s_cbranch_scc1 L3_end")
    a(f"s_load_dwordx2 s[{sWSp}:{sWSp+1}], s[0:1], {A_WS}")
    a(f"s_load_dwordx4 s[4:7], s[0:1], {A_W2}")
    a(f"s_load_dwordx2 s[40:41], s[0:1], {A_WO}")
    a(f"s_load_dwordx2 s[42:43], s[0:1], {A_OUT}")
    stamp_begin(a, ST)
    a(f"v_lshrrev_b32 v{vT1}, 6, v0")
    a(f"v_and_b32 v{vLane}, 63, v0")
    a(f"v_readfirstlane_b32 s{sWave}, v{vT1}")
    lane_bits(a, vLane, vq, vr_, vc)
    a(f"s_lshr_b32 s{sT2}, s2, 3")
    a(f"s_bfe_u32 s{sTD}, s2, 0x10001")
    a(f"s_lshl_b32 s{sTD}, s{sTD}, 2")
    a(f"s_and_b32 s3, s{sT2}, 3")
    a(f"s_add_u32 s{sTD}, s{sTD}, s3")
    a(f"s_bfe_u32 s{sTS}, s2, 0x10002")
    a(f"s_lshl_b32 s{sTS}, s{sTS}, 3")
    a(f"s_lshr_b32 s{sRho}, s{sT2}, 2")
    a(f"s_add_u32 s{sTS}, s{sTS}, s{sRho}")
    a(f"s_add_u32 s{sRho}, s{sRho}, s3")
    a(f"s_and_b32 s{sW1024}, s{sWave}, 3")
    a(f"s_lshl_b32 s{sW1024}, s{sW1024}, 10")
    a(f"s_and_b32 s{sN}, s2, 1")
    a(f"s_mul_i32 s{sN}, s{sN}, 36")
    a("s_waitcnt lgkmcnt(0)")
    srd(a, S_U, sWSp, 448 * 16384, U_OFF)
    srd(a, S_W2, 4, 3584 * 2048 * 2)
    srd(a, S_OP, sWSp, 4 * MB, OP_OFF)
    srd(a, S_WO, 40, 1024 * 1024 * 2)
    srd(a, S_WS, sWSp, WS_BYTES)
    srd(a, S_OUT, 6, 4096)
    a(f"v_lshlrev_b32 v{vT1}, 4, v{vLane}")
    for (vD, R16, sTile) in ((vD1T, 16384, sTD), (vD2T, 32768, sTS)):
        a(f"s_bfe_u32 s{sT1}, s{sWave}, 0x10001")
        a(f"s_mul_i32 s{sT1}, s{sT1}, {R16}")
        a(f"s_and_b32 s{sT2}, s{sWave}, 1")
        a(f"s_lshl_b32 s{sT2}, s{sT2}, 10")
        a(f"s_add_u32 s{sT1}, s{sT1}, s{sT2}")
        a(f"s_lshl_b32 s{sT2}, s{sTile}, 11")
        a(f"s_add_u32 s{sT1}, s{sT1}, s{sT2}")
        for j, v in enumerate(vD):
            a(f"s_add_u32 s{sT2}, s{sT1}, {j*2*R16}")
            a(f"v_add_u32 v{v}, s{sT2}, v{vT1}")
    for (vD, LD, sTile) in ((vD1W, 4096, sTS), (vD2W, 2048, sTD)):
        a(f"v_bfe_u32 v{vT1}, v{vLane}, 2, 3")
        a(f"v_mul_u32_u24 v{vT1}, {LD}, v{vT1}")
        a(f"v_lshrrev_b32 v{vT2}, 5, v{vLane}")
        a(f"v_lshl_add_u32 v{vT1}, v{vT2}, 6, v{vT1}")
        a(f"v_lshl_add_u32 v{vT1}, v{vc}, 4, v{vT1}")
        a(f"v_and_b32 v{vT2}, 16, v{vLane}")
        a(f"v_lshlrev_b32 v{vT2}, 1, v{vT2}")
        a(f"v_xor_b32 v{vT1}, v{vT2}, v{vT1}")
        a(f"s_mul_i32 s{sT1}, s{sW1024}, {8*LD//1024}")
        a(f"s_lshl_b32 s{sT2}, s{sTile}, 8")
        a(f"s_add_u32 s{sT1}, s{sT1}, s{sT2}")
        for j, v in enumerate(vD):
            a(f"s_add_u32 s{sT2}, s{sT1}, {(j&1)*32*LD + (j>>1)*128}")
            a(f"v_add_u32 v{v}, s{sT2}, v{vT1}")
    def rdT(vR): return lambda slot: [(vR[slot // 2], (slot % 2) * SB + i * 256) for i in range(4)]
    def rdW(vE, vO): return lambda slot: [((vO if b & 1 else vE)[slot // 2], (slot % 2) * SB + (b >> 1) * 512, (slot % 2) * SB + (b >> 1) * 512 + 2048) for b in range(4)]
    def mf1(fT, fW):
        return [f"v_mfma_f32_16x16x32_bf16 v[{ACC+(i*4+j)*4}:{ACC+(i*4+j)*4+3}], v[{fT(i)}:{fT(i)+3}], v[{fW(j)}:{fW(j)+3}], v[{ACC+(i*4+j)*4}:{ACC+(i*4+j)*4+3}]" for i in range(4) for j in range(4)]
    def mf2(fT, fW):
        return [f"v_mfma_f32_16x16x32_bf16 v[{ACC+(i*4+j)*4}:{ACC+(i*4+j)*4+3}], v[{fW(i)}:{fW(i)+3}], v[{fT(j)}:{fT(j)+3}], v[{ACC+(i*4+j)*4}:{ACC+(i*4+j)*4+3}]" for j in range(4) for i in range(4)]
    p1 = Part(srdT=S_U, srdW=S_W2, vDT=vD1T, vDW=vD1W, stT=8 * 16384, stW=64 * 4096, rdT=rdT(vR1T), rdW=rdW(vR1E, vR1O), mf=mf1)
    p2 = Part(srdT=S_OP, srdW=S_WO, vDT=vD2T, vDW=vD2W, stT=8 * 32768, stW=64 * 2048, rdT=rdT(vR2T), rdW=rdW(vR2E, vR2O), mf=mf2)
    core = Core(a, "k3", NS, SB, TB, 4, 4, vF, sW1024, sN, sRho, sKT, sKW, sT1, sT2, sCnt)
    a(f"v_and_b32 v{vT1}, 15, v{vLane}")
    a(f"s_lshl_b32 s{sT1}, s{sTS}, 7")
    a(f"s_and_b32 s{sT2}, s{sWave}, 1")
    a(f"s_lshl_b32 s{sT2}, s{sT2}, 6")
    a(f"s_add_u32 s{sT1}, s{sT1}, s{sT2}")
    a(f"v_add_u32 v7, s{sT1}, v{vT1}")
    a(f"v_lshlrev_b32 v{vT1}, 3, v7")
    a(f"v_lshlrev_b32 v{vT2}, 1, v7")
    a(f"s_mov_b32 s{sT1}, {G_OFF+4}")
    for j in range(4):
        a(f"buffer_load_dword v{vOMG+j}, v{vT1}, s[{S_WS}:{S_WS+3}], s{sT1} offen offset:{j*128}")
        a(f"buffer_load_ushort v{vB2+j}, v{vT2}, s[{S_OUT}:{S_OUT+3}], 0 offen offset:{j*32}")
    a(f"s_cmp_ge_u32 s{sWave}, 4")
    a("s_cbranch_scc1 L3_nold0")
    core.prologue(p1, True)
    a.label("L3_nold0")
    a(f"v_and_b32 v{vT1}, 15, v{vLane}")
    a(f"v_lshlrev_b32 v{vT1}, 4, v{vT1}")
    a(f"v_lshl_add_u32 v{vT1}, v{vq}, 11, v{vT1}")
    a(f"s_lshr_b32 s{sT1}, s{sWave}, 2")
    a(f"s_lshl_b32 s{sT1}, s{sT1}, 13")
    a(f"v_add_u32 v{vT1}, s{sT1}, v{vT1}")
    a(f"s_bfe_u32 s{sKT}, s{sWave}, 0x10001")
    a(f"s_and_b32 s{sKW}, s{sWave}, 1")
    for vR, sel in ((vR1T, sKT), (vR2T, sKW)):
        a(f"s_lshl_b32 s{sT2}, s{sel}, 10")
        a(f"v_add_u32 v{vR[0]}, s{sT2}, v{vT1}")
        a(f"v_add_u32 v{vR[1]}, {2*SB}, v{vR[0]}")
    a(f"v_lshrrev_b32 v{vT1}, 1, v{vq}")
    a(f"v_lshlrev_b32 v{vT1}, 10, v{vT1}")
    a(f"v_and_b32 v{vT2}, 1, v{vq}")
    a(f"v_mul_u32_u24 v{vT2}, 288, v{vT2}")
    a(f"v_add_u32 v{vT1}, v{vT2}, v{vT1}")
    a(f"v_lshl_add_u32 v{vT1}, v{vr_}, 6, v{vT1}")
    a(f"v_lshl_add_u32 v{vT1}, v{vc}, 3, v{vT1}")
    a(f"s_lshr_b32 s{sT1}, s{sT1}, 1")
    a(f"s_add_u32 s{sT1}, s{sT1}, {TB}")
    a(f"v_add_u32 v{vT1}, s{sT1}, v{vT1}")
    for vE, vO, sel in ((vR1E, vR1O, sKW), (vR2E, vR2O, sKT)):
        a(f"s_lshl_b32 s{sT2}, s{sel}, 13")
        a(f"v_add_u32 v{vE[0]}, s{sT2}, v{vT1}")
        a(f"v_add_u32 v{vE[1]}, {2*SB}, v{vE[0]}")
        a(f"v_xor_b32 v{vO[0]}, 32, v{vE[0]}")
        a(f"v_xor_b32 v{vO[1]}, 32, v{vE[1]}")
    for i in range(64):
        a(f"v_mov_b32 v{ACC+i}, 0")

    def epi(role, kg):
        tag = f"{role}{kg}"
        stamp_mid(a, ST + 2)
        keep = (0, 1) if kg == 0 else (2, 3)
        send = (2, 3) if kg == 0 else (0, 1)
        a(f"s_lshl_b32 s{sT1}, s{sW1024}, 4")
        a(f"v_lshlrev_b32 v{vT1}, 4, v{vLane}")
        a(f"v_add_u32 v{vT2}, s{sT1}, v{vT1}")
        srd(a, S_OUT, 42, 2048 * 1024 * 2)
        a(f"s_lshl_b32 s{sKT}, s2, 3")
        a(f"s_add_u32 s{sKT}, s{sKT}, s{sWave}")
        a(f"s_lshl_b32 s{sKT}, s{sKT}, 12")
        a(f"s_add_u32 s{sKT}, s{sKT}, {XCH_OFF}")
        a(f"s_xor_b32 s{sKW}, s{sKT}, {8*4096}")
        a("s_barrier")
        for n in range(8):
            r = ACC + send[0] * 16 + 4 * n
            a(f"ds_write_b128 v{vT2}, v[{r}:{r+3}] offset:{kg*8192 + n*1024}")
        a("s_waitcnt lgkmcnt(0)")
        a("s_barrier")
        for n in range(8):
            a(f"ds_read_b128 v[{44+4*n}:{47+4*n}], v{vT2} offset:{(1-kg)*8192 + n*1024}")
        K0 = ACC + keep[0] * 16
        jk = (0, 2) if role == 0 else (1, 3)
        js = (1, 3) if role == 0 else (0, 2)
        order = [(ii, j) for j in js for ii in range(2)] + [(ii, j) for j in jk for ii in range(2)]
        a("s_waitcnt lgkmcnt(0)")
        cnt = 0
        for (ii, j) in order:
            n = ii * 4 + j; r = K0 + 4 * n
            for e in range(4): a(f"v_add_f32 v{r+e}, v{r+e}, v{44+4*n+e}")
            if role == 0:
                for e in range(4): a(f"v_mul_f32 v{r+e}, v{r+e}, v{vOMG+j}")
            if j in js:
                a(f"buffer_store_dwordx4 v[{r}:{r+3}], v{vT1}, s[{S_WS}:{S_WS+3}], s{sKT} offen offset:{cnt*1024} sc1")
                cnt += 1
        a(f"v_lshlrev_b32 v{vT2}, 11, v7")
        a(f"v_and_b32 v8, 1, v{vq}")
        a(f"v_lshl_add_u32 v{vT2}, v8, 5, v{vT2}")
        a(f"v_lshrrev_b32 v8, 1, v{vq}")
        a(f"v_lshl_add_u32 v{vT2}, v8, 4, v{vT2}")
        a(f"s_lshl_b32 s{sT1}, s{sTD}, 8")
        a(f"s_bfe_u32 s{sT2}, s{sWave}, 0x10001")
        a(f"s_lshl_b32 s{sT2}, s{sT2}, 7")
        a(f"s_add_u32 s{sT1}, s{sT1}, s{sT2}")
        a(f"s_add_u32 s{sN}, s{sT1}, {kg*64}")
        a(f"s_lshl_b32 s{sT1}, s2, 7")
        a(f"s_add_u32 s{sT1}, s{sT1}, {FLAG_OFF}")
        a(f"s_xor_b32 s{sT2}, s{sT1}, 128")
        a("v_mov_b32 v8, 0")
        a("v_mov_b32 v9, 1")
        a("s_waitcnt vmcnt(0)")
        a("s_barrier")
        if kg == 0:
            a(f"s_cmp_lg_u32 s{sWave}, 0")
            a(f"s_cbranch_scc1 L3_nf{tag}")
            a("s_mov_b64 exec, 1")
            a(f"buffer_store_dword v9, v8, s[{S_WS}:{S_WS+3}], s{sT1} offen sc1")
            a("s_mov_b64 exec, -1")
            a.label(f"L3_nf{tag}")
        stamp_mid(a, ST + 4)
        a.label(f"L3_poll{tag}")
        a(f"buffer_load_dword v9, v8, s[{S_WS}:{S_WS+3}], s{sT2} offen sc1")
        a("s_waitcnt vmcnt(0)")
        a(f"v_readfirstlane_b32 s{sCnt}, v9")
        a(f"s_cmp_eq_u32 s{sCnt}, 1")
        a(f"s_cbranch_scc1 L3_go{tag}")
        a("s_sleep 2")
        a(f"s_branch L3_poll{tag}")
        a.label(f"L3_go{tag}")
        for n in range(4):
            a(f"buffer_load_dwordx4 v[{44+4*n}:{47+4*n}], v{vT1}, s[{S_WS}:{S_WS+3}], s{sKW} offen offset:{n*1024} sc1")
        for jn, j in enumerate(jk):
            a(f"s_waitcnt vmcnt({2 if jn == 0 else 1})" if jn == 0 else "s_waitcnt vmcnt(1)")
            o = 76 + 4 * jn
            for ii in range(2):
                r = K0 + 4 * (ii * 4 + j); t = 44 + 4 * (jn * 2 + ii)
                for e in range(4): a(f"v_add_f32 v{r+e}, v{r+e}, v{t+e}")
                a(f"v_cvt_pk_bf16_f32 v{o+2*ii}, v{r}, v{r+1}")
                a(f"v_cvt_pk_bf16_f32 v{o+2*ii+1}, v{r+2}, v{r+3}")
            a("s_nop 1")
            a(f"v_permlane16_swap_b32 v{o}, v{o+2}")
            a(f"v_permlane16_swap_b32 v{o+1}, v{o+3}")
            a(f"s_add_u32 s{sT1}, s{sN}, {j*16*2048}")
            a(f"buffer_store_dwordx4 v[{o}:{o+3}], v{vT2}, s[{S_OUT}:{S_OUT+3}], s{sT1} offen")
        a("s_branch L3_fin")

    a("s_bitcmp1_b32 s2, 0")
    a("s_cbranch_scc1 L3_B")
    a(f"s_cmp_ge_u32 s{sWave}, 4")
    a("s_cbranch_scc1 L3_A1")
    for kg in range(2):
        if kg: a.label("L3_A1")
        core.fs = 0; core.first(p1, kg == 0); core.run(p1, 36, kg == 0)
        if kg: a("s_waitcnt vmcnt(0)")
        epi(0, kg)
    a.label("L3_B")
    a(f"s_cmp_ge_u32 s{sWave}, 4")
    a("s_cbranch_scc1 L3_B1")
    for kg in range(2):
        if kg: a.label("L3_B1")
        core.fs = 0; core.first(p1, kg == 0)
        sl = core.run(p1, 20, kg == 0, nxt_part=p2)
        if kg: a("s_waitcnt vmcnt(0)")
        else:
            for j in range(4):
                a(f"v_lshlrev_b32 v{vB2+j}, 16, v{vB2+j}")
                a(f"v_mul_f32 v{vB2+j}, v{vB2+j}, v{vOMG+j}")
        a("s_nop 7")
        for i in range(4):
            for j in range(4):
                for e in range(4):
                    r = ACC + (i * 4 + j) * 4 + e
                    a(f"v_fma_f32 v{r}, v{r}, v{vOMG+j}, v{vB2+j}" if kg == 0 else f"v_mul_f32 v{r}, v{r}, v{vOMG+j}")
        core.run(p2, 16, kg == 0, slot0=sl)
        epi(1, kg)
    a.label("L3_fin")
    stamp_end(a, ST, 4, 3, sWave, 8, sWSp, S_U, "L3_st")
    a.label("L3_end")
    a("s_endpgm")
    return dict(name=name, grid=256, block=512, lds=131072, vgpr=172)

KERNELS = [gen_k0, gen_k1, gen_k2, gen_k3]

def build(kernels=None):
    a = Asm()
    infos = []
    for g in (kernels or KERNELS):
        infos.append(g(a))
    ref = open(f"cdna_kernels/{NAME}.s.ref").read().split("\n")
    hdr = [l for l in ref if l.startswith(";") and "@launch" not in l and "Override" not in l and "grid=ceil" not in l]
    hdr = hdr[:14]
    txt = "\n".join(hdr) + "\n"
    for i in infos:
        txt += f"; @launch kernel={i['name']} grid=({i['grid']},1,1) block=({i['block']},1,1) lds={i['lds']}\n"
    txt += '.amdgcn_target "amdgcn-amd-amdhsa--gfx950"\n'
    txt += a.text()
    for i in infos:
        v = (i['vgpr'] + 3) // 4 * 4
        txt += kernel_desc(i['name'], v, v)
    return txt

if __name__ == "__main__":
    STAMPS = "--stamps" in sys.argv
    out = sys.argv[1] if len(sys.argv) > 1 and not sys.argv[1].startswith("--") else f"cdna_kernels/{NAME}.s"
    open(out, "w").write(build())
```

```python
import sys
from asmlib import *

NAME = "gated_mix__linear_kernel_hedgehog__mixer_token_mlp__prompt"
MB = 1 << 20
HT_OFF = 0
G_OFF = 4 * MB
U_OFF = 8 * MB
PQ_OFF = 16 * MB
KV_OFF = 24 * MB
OP_OFF = 28 * MB
XCH_OFF = 32 * MB
FLAG_OFF = 40 * MB
STAMP_OFF = 48 * MB
WS_BYTES = 268435456
A_X, A_WQKV, A_WPHI, A_WO, A_BX, A_W1, A_B1, A_W2, A_B2, A_GW, A_OUT, A_DBG, A_WS = [8 * i for i in range(13)]
STAMPS = False
STAMPWAVE = 0
PF_W2 = 0
PF_CODE = 1
PF_W1 = 0
FUSE = 1
NA = 32
NSTAMP = [13]
SINGLE = 0
CYC = 60
WT = 'sc1'

def log2(x):
    l = x.bit_length() - 1
    assert 1 << l == x, x
    return l

def srd(a, s, base, nbytes, off=0):
    if off:
        a(f"s_add_u32 s{s}, s{base}, {off}")
        a(f"s_addc_u32 s{s+1}, s{base+1}, 0")
    else:
        a(f"s_mov_b32 s{s}, s{base}")
        a(f"s_mov_b32 s{s+1}, s{base+1}")
    a(f"s_mov_b32 s{s+2}, {nbytes}")
    a(f"s_mov_b32 s{s+3}, 0x20000")

def rnd_bf16(a, v, tmp=None):
    a(f"v_cvt_pk_bf16_f32 v{v}, v{v}, v{v}")
    a(f"v_and_b32 v{v}, 0xffff0000, v{v}")

SB0 = 64
def stamp(a, i):
    if STAMPS: a(f"s_memrealtime s[{SB0+2*i}:{SB0+2*i+1}]")
def stamp_cyc(a, s):
    if STAMPS: a(f"s_memtime s[{s}:{s+1}]")
def stamp_end(a, n, kidx, swave, v0, wsbase, sS, label):
    if not STAMPS: return
    a("s_waitcnt vmcnt(0)")
    stamp(a, n - 1)
    a(f"s_cmp_lg_u32 s{swave}, STAMPWAVE")
    a(f"s_cbranch_scc1 {label}")
    a("s_waitcnt lgkmcnt(0)")
    srd(a, sS, wsbase, 64 * 1024, STAMP_OFF + kidx * 65536)
    a(f"s_lshl_b32 s3, s2, 7")
    a(f"v_mov_b32 v{v0+2}, s3")
    a("s_mov_b64 exec, 1")
    for i in range(n + 2):
        src = SB0 + 2 * i if i < n else CYC + 2 * (i - n)
        a(f"v_mov_b32 v{v0}, s{src}")
        a(f"v_mov_b32 v{v0+1}, s{src+1}")
        a(f"buffer_store_dwordx2 v[{v0}:{v0+1}], v{v0+2}, s[{sS}:{sS+3}], 0 offen offset:{8*i if i < n else 112 + 8*(i-n)}")
        a("s_nop 1")
    a.label(label)

def gen_k0(a):
    name = "k0_kernel"
    kernel_header(a, name)
    a("s_cmp_ge_u32 s2, 256")
    a("s_cbranch_scc1 L0_end")
    a(f"s_load_dwordx2 s[4:5], s[0:1], {A_X}")
    a(f"s_load_dwordx2 s[6:7], s[0:1], {A_GW}")
    a(f"s_load_dwordx2 s[24:25], s[0:1], {A_WS}")
    stamp(a, 0)
    stamp_cyc(a, CYC)
    stamp_cyc(a, CYC + 2)
    a("v_lshrrev_b32 v2, 6, v0")
    a("v_and_b32 v1, 63, v0")
    a("v_readfirstlane_b32 s20, v2")
    a("v_lshlrev_b32 v3, 3, v0")
    a("v_lshlrev_b32 v4, 4, v1")
    a("s_lshl_b32 s21, s2, 14")
    a("s_lshl_b32 s22, s20, 12")
    a("s_add_u32 s22, s22, s21")
    a("s_waitcnt lgkmcnt(0)")
    srd(a, 8, 4, 2048 * 1024 * 2)
    srd(a, 12, 6, 2048)
    srd(a, 16, 24, WS_BYTES)
    a("buffer_load_dwordx4 v[16:19], v4, s[8:11], s22 offen")
    a("buffer_load_dwordx4 v[20:23], v4, s[8:11], s22 offen offset:1024")
    a("buffer_load_dwordx4 v[24:27], v4, s[8:11], s22 offen offset:2048")
    a("buffer_load_dwordx4 v[28:31], v4, s[8:11], s22 offen offset:3072")
    a("buffer_load_dwordx4 v[32:35], v4, s[12:15], 0 offen")
    a("buffer_load_dwordx4 v[36:39], v4, s[12:15], 0 offen offset:1024")
    for r in range(8):
        if r % 2 == 0:
            a(f"s_add_u32 s23, s21, {r*2048}")
        a(f"buffer_load_dwordx2 v[{40+2*r}:{41+2*r}], v3, s[8:11], s23 offen offset:{(r%2)*2048}")
    for i in range(4):
        a(f"v_mov_b32 v{8+i}, 0")
    a("v_lshlrev_b32 v5, 4, v0")
    a("s_mul_i32 s23, s2, 1536")
    a(f"s_add_u32 s23, s23, {KV_OFF}")
    a("v_cmp_gt_u32 vcc, 96, v0")
    a("s_and_saveexec_b64 s[26:27], vcc")
    a("s_cbranch_execz L0_nz")
    a("buffer_store_dwordx4 v[8:11], v5, s[16:19], s23 offen")
    a("s_lshl_b32 s23, s2, 8")
    a(f"s_add_u32 s23, s23, {FLAG_OFF}")
    a("v_cmp_gt_u32 vcc, 16, v0")
    a("s_and_b64 exec, exec, vcc")
    a("s_cbranch_execz L0_nz")
    a("buffer_store_dwordx4 v[8:11], v5, s[16:19], s23 offen")
    a.label("L0_nz")
    a("s_mov_b64 exec, s[26:27]")
    a("s_mov_b32 s28, 0x3f803f80")
    a("v_mov_b32 v12, 0\nv_mov_b32 v13, 0\nv_mov_b32 v14, 0\nv_mov_b32 v15, 0")
    a("s_waitcnt vmcnt(8)")
    for i in range(8):
        a(f"v_dot2_f32_bf16 v12, v{16+i}, s28, v12")
        a(f"v_dot2_f32_bf16 v13, v{16+i}, v{32+i}, v13")
        a(f"v_dot2_f32_bf16 v14, v{24+i}, s28, v14")
        a(f"v_dot2_f32_bf16 v15, v{24+i}, v{32+i}, v15")
    def wave_reduce(regs):
        a("s_nop 2")
        for m in ("row_shr:1", "row_shr:2", "row_shr:4", "row_shr:8"):
            for r in regs:
                a(f"v_add_f32_dpp v{r}, v{r}, v{r} {m} row_mask:0xf bank_mask:0xf bound_ctrl:0")
            if len(regs) < 3: a("s_nop 1")
        for m, mask in (("row_bcast:15", "0xa"), ("row_bcast:31", "0xc")):
            for r in regs:
                a(f"v_add_f32_dpp v{r}, v{r}, v{r} {m} row_mask:{mask} bank_mask:0xf")
            if len(regs) < 3: a("s_nop 1")
        a("s_nop 0")
    wave_reduce([12, 13, 14, 15])
    a("v_readlane_b32 s30, v12, 63")
    a("v_readlane_b32 s31, v13, 63")
    a("v_readlane_b32 s32, v14, 63")
    a("v_readlane_b32 s33, v15, 63")
    a("s_mov_b32 s29, 0x3a800000")
    a("v_mov_b32 v6, s29")
    a("v_mul_f32 v8, s30, v6")
    a("v_mul_f32 v9, s32, v6")
    a("v_mov_b32 v12, 0\nv_mov_b32 v14, 0")
    for i in range(8):
        for base, mean, acc, t in ((16, 8, 12, 56), (24, 9, 14, 58)):
            a(f"v_lshlrev_b32 v{t}, 16, v{base+i}")
            a(f"v_and_b32 v{t+1}, 0xffff0000, v{base+i}")
            a(f"v_sub_f32 v{t}, v{t}, v{mean}")
            a(f"v_sub_f32 v{t+1}, v{t+1}, v{mean}")
            a(f"v_fmac_f32 v{acc}, v{t}, v{t}")
            a(f"v_fmac_f32 v{acc}, v{t+1}, v{t+1}")
    wave_reduce([12, 14])
    a("v_readlane_b32 s34, v12, 63")
    a("v_readlane_b32 s35, v14, 63")
    a("v_cmp_eq_u32 vcc, 1, v1")
    a("v_mov_b32 v10, s34\nv_mov_b32 v11, s35")
    a("v_mov_b32 v12, s31\nv_mov_b32 v13, s33")
    a("v_cndmask_b32 v10, v10, v11, vcc")
    a("v_cndmask_b32 v8, v8, v9, vcc")
    a("v_cndmask_b32 v12, v12, v13, vcc")
    a("v_mul_f32 v10, v10, v6")
    rnd_bf16(a, 10)
    rnd_bf16(a, 8)
    rnd_bf16(a, 12)
    a("v_add_f32 v10, 0x3727c5ac, v10")
    a("v_mul_f32 v12, 0xbfb8aa3b, v12")
    rnd_bf16(a, 10)
    a("v_exp_f32 v12, v12")
    a("v_sqrt_f32 v10, v10")
    a("s_nop 0")
    a("v_add_f32 v12, 1.0, v12")
    rnd_bf16(a, 10)
    a("v_rcp_f32 v12, v12")
    a("v_rcp_f32 v9, v10")
    a("s_nop 0")
    rnd_bf16(a, 12)
    a("v_sub_f32 v13, 1.0, v12")
    rnd_bf16(a, 13)
    a("s_lshl_b32 s23, s20, 4")
    a("v_lshlrev_b32 v5, 3, v1")
    a("v_add_u32 v7, s23, v5")
    a("s_lshl_b32 s22, s2, 6")
    a(f"s_add_u32 s22, s22, {G_OFF}")
    a("s_mov_b64 exec, 3")
    a("ds_write_b64 v7, v[8:9]")
    a("buffer_store_dwordx2 v[12:13], v7, s[16:19], s22 offen")
    a("s_mov_b64 exec, -1")
    a("v_mov_b32 v5, 0")
    a("s_waitcnt lgkmcnt(0)")
    a("s_barrier")
    for i in range(4):
        a(f"ds_read_b128 v[{16+4*i}:{19+4*i}], v5 offset:{16*i}")
    a("s_waitcnt vmcnt(0) lgkmcnt(0)")
    for r in range(8):
        b = 64 + 4 * r
        for k in range(2):
            a(f"v_lshlrev_b32 v{b+2*k}, 16, v{40+2*r+k}")
            a(f"v_and_b32 v{b+2*k+1}, 0xffff0000, v{40+2*r+k}")
        for cidx in range(4):
            a(f"v_sub_f32 v{b+cidx}, v{b+cidx}, v{16+2*r}")
        for k in range(2):
            a(f"v_cvt_pk_bf16_f32 v{56+k}, v{b+2*k}, v{b+2*k+1}")
        for k in range(2):
            a(f"v_lshlrev_b32 v{b+2*k}, 16, v{56+k}")
            a(f"v_and_b32 v{b+2*k+1}, 0xffff0000, v{56+k}")
        for cidx in range(4):
            a(f"v_mul_f32 v{b+cidx}, v{b+cidx}, v{17+2*r}")
    a("v_lshlrev_b32 v5, 6, v0")
    a("s_lshl_b32 s23, s2, 14")
    if HT_OFF: a(f"s_add_u32 s23, s23, {HT_OFF}")
    for cidx in range(4):
        o = 96 + 4 * cidx
        for p in range(4):
            a(f"v_cvt_pk_bf16_f32 v{o+p}, v{64 + 8*p + cidx}, v{64 + 8*p + 4 + cidx}")
        a(f"buffer_store_dwordx4 v[{o}:{o+3}], v5, s[16:19], s23 offen offset:{16*cidx}")
    stamp_end(a, 2, 0, 20, 16, 24, 16, "L0_st")
    a.label("L0_end")
    a("s_endpgm")
    return dict(name=name, grid=256, block=256, lds=64, vgpr=112)


class Part:
    def __init__(self, **kw): self.__dict__.update(kw)

class Core:
    def __init__(self, a, tag, NS, SB, TB, MT, MW, vF, sW1024, sN, sRho, sKT, sKW, sT1, sT2, sCnt):
        self.__dict__.update(locals()); del self.__dict__['self']
        self.fs = 0
    def rot(self, p):
        g = getattr(p, "norot", None)
        guard = [] if g is None else [f"s_cmp_eq_u32 s{self.sT2}, {g}", f"s_cselect_b32 s{self.sT1}, s{self.sN}, s{self.sT1}"]
        return [f"s_add_u32 s{self.sT1}, s{self.sN}, s{self.sRho}",
                f"s_and_b32 s{self.sT1}, s{self.sT1}, 3",
                f"s_andn2_b32 s{self.sT2}, s{self.sN}, 3",
                f"s_or_b32 s{self.sT1}, s{self.sT1}, s{self.sT2}"] + guard + [
                f"s_mul_i32 s{self.sKT}, s{self.sT1}, {p.stT}",
                f"s_mul_i32 s{self.sKW}, s{self.sT1}, {p.stW}",
                f"s_add_u32 s{self.sN}, s{self.sN}, 1"]
    def dma(self, p, slot, which="TW"):
        g = []
        aux = getattr(p, "auxT", "")
        for j, v in enumerate(p.vDT if "T" in which else []):
            g.append([f"s_add_u32 m0, s{self.sW1024}, {slot*self.SB + j*4096}", "s_nop 0",
                      f"buffer_load_dwordx4 v{v}, s[{p.srdT}:{p.srdT+3}], s{self.sKT} offen {aux} lds"])
        for j, v in enumerate(p.vDW if "W" in which else []):
            g.append([f"s_add_u32 m0, s{self.sW1024}, {slot*self.SB + self.TB + j*4096}", "s_nop 0",
                      f"buffer_load_dwordx4 v{v}, s[{p.srdW}:{p.srdW+3}], s{self.sKW} offen lds"])
        r = self.rot(p)
        g[0] = r + g[0]
        return g
    def P(self, p): return len(p.vDT) + len(p.vDW)
    def fT(self, fs, i): return self.vF[fs] + 4 * i
    def fW(self, fs, j): return self.vF[fs] + 4 * self.MT + 4 * j
    def reads(self, p, slot, fs):
        tl = [[f"ds_read_b128 v[{self.fT(fs,i)}:{self.fT(fs,i)+3}], v{vb} offset:{o}"] for i, (vb, o) in enumerate(p.rdT(slot))]
        wl = []
        for j, (vb, o1, o2) in enumerate(p.rdW(slot)):
            b = self.fW(fs, j)
            wl.append([f"ds_read_b64_tr_b16 v[{b}:{b+1}], v{vb} offset:{o1}"])
            wl.append([f"ds_read_b64_tr_b16 v[{b+2}:{b+3}], v{vb} offset:{o2}"])
        out = []
        while tl or wl:
            if tl: out.append(tl.pop(0))
            if wl: out.append(wl.pop(0))
            if wl: out.append(wl.pop(0))
        return out
    def prologue(self, p, loader, which="TW"):
        a = self.a
        if loader:
            for s in range(self.NS):
                for g in self.dma(p, s, which):
                    for l in g: a(l)
    def first(self, p, loader, vm=None):
        a = self.a
        if loader: a(f"s_waitcnt vmcnt({(self.NS-1)*self.P(p) if vm is None else vm})")
        a("s_barrier")
        for g in self.reads(p, 0, self.fs):
            for l in g: a(l)
    def stage(self, slot, cur, nxt, dmap, vm, loader, extra=None):
        a = self.a
        f = self.fs
        if nxt is not None:
            a(f"s_waitcnt vmcnt({vm}) lgkmcnt(0)" if loader else "s_waitcnt lgkmcnt(0)")
            a("s_barrier")
            rd = self.reads(nxt, (slot + 1) % self.NS, 1 - f)
        else:
            a("s_waitcnt lgkmcnt(0)")
            rd = []
        m = cur.mf(lambda i: self.fT(f, i), lambda j: self.fW(f, j))
        nm = len(m)
        slots = [[] for _ in range(nm)]
        for idx, g in enumerate(rd):
            slots[min(idx, nm - 1)].extend(g)
        fill = []
        if dmap is not None and loader: fill = self.dma(dmap, slot)
        if extra: fill = fill + extra
        for idx, g in enumerate(fill):
            slots[(idx * nm) // len(fill)].extend(g)
        for i in range(nm):
            a(m[i])
            for l in slots[i]: a(l)
        self.fs = 1 - f
    def run(self, p, nst, loader, nxt_part=None, count_reg_init=None, slot0=0, extra=None, nxt_n0=0, hook=None):
        a = self.a; NS = self.NS
        UN = NS if NS % 2 == 0 else 2 * NS
        nloop = (nst - NS) // UN
        ntail = nst - nloop * UN
        P = self.P(p)
        lab = f"L_{self.tag}_{len(a.lines)}"
        if nloop > 0:
            a(f"s_mov_b32 s{self.sCnt}, {nloop}" if count_reg_init is None else count_reg_init)
            a.label(lab)
            for s in range(UN):
                self.stage((slot0 + s) % NS, p, p, p, (NS - 2) * P, loader, extra if s == 1 else None)
            a(f"s_sub_u32 s{self.sCnt}, s{self.sCnt}, 1")
            a(f"s_cmp_lg_u32 s{self.sCnt}, 0")
            a(f"s_cbranch_scc1 {lab}")
        for s in range(ntail):
            rem = ntail - 1 - s
            slot = (slot0 + s) % NS
            if rem >= NS:
                self.stage(slot, p, p, p, (NS - 2) * P, loader)
            elif nxt_part is None:
                if rem == NS - 1 and hook: hook()
                self.stage(slot, p, p if rem else None, None, min(NS - 2, max(rem - 1, 0)) * P, loader)
            else:
                assert self.P(nxt_part) == P
                if rem == NS - 1 and loader: a(f"s_mov_b32 s{self.sN}, {nxt_n0}")
                if rem == NS - 1 and hook: hook()
                self.stage(slot, p, p if rem else nxt_part, nxt_part, (NS - 2) * P, loader)
        return (slot0 + ntail) % NS

sE = 51
F_LN, F_KV, F_U, F_O, F_X = FLAG_OFF, FLAG_OFF + 4096, FLAG_OFF + 8192, FLAG_OFF + 12288, FLAG_OFF + 16384
def poll(a, tag, vD, vA, srd_, sAddr, sC, wide=False, target=None):
    a(f"s_mov_b32 s{sC}, 0")
    a.label(f"Lp_{tag}")
    if wide: a(f"buffer_load_dwordx2 v[{vD}:{vD+1}], v{vA}, s[{srd_}:{srd_+3}], {sAddr} offen sc1")
    else: a(f"buffer_load_dword v{vD}, v{vA}, s[{srd_}:{srd_+3}], {sAddr} offen sc1")
    a(f"s_add_u32 s{sC}, s{sC}, 1")
    a("s_waitcnt vmcnt(0)")
    poll_check(a, vD, wide, target)
    a(f"s_cbranch_vccz Lq_{tag}")
    a(f"s_cmp_ge_u32 s{sC}, 0x200000")
    a(f"s_cbranch_scc1 Lq_{tag}")
    a("s_sleep 1")
    a(f"s_branch Lp_{tag}")
    a.label(f"Lq_{tag}")
def poll_check(a, vD, wide=False, target=None):
    if target == "nz":
        a(f"v_cmp_eq_u32 vcc, 0, v{vD}")
        return
    if wide:
        a(f"v_xor_b32 v{vD}, s{sE}, v{vD}")
        a(f"v_xor_b32 v{vD+1}, s{sE}, v{vD+1}")
        a(f"v_or_b32 v{vD}, v{vD}, v{vD+1}")
        a(f"v_cmp_ne_u32 vcc, 0, v{vD}")
    else:
        a(f"v_cmp_ne_u32 vcc, s{sE}, v{vD}")

S_DBG = 52

def ln_phase(a, R, S_X, S_GW, S_WS, sWave, sIdx, dma_hook):
    v = lambda n: f"v{R+n}"
    vv = lambda n, c: f"v[{R+n}:{R+n+c-1}]"
    s21, s22, s23 = 32, 33, 34
    a(f"v_and_b32 {v(3)}, 255, v0")
    a(f"v_lshlrev_b32 {v(3)}, 3, {v(3)}")
    a(f"v_lshlrev_b32 {v(4)}, 4, v1")
    a(f"s_lshl_b32 s{s21}, s{sIdx}, 15")
    a(f"s_lshl_b32 s{s22}, s{sWave}, 12")
    a(f"s_add_u32 s{s22}, s{s22}, s{s21}")
    for n in range(4):
        a(f"buffer_load_dwordx4 {vv(16+4*n,4)}, {v(4)}, s[{S_X}:{S_X+3}], s{s22} offen offset:{n*1024}")
    a(f"buffer_load_dwordx4 {vv(32,4)}, {v(4)}, s[{S_GW}:{S_GW+3}], 0 offen")
    a(f"buffer_load_dwordx4 {vv(36,4)}, {v(4)}, s[{S_GW}:{S_GW+3}], 0 offen offset:1024")
    a(f"s_lshr_b32 s{s23}, s{sWave}, 2")
    a(f"s_lshl_b32 s{s23}, s{s23}, 14")
    a(f"s_add_u32 s{s21}, s{s21}, s{s23}")
    for r in range(8):
        if r and r % 2 == 0: a(f"s_add_u32 s{s21}, s{s21}, 4096")
        a(f"buffer_load_dwordx2 {vv(40+2*r,2)}, {v(3)}, s[{S_X}:{S_X+3}], s{s21} offen offset:{(r%2)*2048}")
    nd = dma_hook()
    a(f"s_mov_b32 s35, 0x3f803f80")
    for n in range(12, 16): a(f"v_mov_b32 {v(n)}, 0")
    for i in range(8):
        a(f"v_dot2_f32_bf16 {v(12)}, {v(16+i)}, s35, {v(12)}")
        a(f"v_dot2_f32_bf16 {v(13)}, {v(16+i)}, {v(32+i)}, {v(13)}")
        a(f"v_dot2_f32_bf16 {v(14)}, {v(24+i)}, s35, {v(14)}")
        a(f"v_dot2_f32_bf16 {v(15)}, {v(24+i)}, {v(32+i)}, {v(15)}")
    def wave_reduce(regs):
        a("s_nop 2")
        for m in ("row_shr:1", "row_shr:2", "row_shr:4", "row_shr:8"):
            for r in regs:
                a(f"v_add_f32_dpp {v(r)}, {v(r)}, {v(r)} {m} row_mask:0xf bank_mask:0xf bound_ctrl:0")
            if len(regs) < 3: a("s_nop 1")
        for m, mask in (("row_bcast:15", "0xa"), ("row_bcast:31", "0xc")):
            for r in regs:
                a(f"v_add_f32_dpp {v(r)}, {v(r)}, {v(r)} {m} row_mask:{mask} bank_mask:0xf")
            if len(regs) < 3: a("s_nop 1")
        a("s_nop 0")
    wave_reduce([12, 13, 14, 15])
    for n in range(4): a(f"v_readlane_b32 s{88+n}, {v(12+n)}, 63")
    a(f"v_mov_b32 {v(6)}, 0x3a800000")
    a("s_nop 0")
    a(f"v_mul_f32 {v(8)}, s88, {v(6)}")
    a(f"v_mul_f32 {v(10)}, s90, {v(6)}")
    for n in (12, 13, 14, 15): a(f"v_mov_b32 {v(n)}, 0")
    for i in range(8):
        for base, mean, acc, t in ((16, 8, 12, 56), (24, 10, 14, 58)):
            a(f"v_lshlrev_b32 {v(t)}, 16, {v(base+i)}")
            a(f"v_and_b32 {v(t+1)}, 0xffff0000, {v(base+i)}")
            a(f"v_pk_add_f32 {vv(t,2)}, {vv(t,2)}, {vv(mean,2)} op_sel_hi:[1,0] neg_lo:[0,1] neg_hi:[0,1]")
            a(f"v_pk_fma_f32 {vv(acc,2)}, {vv(t,2)}, {vv(t,2)}, {vv(acc,2)}")
    a(f"v_add_f32 {v(12)}, {v(12)}, {v(13)}")
    a(f"v_add_f32 {v(14)}, {v(14)}, {v(15)}")
    wave_reduce([12, 14])
    a(f"v_readlane_b32 s88, {v(12)}, 63")
    a(f"v_readlane_b32 s90, {v(14)}, 63")
    a("v_cmp_eq_u32 vcc, 1, v1")
    a(f"v_mov_b32 {v(12)}, s89")
    a(f"v_mov_b32 {v(13)}, s91")
    a(f"v_cndmask_b32 {v(8)}, {v(8)}, {v(10)}, vcc")
    a(f"v_mov_b32 {v(10)}, s88")
    a(f"v_mov_b32 {v(11)}, s90")
    a(f"v_cndmask_b32 {v(12)}, {v(12)}, {v(13)}, vcc")
    a(f"v_cndmask_b32 {v(10)}, {v(10)}, {v(11)}, vcc")
    a(f"v_mul_f32 {v(10)}, {v(10)}, {v(6)}")
    rnd_bf16(a, R + 10); rnd_bf16(a, R + 8); rnd_bf16(a, R + 12)
    a(f"v_add_f32 {v(10)}, 0x3727c5ac, {v(10)}")
    a(f"v_mul_f32 {v(12)}, 0xbfb8aa3b, {v(12)}")
    rnd_bf16(a, R + 10)
    a(f"v_exp_f32 {v(12)}, {v(12)}")
    a(f"v_sqrt_f32 {v(10)}, {v(10)}")
    a("s_nop 0")
    a(f"v_add_f32 {v(12)}, 1.0, {v(12)}")
    rnd_bf16(a, R + 10)
    a(f"v_rcp_f32 {v(12)}, {v(12)}")
    a(f"v_rcp_f32 {v(9)}, {v(10)}")
    a(f"s_lshl_b32 s{s23}, s{sWave}, 4")
    rnd_bf16(a, R + 12)
    a(f"v_sub_f32 {v(13)}, 1.0, {v(12)}")
    rnd_bf16(a, R + 13)
    a(f"v_lshlrev_b32 {v(5)}, 3, v1")
    a(f"v_add_u32 {v(7)}, s{s23}, {v(5)}")
    a(f"v_add_u32 {v(5)}, 90112, {v(7)}")
    a(f"s_lshl_b32 s{s22}, s{sIdx}, 7")
    a(f"s_add_u32 s{s22}, s{s22}, {G_OFF}")
    a("s_mov_b64 exec, 3")
    a(f"ds_write_b64 {v(5)}, {vv(8,2)}")
    a(f"buffer_store_dwordx2 {vv(12,2)}, {v(7)}, s[{S_WS}:{S_WS+3}], s{s22} offen sc1")
    a("s_mov_b64 exec, -1")
    a(f"s_lshr_b32 s{s23}, s{sWave}, 2")
    a(f"s_lshl_b32 s{s22}, s{s23}, 6")
    a(f"s_add_u32 s{s22}, s{s22}, 90112")
    a(f"v_mov_b32 {v(5)}, s{s22}")
    a("s_waitcnt lgkmcnt(0)")
    a("s_barrier")
    for i in range(4):
        a(f"ds_read_b128 {vv(16+4*i,4)}, {v(5)} offset:{16*i}")
    a(f"s_mul_i32 s{s22}, s{s23}, 45056")
    a(f"v_lshlrev_b32 {v(5)}, 3, {v(3)}")
    a(f"v_add_u32 {v(5)}, s{s22}, {v(5)}")
    a(f"v_lshl_add_u32 {v(7)}, s29, 2, {v(4)}")
    a(f"v_add_u32 {v(6)}, s{s22}, {v(7)}")
    a(f"s_lshl_b32 s{s21}, s{sIdx}, 1")
    a(f"s_add_u32 s{s21}, s{s21}, s{s23}")
    a(f"s_lshl_b32 s{s21}, s{s21}, 14")
    if HT_OFF: a(f"s_add_u32 s{s21}, s{s21}, {HT_OFF}")
    a("s_waitcnt lgkmcnt(0)")
    for r in range(8):
        b = 64 + 4 * r
        for k in range(2):
            a(f"v_lshlrev_b32 {v(b+2*k)}, 16, {v(40+2*r+k)}")
            a(f"v_and_b32 {v(b+2*k+1)}, 0xffff0000, {v(40+2*r+k)}")
        for k in range(2):
            a(f"v_pk_add_f32 {vv(b+2*k,2)}, {vv(b+2*k,2)}, {vv(16+2*r,2)} op_sel_hi:[1,0] neg_lo:[0,1] neg_hi:[0,1]")
        a(f"v_mov_b32 {v(58)}, {v(17+2*r)}")
        for k in range(2):
            a(f"v_cvt_pk_bf16_f32 {v(56+k)}, {v(b+2*k)}, {v(b+2*k+1)}")
        for k in range(2):
            a(f"v_lshlrev_b32 {v(b+2*k)}, 16, {v(56+k)}")
            a(f"v_and_b32 {v(b+2*k+1)}, 0xffff0000, {v(56+k)}")
        for k in range(2):
            a(f"v_pk_mul_f32 {vv(b+2*k,2)}, {vv(b+2*k,2)}, {vv(58,2)} op_sel_hi:[1,0]")
    for cidx in range(4):
        o = 96 + 4 * cidx
        for p in range(4):
            a(f"v_cvt_pk_bf16_f32 {v(o+p)}, {v(64 + 8*p + cidx)}, {v(64 + 8*p + 4 + cidx)}")
        a(f"ds_write_b128 {v(5)}, {vv(o,4)} offset:{16*cidx}")
    a("s_waitcnt lgkmcnt(0)")
    for cidx in range(4):
        a(f"ds_read_b128 {vv(64+4*cidx,4)}, {v(6)} offset:{cidx*1024}")
    for cidx in range(4):
        a(f"s_waitcnt lgkmcnt({3-cidx})")
        a(f"buffer_store_dwordx4 {vv(64+4*cidx,4)}, {v(7)}, s[{S_WS}:{S_WS+3}], s{s21} offen offset:{cidx*1024} sc1")

def lane_bits(a, vLane, vq, vr, vc):
    a(f"v_lshrrev_b32 v{vq}, 4, v{vLane}")
    a(f"v_bfe_u32 v{vr}, v{vLane}, 2, 2")
    a(f"v_and_b32 v{vc}, 3, v{vLane}")

L2E = 0x3fb8aa3b
def bc(r):
    assert r % 2 == 0, r
    return f"v[{r}:{r+1}]", 0
def pk_fma_sL(d, x, sL, m, negx, negm):
    pm, sm = bc(m)
    return (f"v_pk_fma_f32 v[{d}:{d+1}], v[{x}:{x+1}], s[{sL}:{sL+1}], {pm} op_sel:[0,0,{sm}] op_sel_hi:[1,0,{sm}] "
            f"neg_lo:[{negx},0,{negm}] neg_hi:[{negx},0,{negm}]")
def pk_mul_b(d, x, m):
    pm, sm = bc(m)
    return f"v_pk_mul_f32 v[{d}:{d+1}], v[{x}:{x+1}], {pm} op_sel:[0,{sm}] op_sel_hi:[1,{sm}]"
def pk_fma_bb(d, x, m, c):
    pm, sm = bc(m); pc, sc = bc(c)
    return f"v_pk_fma_f32 v[{d}:{d+1}], v[{x}:{x+1}], {pm}, {pc} op_sel:[0,{sm},{sc}] op_sel_hi:[1,{sm},{sc}]"
def pk_add(d, x, y): return f"v_pk_add_f32 v[{d}:{d+1}], v[{x}:{x+1}], v[{y}:{y+1}]"

PB = 244
def phase3_pre(a):
    sWave, sW1024, sT1, sT2, sTD, sTS, sA, sB = 28, 29, 34, 35, 37, 38, 32, 33
    vLane, vT1, vT2, vq, vr_, vc = 1, 2, 3, 4, 5, 6
    TB = 16384
    a(f"v_lshlrev_b32 v{vT1}, 4, v{vLane}")
    a(f"s_bfe_u32 s{sA}, s{sWave}, 0x10001")
    a(f"s_and_b32 s{sB}, s{sWave}, 1")
    for n, (R16, sTile) in enumerate(((16384, sTD), (32768, sTS))):
        a(f"s_mul_i32 s{sT1}, s{sA}, {R16}")
        a(f"s_lshl_b32 s{sT2}, s{sB}, 10")
        a(f"s_add_u32 s{sT1}, s{sT1}, s{sT2}")
        a(f"s_lshl_b32 s{sT2}, s{sTile}, 11")
        a(f"s_add_u32 s{sT1}, s{sT1}, s{sT2}")
        a(f"v_add_u32 v{PB+n}, s{sT1}, v{vT1}")
    a(f"v_lshrrev_b32 v{vT2}, 5, v{vLane}")
    a(f"v_lshlrev_b32 v{vT2}, 6, v{vT2}")
    a(f"v_lshl_add_u32 v{vT2}, v{vc}, 4, v{vT2}")
    a(f"v_and_b32 v{vT1}, 16, v{vLane}")
    a(f"v_lshlrev_b32 v{vT1}, 1, v{vT1}")
    a(f"v_xor_b32 v{vT2}, v{vT1}, v{vT2}")
    a(f"v_bfe_u32 v{vT1}, v{vLane}, 2, 3")
    for n, (LD, sTile) in enumerate(((4096, sTS), (2048, sTD))):
        a(f"v_lshl_add_u32 v{PB+2+n}, v{vT1}, {log2(LD)}, v{vT2}")
        a(f"s_mul_i32 s{sT1}, s{sW1024}, {8*LD//1024}")
        a(f"s_lshl_b32 s{sT2}, s{sTile}, 8")
        a(f"s_add_u32 s{sT1}, s{sT1}, s{sT2}")
        a(f"v_add_u32 v{PB+2+n}, s{sT1}, v{PB+2+n}")
    a(f"v_and_b32 v{PB+8}, 15, v{vLane}")
    a(f"v_lshlrev_b32 v{vT1}, 4, v{PB+8}")
    a(f"v_lshl_add_u32 v{vT1}, v{vq}, 11, v{vT1}")
    a(f"s_lshr_b32 s{sT1}, s{sWave}, 2")
    a(f"s_lshl_b32 s{sT1}, s{sT1}, 13")
    a(f"v_add_u32 v{vT1}, s{sT1}, v{vT1}")
    for n, sel in enumerate((sA, sB)):
        a(f"v_lshl_add_u32 v{PB+4+n}, s{sel}, 10, v{vT1}")
    a(f"v_lshrrev_b32 v{vT1}, 1, v{vq}")
    a(f"v_lshlrev_b32 v{vT1}, 10, v{vT1}")
    a(f"v_and_b32 v{vT2}, 1, v{vq}")
    a(f"v_mul_u32_u24 v{vT2}, 288, v{vT2}")
    a(f"v_add_u32 v{vT1}, v{vT2}, v{vT1}")
    a(f"v_lshl_add_u32 v{vT1}, v{vr_}, 6, v{vT1}")
    a(f"v_lshl_add_u32 v{vT1}, v{vc}, 3, v{vT1}")
    a(f"s_lshr_b32 s{sT1}, s{sT1}, 1")
    a(f"s_add_u32 s{sT1}, s{sT1}, {TB}")
    a(f"v_add_u32 v{vT1}, s{sT1}, v{vT1}")
    for n, sel in enumerate((sB, sA)):
        a(f"v_lshl_add_u32 v{PB+6+n}, s{sel}, 13, v{vT1}")
    a(f"s_lshl_b32 s{sT1}, s{sTS}, 7")
    a(f"s_lshl_b32 s{sT2}, s{sB}, 6")
    a(f"s_add_u32 s{sT1}, s{sT1}, s{sT2}")
    a(f"v_add_u32 v{PB+8}, s{sT1}, v{PB+8}")
    a(f"s_lshl_b32 s46, s{sTD}, 7")
    a(f"s_add_u32 s46, s46, {F_U}")
    a(f"s_lshr_b32 s47, s{sTS}, 1")
    a(f"s_lshl_b32 s47, s47, 7")
    a(f"s_add_u32 s47, s47, {F_O}")
    a(f"s_add_u32 s48, s46, {F_O - F_U}")
    a("s_bitcmp1_b32 s2, 7")
    a(f"s_cselect_b32 s47, s46, s47")
    a(f"s_cselect_b32 s48, s46, s48")
    a(f"s_lshl_b32 s{sT1}, s{sTS}, 2")
    a(f"s_add_u32 s48, s48, s{sT1}")

def phase3(a):
    S_U, S_W2, S_WS, S_OP, S_WO, S_OUT = 8, 12, 16, 20, 24, 56
    sWave, sW1024, sN, sRho, sKT, sKW, sT1, sT2, sCnt, sTD, sTS = 28, 29, 30, 31, 32, 33, 34, 35, 36, 37, 38
    sWSp = 44
    vLane, vT1, vT2, vq, vr_, vc = 1, 2, 3, 4, 5, 6
    NS, TB, SB = 4, 16384, 32768
    vD1T = [PB, 9, 10, 11]; vD1W = [PB+2, 13, 14, 15]; vD2T = [PB+1, 17, 18, 19]; vD2W = [PB+3, 21, 22, 23]
    vR1T = [PB+4, 25]; vR1E = [PB+6, 27]; vR1O = [28, 29]; vR2T = [PB+5, 31]; vR2E = [PB+7, 33]; vR2O = [34, 35]
    vS = PB + 8
    vOMG = 36; vB2 = 44
    vF = [52, 84]; ACC = 116; ACC2 = 180
    sC2 = 39; sFl = 47; sFu = 46; sSig = 48
    stamp(a, 8)
    srd(a, S_W2, 92, 3584 * 2048 * 2)
    srd(a, S_WO, 96, 1024 * 1024 * 2)
    for vD, LD in ((vD1W, 4096), (vD2W, 2048)):
        for j in range(1, 4): a(f"v_add_u32 v{vD[j]}, {(j&1)*32*LD + (j>>1)*128}, v{vD[0]}")
    a(f"s_add_u32 s{sRho}, s{sTD}, s{sTS}")
    a(f"s_mov_b32 s{sN}, 0")
    a(f"v_mov_b32 v{vT1}, 0")
    a(f"v_mov_b32 v{vT2}, s{sE}")
    a(f"v_and_b32 v16, 15, v{vLane}")
    a("v_lshlrev_b32 v16, 2, v16")
    def rdT(vR): return lambda slot: [(vR[slot // 2], (slot % 2) * SB + i * 256) for i in range(4)]
    def rdW(vE, vO): return lambda slot: [((vO if b & 1 else vE)[slot // 2], (slot % 2) * SB + (b >> 1) * 512, (slot % 2) * SB + (b >> 1) * 512 + 2048) for b in range(4)]
    def mf1(fT, fW):
        return [f"v_mfma_f32_16x16x32_bf16 v[{ACC+(i*4+j)*4}:{ACC+(i*4+j)*4+3}], v[{fT(i)}:{fT(i)+3}], v[{fW(j)}:{fW(j)+3}], v[{ACC+(i*4+j)*4}:{ACC+(i*4+j)*4+3}]" for i in range(4) for j in range(4)]
    def mf2(fT, fW):
        return [f"v_mfma_f32_16x16x32_bf16 v[{ACC2+(i*4+j)*4}:{ACC2+(i*4+j)*4+3}], v[{fW(i)}:{fW(i)+3}], v[{fT(j)}:{fT(j)+3}], v[{ACC2+(i*4+j)*4}:{ACC2+(i*4+j)*4+3}]" for j in range(4) for i in range(4)]
    p1 = Part(srdT=S_U, srdW=S_W2, vDT=vD1T, vDW=vD1W, stT=8 * 16384, stW=64 * 4096, rdT=rdT(vR1T), rdW=rdW(vR1E, vR1O), mf=mf1, auxT='sc1')
    p2 = Part(srdT=S_OP, srdW=S_WO, vDT=vD2T, vDW=vD2W, stT=8 * 32768, stW=64 * 2048, rdT=rdT(vR2T), rdW=rdW(vR2E, vR2O), mf=mf2, auxT='sc1')
    if NA % 4: p1.norot = NA & ~3
    core = Core(a, "p3", NS, SB, TB, 4, 4, vF, sW1024, sN, sRho, sKT, sKW, sT1, sT2, sCnt)
    a("s_waitcnt vmcnt(0)")
    a("s_barrier")
    a(f"s_cmp_lg_u32 s{sWave}, 0")
    a("s_cbranch_scc1 P3_nosig")
    a("s_mov_b64 exec, 1")
    a(f"buffer_store_dword v{vT2}, v{vT1}, s[{S_WS}:{S_WS+3}], s{sSig} offen sc1")
    a("s_mov_b64 exec, -1")
    a.label("P3_nosig")
    a(f"s_cmp_ge_u32 s{sWave}, 4")
    a("s_cbranch_scc1 P3_nold0")
    a("s_bitcmp1_b32 s2, 7")
    a("s_cbranch_scc1 P3_wA")
    core.prologue(p2, True, "W")
    a("s_branch P3_nold0")
    a.label("P3_wA")
    core.prologue(p1, True, "W")
    a.label("P3_nold0")
    a(f"s_mov_b32 s{sN}, 0")
    srd(a, S_OUT, 94, 4096)
    a(f"v_lshlrev_b32 v8, 3, v{vS}")
    a(f"v_lshlrev_b32 v12, 1, v{vS}")
    a(f"s_mov_b32 s{sT1}, {G_OFF+4}")
    for j in range(4):
        a(f"buffer_load_dword v{vOMG+2*j}, v8, s[{S_WS}:{S_WS+3}], s{sT1} offen offset:{j*128} sc1")
        a(f"buffer_load_ushort v{vB2+2*j}, v12, s[{S_OUT}:{S_OUT+3}], 0 offen offset:{j*32}")
    srd(a, S_U, sWSp, 448 * 16384, U_OFF)
    srd(a, S_OP, sWSp, 4 * MB, OP_OFF)
    for vD, R16 in ((vD1T, 16384), (vD2T, 32768)):
        for j in range(1, 4): a(f"v_add_u32 v{vD[j]}, {j*2*R16}, v{vD[0]}")
    for vR in (vR1T, vR2T, vR1E, vR2E):
        a(f"v_add_u32 v{vR[1]}, {2*SB}, v{vR[0]}")
    for vE, vO in ((vR1E, vR1O), (vR2E, vR2O)):
        a(f"v_xor_b32 v{vO[0]}, 32, v{vE[0]}")
        a(f"v_xor_b32 v{vO[1]}, 32, v{vE[1]}")
    a(f"v_lshrrev_b32 v{vq}, 4, v{vLane}")
    for i in range(0, 64, 2):
        a(f"v_pk_mul_f32 v[{ACC+i}:{ACC+i+1}], v[{vT1}:{vT1+1}], v[{vT1}:{vT1+1}] op_sel_hi:[0,0]")

    def epi(role, kg):
        tag = f"{role}{kg}"
        stamp(a, 10)
        keep = (0, 1) if kg == 0 else (2, 3)
        send = (2, 3) if kg == 0 else (0, 1)
        a(f"s_lshl_b32 s{sT1}, s{sW1024}, 4")
        a(f"v_lshlrev_b32 v{vT1}, 4, v{vLane}")
        a(f"v_add_u32 v{vT2}, s{sT1}, v{vT1}")
        srd(a, S_OUT, 98, 2048 * 1024 * 2)
        a(f"s_lshl_b32 s{sKT}, s2, 3")
        a(f"s_add_u32 s{sKT}, s{sKT}, s{sWave}")
        a(f"s_lshl_b32 s{sKT}, s{sKT}, 12")
        a(f"s_add_u32 s{sKT}, s{sKT}, {XCH_OFF}")
        a(f"s_xor_b32 s{sKW}, s{sKT}, {128*8*4096}")
        a("s_barrier")
        for n in range(8):
            r = ACC + send[0] * 16 + 4 * n
            a(f"ds_write_b128 v{vT2}, v[{r}:{r+3}] offset:{kg*8192 + n*1024}")
        a("s_waitcnt lgkmcnt(0)")
        a("s_barrier")
        for n in range(8):
            a(f"ds_read_b128 v[{52+4*n}:{55+4*n}], v{vT2} offset:{(1-kg)*8192 + n*1024}")
        K0 = ACC + keep[0] * 16
        jk = (0, 2) if role == 0 else (1, 3)
        js = (1, 3) if role == 0 else (0, 2)
        order = [(ii, j) for j in js for ii in range(2)] + [(ii, j) for j in jk for ii in range(2)]
        a("s_waitcnt lgkmcnt(0)")
        cnt = 0
        for (ii, j) in order:
            n = ii * 4 + j; r = K0 + 4 * n
            for e in (0, 2): a(pk_add(r + e, r + e, 52 + 4 * n + e))
            if role == 0:
                for e in (0, 2): a(pk_mul_b(r + e, r + e, vOMG + 2 * j))
            if j in js:
                a(f"buffer_store_dwordx4 v[{r}:{r+3}], v{vT1}, s[{S_WS}:{S_WS+3}], s{sKT} offen offset:{cnt*1024} sc1")
                cnt += 1
        a(f"v_lshlrev_b32 v{vT2}, 11, v{vS}")
        a(f"v_and_b32 v8, 1, v{vq}")
        a(f"v_lshl_add_u32 v{vT2}, v8, 5, v{vT2}")
        a(f"v_lshrrev_b32 v8, 1, v{vq}")
        a(f"v_lshl_add_u32 v{vT2}, v8, 4, v{vT2}")
        a(f"s_lshl_b32 s{sT1}, s{sTD}, 8")
        a(f"s_bfe_u32 s{sT2}, s{sWave}, 0x10001")
        a(f"s_lshl_b32 s{sT2}, s{sT2}, 7")
        a(f"s_add_u32 s{sT1}, s{sT1}, s{sT2}")
        a(f"s_add_u32 s{sN}, s{sT1}, {kg*64}")
        a(f"s_lshl_b32 s{sT1}, s2, 7")
        a(f"s_add_u32 s{sT1}, s{sT1}, {F_X}")
        a(f"s_xor_b32 s{sT2}, s2, 128")
        a(f"s_lshl_b32 s{sT2}, s{sT2}, 7")
        a(f"s_add_u32 s{sT2}, s{sT2}, {F_X}")
        a("v_mov_b32 v8, 0")
        a(f"v_mov_b32 v9, s{sE}")
        a("s_waitcnt vmcnt(0)")
        a("s_barrier")
        if kg == 0:
            a(f"s_cmp_lg_u32 s{sWave}, 0")
            a(f"s_cbranch_scc1 P3_nf{tag}")
            a("s_mov_b64 exec, 1")
            a(f"buffer_store_dword v9, v8, s[{S_WS}:{S_WS+3}], s{sT1} offen sc1")
            a("s_mov_b64 exec, -1")
            a.label(f"P3_nf{tag}")
        stamp(a, 11)
        poll(a, f"x{tag}", 10, 8, S_WS, f"s{sT2}", sC2)
        for n in range(4):
            a(f"buffer_load_dwordx4 v[{52+4*n}:{55+4*n}], v{vT1}, s[{S_WS}:{S_WS+3}], s{sKW} offen offset:{n*1024} sc1")
        for jn, j in enumerate(jk):
            a(f"s_waitcnt vmcnt({2 if jn == 0 else 1})" if jn == 0 else "s_waitcnt vmcnt(1)")
            o = 84 + 4 * jn
            for ii in range(2):
                r = K0 + 4 * (ii * 4 + j); t = 52 + 4 * (jn * 2 + ii)
                for e in (0, 2): a(pk_add(r + e, r + e, t + e))
                a(f"v_cvt_pk_bf16_f32 v{o+2*ii}, v{r}, v{r+1}")
                a(f"v_cvt_pk_bf16_f32 v{o+2*ii+1}, v{r+2}, v{r+3}")
            a("s_nop 1")
            a(f"v_permlane16_swap_b32 v{o}, v{o+2}")
            a(f"v_permlane16_swap_b32 v{o+1}, v{o+3}")
            a(f"s_add_u32 s{sT1}, s{sN}, {j*16*2048}")
            a(f"buffer_store_dwordx4 v[{o}:{o+3}], v{vT2}, s[{S_OUT}:{S_OUT+3}], s{sT1} offen")
        a("s_branch P3_fin")

    a("s_bitcmp1_b32 s2, 7")
    a("s_cbranch_scc0 P3_B")
    a(f"s_cmp_ge_u32 s{sWave}, 4")
    a("s_cbranch_scc1 P3_A1")
    for kg in range(2):
        if kg:
            a.label("P3_A1")
            (a(f"s_cmp_lg_u32 s{sWave}, 4"), a("s_cbranch_scc1 Lq_depA"), poll(a, "depA", vT2, 16, S_WS, f"s{sFl}", sC2))
        if kg: a("s_waitcnt vmcnt(0)")
        a("s_barrier")
        stamp(a, 9)
        core.prologue(p1, kg == 0, "T")
        core.fs = 0; core.first(p1, kg == 0, vm=0); core.run(p1, NA, kg == 0)
        epi(0, kg)
    a.label("P3_B")
    a(f"s_cmp_ge_u32 s{sWave}, 4")
    a("s_cbranch_scc1 P3_B1")
    for kg in range(2):
        if kg:
            a.label("P3_B1")
            for i in range(0, 64, 2):
                a(f"v_pk_mul_f32 v[{ACC2+i}:{ACC2+i+1}], v[{vT1}:{vT1+1}], v[{vT1}:{vT1+1}] op_sel_hi:[0,0]")
            (a(f"s_cmp_lg_u32 s{sWave}, 4"), a("s_cbranch_scc1 Lq_depB"), poll(a, "depB", vT2, 16, S_WS, f"s{sFl}", sC2))
        if kg: a("s_waitcnt vmcnt(0)")
        a("s_barrier")
        stamp(a, 9)
        core.prologue(p2, kg == 0, "T")
        if kg == 0:
            a("s_waitcnt vmcnt(16)")
            for j in range(4):
                a(f"v_lshlrev_b32 v{vB2+2*j}, 16, v{vB2+2*j}")
                a(f"v_mul_f32 v{vB2+2*j}, v{vB2+2*j}, v{vOMG+2*j}")
            for i in range(4):
                for j in range(4):
                    for e in (0, 2):
                        r = ACC2 + (i * 4 + j) * 4 + e
                        a(f"v_pk_add_f32 v[{r}:{r+1}], v[{vB2+2*j}:{vB2+2*j+1}], v[{vT1}:{vT1+1}] op_sel_hi:[0,0]")
        core.fs = 0; core.first(p2, kg == 0, vm=0)
        hook = None if kg == 0 else (lambda: (a(f"s_cmp_lg_u32 s{sWave}, 4"), a("s_cbranch_scc1 Lq_dep2"), poll(a, "dep2", vT2, 16, S_WS, f"s{sFu}", sC2)))
        sl = core.run(p2, 16, kg == 0, nxt_part=p1, nxt_n0=NA, hook=hook)
        core.run(p1, 56 - NA, kg == 0, slot0=sl)
        a("s_nop 7")
        for i in range(4):
            for j in range(4):
                for e in (0, 2):
                    r = (i * 4 + j) * 4 + e
                    a(f"v_pk_fma_f32 v[{ACC+r}:{ACC+r+1}], v[{ACC+r}:{ACC+r+1}], v[{vOMG+2*j}:{vOMG+2*j+1}], v[{ACC2+r}:{ACC2+r+1}] op_sel_hi:[1,0,1]")
        epi(1, kg)
    a.label("P3_fin")

def gen_k1(a):
    name = NAME + "_kernel"
    kernel_header(a, name)
    S_T, S_W, S_WS, S_AUX = 8, 12, 16, 24
    sWave, sW1024, sN, sRho, sKT, sKW, sT1, sT2, sCnt, sTT, sTW = 28, 29, 30, 31, 32, 33, 34, 35, 36, 37, 38
    sWSp = 44
    ST = 48
    vLane, vT1, vT2, vq, vr_, vc = 1, 2, 3, 4, 5, 6
    a("s_cmp_ge_u32 s2, 256")
    a("s_cbranch_scc1 L1_end")
    a(f"s_load_dwordx2 s[{sWSp}:{sWSp+1}], s[0:1], {A_WS}")
    a(f"s_load_dwordx4 s[4:7], s[0:1], {A_X}")
    a(f"s_load_dwordx2 s[20:21], s[0:1], {A_WPHI}")
    a(f"s_load_dwordx4 s[40:43], s[0:1], {A_W1}")
    if FUSE:
        a(f"s_load_dwordx4 s[92:95], s[0:1], {A_W2}")
        a(f"s_load_dwordx2 s[96:97], s[0:1], {A_WO}")
        a(f"s_load_dwordx2 s[98:99], s[0:1], {A_OUT}")
        a(f"s_load_dwordx2 s[22:23], s[0:1], {A_DBG}")
        a(f"s_load_dwordx2 s[100:101], s[0:1], {A_GW}")
    stamp(a, 0)
    stamp_cyc(a, CYC)
    a(f"v_lshrrev_b32 v{vT1}, 6, v0")
    a(f"v_and_b32 v{vLane}, 63, v0")
    a(f"v_readfirstlane_b32 s{sWave}, v{vT1}")
    lane_bits(a, vLane, vq, vr_, vc)
    a(f"s_and_b32 s{sT1}, s2, 7")
    a(f"s_lshr_b32 s{sT2}, s2, 3")
    a(f"s_and_b32 s{sTT}, s{sT1}, 1")
    a(f"s_lshl_b32 s{sTT}, s{sTT}, 2")
    a(f"s_and_b32 s3, s{sT2}, 3")
    a(f"s_add_u32 s{sTT}, s{sTT}, s3")
    a(f"s_lshr_b32 s{sTW}, s{sT1}, 1")
    a(f"s_lshl_b32 s{sTW}, s{sTW}, 2")
    a(f"s_bfe_u32 s{sRho}, s{sT2}, 0x20002")
    a(f"s_add_u32 s{sTW}, s{sTW}, s{sRho}")
    a(f"s_add_u32 s{sRho}, s{sRho}, s3")
    a(f"s_and_b32 s{sW1024}, s{sWave}, 3")
    a(f"s_lshl_b32 s{sW1024}, s{sW1024}, 10")
    a(f"s_mov_b32 s{sN}, 0")
    if PF_CODE:
        a(f"s_cmp_lg_u32 s{sWave}, 7")
        a("s_cbranch_scc1 L1_npc")
        a("s_getpc_b64 s[88:89]")
        a.label("L1_pc")
        a(f"v_lshlrev_b32 v8, 7, v{vLane}")
        a("v_lshl_add_u32 v8, s3, 14, v8")
        a("v_add_u32 v9, 8192, v8")
        a("v_min_u32 v8, L1_end-L1_pc, v8")
        a("v_min_u32 v9, L1_end-L1_pc, v9")
        a("global_load_dword v10, v8, s[88:89]")
        a("global_load_dword v10, v9, s[88:89]")
        a.label("L1_npc")
    a(f"s_cmp_ge_u32 s{sT2}, 16")
    a("s_waitcnt lgkmcnt(0)")
    srd(a, S_DBG, 22, 256)
    a("s_cbranch_scc1 L1_g1")

    NS, TB, WB = 4, 16384, 12288
    SB = TB + WB
    WPHI = NS * SB
    MT, MW = 4, 6
    vDT = [8, 9, 10, 11]; vDW = [12, 13, 14]
    vRT = [16, 17]; vRE = [18, 19]; vRO = [20, 21]
    vF = [24, 64]; ACC = 104
    srd(a, S_T, 4, 2048 * 1024 * 2)
    srd(a, S_W, 6, 1024 * 3072 * 2)
    srd(a, S_AUX, 20, 65536)
    srd(a, S_WS, sWSp, WS_BYTES)
    a(f"v_lshrrev_b32 v{vT1}, 2, v{vLane}")
    a(f"v_lshlrev_b32 v{vT1}, 11, v{vT1}")
    a(f"v_lshl_add_u32 v{vT1}, v{vc}, 4, v{vT1}")
    a(f"v_and_b32 v{vT2}, 32, v{vLane}")
    a(f"v_xor_b32 v{vT1}, v{vT2}, v{vT1}")
    a(f"s_lshl_b32 s{sT1}, s{sTT}, 19")
    a(f"s_lshl_b32 s{sT2}, s{sWave}, 15")
    a(f"s_add_u32 s{sT1}, s{sT1}, s{sT2}")
    for j, v in enumerate(vDT):
        a(f"s_add_u32 s{sT2}, s{sT1}, {j*64*2048}")
        a(f"v_add_u32 v{v}, s{sT2}, v{vT1}")
    a(f"v_bfe_u32 v{vT1}, v{vLane}, 2, 3")
    a(f"v_mul_u32_u24 v{vT1}, 6144, v{vT1}")
    a(f"v_lshrrev_b32 v{vT2}, 5, v{vLane}")
    a(f"v_lshl_add_u32 v{vT1}, v{vT2}, 6, v{vT1}")
    a(f"v_lshl_add_u32 v{vT1}, v{vc}, 4, v{vT1}")
    a(f"s_and_b32 s{sT1}, s{sWave}, 1")
    a(f"s_lshl_b32 s{sT1}, s{sT1}, 5")
    a(f"v_xor_b32 v{vT1}, s{sT1}, v{vT1}")
    a(f"s_mul_i32 s{sT1}, s{sWave}, {8*6144}")
    a(f"s_lshl_b32 s{sT2}, s{sTW}, 7")
    a(f"s_add_u32 s{sT1}, s{sT1}, s{sT2}")
    for j, v in enumerate(vDW):
        a(f"s_add_u32 s{sT2}, s{sT1}, {j*2048}")
        a(f"v_add_u32 v{v}, s{sT2}, v{vT1}")
    def q_rdT(slot): return [(vRT[slot // 2], (slot % 2) * SB + i * 1024) for i in range(MT)]
    def q_rdW(slot): return [((vRO if b & 1 else vRE)[slot // 2], (slot % 2) * SB + (b >> 1) * 4096, (slot % 2) * SB + (b >> 1) * 4096 + 256) for b in range(MW)]
    def q_mf(fT, fW):
        m = []
        for i in range(MT):
            for j in range(MW):
                d = ACC + (i * MW + j) * 4
                A, B = (fW(j), fT(i)) if j < 4 else (fT(i), fW(j))
                m.append(f"v_mfma_f32_16x16x32_bf16 v[{d}:{d+3}], v[{A}:{A+3}], v[{B}:{B+3}], v[{d}:{d+3}]")
        return m
    pq = Part(srdT=S_T, srdW=S_W, vDT=vDT, vDW=vDW, stT=64, stW=32 * 6144, rdT=q_rdT, rdW=q_rdW, mf=q_mf)
    core = Core(a, "q", NS, SB, TB, MT, MW, vF, sW1024, sN, sRho, sKT, sKW, sT1, sT2, sCnt)
    a(f"s_cmp_ge_u32 s{sWave}, 4")
    a("s_cbranch_scc1 L1q_nold0")
    a(f"v_lshlrev_b32 v{vT1}, 4, v{vLane}")
    a(f"s_lshl_b32 s{sT1}, s{sTW}, 12")
    a(f"s_add_u32 s{sT1}, s{sT1}, s{sW1024}")
    a(f"s_add_u32 m0, s{sW1024}, {WPHI}")
    a("s_nop 0")
    a(f"buffer_load_dwordx4 v{vT1}, s[{S_AUX}:{S_AUX+3}], s{sT1} offen lds")
    core.prologue(pq, True)
    a.label("L1q_nold0")
    if FUSE: phase3_pre(a)
    a(f"v_and_b32 v{vT1}, 15, v{vLane}")
    a(f"v_lshlrev_b32 v{vT1}, 6, v{vT1}")
    a(f"v_lshl_add_u32 v{vT1}, v{vq}, 4, v{vT1}")
    a(f"v_and_b32 v{vT2}, 8, v{vLane}")
    a(f"v_lshlrev_b32 v{vT2}, 2, v{vT2}")
    a(f"v_xor_b32 v{vT1}, v{vT2}, v{vT1}")
    a(f"s_lshr_b32 s{sT1}, s{sWave}, 1")
    a(f"s_lshl_b32 s{sT1}, s{sT1}, 12")
    a(f"v_add_u32 v{vRT[0]}, s{sT1}, v{vT1}")
    a(f"v_add_u32 v{vRT[1]}, {2*SB}, v{vRT[0]}")
    a(f"v_lshlrev_b32 v{vT1}, 10, v{vq}")
    a(f"v_lshl_add_u32 v{vT1}, v{vr_}, 6, v{vT1}")
    a(f"v_and_b32 v{vT2}, 1, v{vq}")
    a(f"v_lshl_add_u32 v{vT1}, v{vT2}, 5, v{vT1}")
    a(f"v_lshl_add_u32 v{vT1}, v{vc}, 3, v{vT1}")
    a(f"s_and_b32 s{sT1}, s{sWave}, 1")
    a(f"s_lshl_b32 s{sT1}, s{sT1}, 9")
    a(f"s_add_u32 s{sT1}, s{sT1}, {TB}")
    a(f"v_add_u32 v{vRE[0]}, s{sT1}, v{vT1}")
    a(f"v_add_u32 v{vRE[1]}, {2*SB}, v{vRE[0]}")
    a(f"v_xor_b32 v{vRO[0]}, 32, v{vRE[0]}")
    a(f"v_xor_b32 v{vRO[1]}, 32, v{vRE[1]}")
    for i in range(MT * MW * 4):
        a(f"v_mov_b32 v{ACC+i}, 0")
    a(f"s_cmp_ge_u32 s{sWave}, 4")
    a("s_cbranch_scc1 L1q_nold")
    def q_hook():
        a(f"s_cmp_lg_u32 s{sWave}, 4")
        a("s_cbranch_scc1 L1q_h")
        a(f"v_lshlrev_b32 v8, 3, v{vLane}")
        a("v_mov_b32 v9, 0")
        a("s_and_b32 s39, s2, 7")
        a("s_lshl_b32 s39, s39, 9")
        a(f"s_add_u32 s39, s39, {F_LN}")
        a(f"buffer_load_dword v7, v9, s[{S_DBG}:{S_DBG+3}], 0 offen sc1")
        a(f"buffer_load_dwordx2 v[10:11], v8, s[{S_WS}:{S_WS+3}], s39 offen sc1")
        a.label("L1q_h")
    def q_check(tag):
        a(f"s_cmp_lg_u32 s{sWave}, 4")
        a("s_cbranch_scc1 L1q_epi")
        a("s_waitcnt vmcnt(0)")
        poll_check(a, 7, target="nz")
        a(f"s_cbranch_vccz Lq_e{tag}")
        poll(a, "e" + tag, 7, 9, S_DBG, "0", sT1, target="nz")
        a(f"v_readfirstlane_b32 s{sE}, v7")
        a("s_nop 1")
        poll_check(a, 10, wide=True)
        a(f"s_cbranch_vccz Lq_{tag}")
        poll(a, tag, 10, 8, S_WS, "s39", sT1, wide=True)
        a(f"v_mov_b32 v9, {WPHI+4096}")
        a("ds_write_b32 v9, v7")
        a("s_waitcnt lgkmcnt(0)")
    core.fs = 0; core.first(pq, True); core.run(pq, 32, True)
    a("s_branch L1q_epi")
    a.label("L1q_nold")
    core.fs = 0; core.first(pq, False)
    core.run(pq, 32, False, hook=q_hook)
    q_check("lnq")
    a.label("L1q_epi")
    stamp(a, 1)
    stamp_cyc(a, CYC + 2)
    a("s_barrier")
    stamp(a, 2)
    a(f"v_mov_b32 v7, {WPHI+4096}")
    a("ds_read_b32 v7, v7")
    vPhiA = 8
    vAdr, vAdr2, vOA, vZ = 16, 17, 18, 19
    vG = 20
    PHQ = 200
    PITCH = 136
    AREA = 64 * PITCH
    sHead, sL = sRho, sN
    def Dt(t): return ACC + (t // 4) * 24 + 8 + (t % 4) * 4
    a(f"v_lshl_add_u32 v{vT1}, v{vq}, 2, v{vr_}")
    a(f"v_lshlrev_b32 v{vT2}, 6, v{vT1}")
    a(f"v_lshl_add_u32 v{vT2}, v{vc}, 3, v{vT2}")
    a(f"s_and_b32 s{sT1}, s{sWave}, 1")
    a(f"s_lshl_b32 s{sT2}, s{sT1}, 11")
    a(f"s_add_u32 s{sT2}, s{sT2}, {WPHI}")
    a(f"v_add_u32 v{vT2}, s{sT2}, v{vT2}")
    for fb in range(2):
        a(f"ds_read_b64_tr_b16 v[{vPhiA+4*fb}:{vPhiA+4*fb+1}], v{vT2} offset:{fb*32}")
        a(f"ds_read_b64_tr_b16 v[{vPhiA+4*fb+2}:{vPhiA+4*fb+3}], v{vT2} offset:{fb*32+1024}")
    a(f"s_mul_i32 s{sT2}, s{sT1}, {AREA}")
    a(f"s_lshr_b32 s{sKW}, s{sWave}, 1")
    a(f"s_lshl_b32 s{sKW}, s{sKW}, 5")
    a(f"s_add_u32 s{sT2}, s{sT2}, s{sKW}")
    a(f"v_mul_u32_u24 v{vAdr2}, {PITCH}, v{vT1}")
    a(f"v_lshl_add_u32 v{vAdr2}, v{vc}, 3, v{vAdr2}")
    a(f"v_add_u32 v{vAdr2}, s{sT2}, v{vAdr2}")
    a(f"s_mul_i32 s{sT2}, s{sWave}, {AREA}")
    a(f"v_and_b32 v{vT1}, 15, v{vLane}")
    a(f"v_mul_u32_u24 v{vAdr}, {PITCH}, v{vT1}")
    a(f"v_lshl_add_u32 v{vAdr}, v{vq}, 3, v{vAdr}")
    a(f"v_add_u32 v{vAdr}, s{sT2}, v{vAdr}")
    a(f"s_lshl_b32 s{sHead}, s{sTW}, 1")
    a(f"s_add_u32 s{sHead}, s{sHead}, s{sT1}")
    a(f"s_lshl_b32 s{sKW}, s{sTT}, 2")
    a(f"s_lshr_b32 s{sT2}, s{sWave}, 1")
    a(f"s_add_u32 s{sKW}, s{sKW}, s{sT2}")
    a(f"v_lshlrev_b32 v{vOA}, 3, v{vT1}")
    a(f"s_lshl_b32 s{sT2}, s{sKW}, 9")
    a(f"s_add_u32 s{sT2}, s{sT2}, {G_OFF}")
    for i in range(4):
        a(f"buffer_load_dword v{vG+i}, v{vOA}, s[{S_WS}:{S_WS+3}], s{sT2} offen offset:{i*128} sc1")
    a(f"v_lshlrev_b32 v{vOA}, 15, v{vq}")
    a(f"v_lshl_add_u32 v{vOA}, v{vT1}, 4, v{vOA}")
    a(f"s_lshl_b32 s{sKW}, s{sKW}, 10")
    a(f"s_lshl_b32 s{sT2}, s{sHead}, 17")
    a(f"s_add_u32 s{sKW}, s{sKW}, s{sT2}")
    a(f"s_add_u32 s{sKW}, s{sKW}, {OP_OFF}")
    a(f"s_mov_b32 s{sL}, {L2E}")
    a(f"v_mov_b32 v{vZ}, 0")
    if PF_W2:
        srd(a, S_T, 92, 3584 * 2048 * 2)
        srd(a, S_W, 96, 1024 * 1024 * 2)
        a(f"v_lshlrev_b32 v232, 7, v{vLane}")
        a(f"v_lshl_add_u32 v232, s{sWave}, 13, v232")
        a(f"v_lshl_add_u32 v232, s2, 16, v232")
        a(f"v_add_u32 v233, {8*MB}, v232")
        a(f"buffer_load_dword v234, v232, s[{S_T}:{S_T+3}], 0 offen")
    def red4x2(r1, op1, r2, op2, post=None):
        def seq(r, op):
            A, B, C, D = r, r + 2, r + 4, r + 6
            return [[f"v_permlane32_swap_b32 v{A}, v{B}", f"v_permlane32_swap_b32 v{C}, v{D}"],
                    [f"{op} v{A}, v{A}, v{B}", f"{op} v{C}, v{C}, v{D}"],
                    [f"v_permlane16_swap_b32 v{A}, v{C}"],
                    [f"{op} v{A}, v{A}, v{C}"],
                    post(A) if post else [],
                    [f"v_mov_b32 v{C}, v{A}"],
                    [f"v_permlane16_swap_b32 v{A}, v{C}"],
                    [f"v_mov_b32 v{B}, v{A}", f"v_mov_b32 v{D}, v{C}"],
                    [f"v_permlane32_swap_b32 v{A}, v{B}", f"v_permlane32_swap_b32 v{C}, v{D}"]]
        A, B = seq(r1, op1), seq(r2, op2)
        a("s_nop 1")
        for n, (x, y) in enumerate(zip(A, B)):
            for l in x: a(l)
            for l in y: a(l)
            if n in (1, 4, 5): a("s_nop 0")
    def softmax(X, mid=None):
        for i in range(4):
            for h in range(2):
                s0 = ACC + (i * MW + 2 * X + h) * 4
                a(f"v_cvt_pk_bf16_f32 v{24+4*i+2*h}, v{s0}, v{s0+1}")
                a(f"v_cvt_pk_bf16_f32 v{24+4*i+2*h+1}, v{s0+2}, v{s0+3}")
        if X == 1:
            a("s_waitcnt lgkmcnt(0)")
            a(f"v_readfirstlane_b32 s{sE}, v7")
        a("s_nop 1")
        for i in range(4):
            for fb in range(2):
                d = 40 + 8 * i + 4 * fb
                a(f"v_mfma_f32_16x16x32_bf16 v[{d}:{d+3}], v[{vPhiA+4*fb}:{vPhiA+4*fb+3}], v[{24+4*i}:{27+4*i}], 0")
        a("s_nop 3")
        for i in range(4):
            p = 40 + 8 * i
            if i == 3: a("s_nop 0")
            for (op3, op2, dst) in (("v_max3_f32", "v_max_f32", 72 + 2 * i), ("v_min3_f32", "v_min_f32", 80 + 2 * i)):
                a(f"{op3} v{dst}, v{p}, v{p+1}, v{p+2}")
                a(f"{op3} v{dst}, v{dst}, v{p+3}, v{p+4}")
                a(f"{op3} v{dst}, v{dst}, v{p+5}, v{p+6}")
                a(f"{op2} v{dst}, v{dst}, v{p+7}")
        red4x2(72, "v_max_f32", 80, "v_min_f32", post=lambda r: [f"v_mul_f32 v{r}, s{sL}, v{r}"])
        for i in range(4):
            p = 40 + 8 * i; e = ACC + (i * MW + 2 * X) * 4
            for n in range(0, 8, 2):
                a(pk_fma_sL(e + n, p + n, sL, 72 + 2 * i, 0, 1))
                a(pk_fma_sL(p + n, p + n, sL, 80 + 2 * i, 1, 0))
                for z in (e + n, e + n + 1, p + n, p + n + 1): a(f"v_exp_f32 v{z}, v{z}")
                if n == 4:
                    a(pk_add(24, e, e + 2)); a(pk_add(26, p, p + 2))
                if n == 6:
                    a(pk_add(24, 24, e + 4)); a(pk_add(26, 26, p + 4))
            a(pk_add(24, 24, e + 6)); a(pk_add(26, 26, p + 6))
            a(f"v_add_f32 v{72+2*i}, v24, v25")
            a(f"v_add_f32 v{80+2*i}, v26, v27")
            if mid and i == 1: mid()
        red4x2(72, "v_add_f32", 80, "v_add_f32", post=lambda r: [f"v_rcp_f32 v{r}, v{r}"])
        for i in range(4):
            p = 40 + 8 * i; e = ACC + (i * MW + 2 * X) * 4
            for sg, (src, rs) in enumerate(((e, 72 + 2 * i), (p, 80 + 2 * i))):
                for n in range(0, 8, 2):
                    a(pk_mul_b(src + n, src + n, rs))
                o = (88 + 8 * (i % 2) + 4 * sg) if X == 1 else PHQ + (i * 2 + sg) * 4
                for n in range(4):
                    a(f"v_cvt_pk_bf16_f32 v{o+n}, v{src+2*n}, v{src+2*n+1}")
                if X == 1:
                    for fb in range(2):
                        a(f"ds_write_b64 v{vAdr}, v[{o+2*fb}:{o+2*fb+1}] offset:{i*16*PITCH + sg*64 + fb*32}")
    softmax(1)
    stamp(a, 3)
    VAREA = 8 * AREA
    a(f"s_lshl_b32 s{sT2}, s{sWave}, 12")
    a(f"s_add_u32 s{sT2}, s{sT2}, {VAREA}")
    a(f"v_lshlrev_b32 v{vT1}, 4, v{vLane}")
    a(f"v_add_u32 v{vAdr}, s{sT2}, v{vT1}")
    for I in range(2):
        for db in range(2):
            o = 56 + 8 * I + 4 * db
            for h in range(2):
                s0 = ACC + ((2 * I + h) * MW + 4 + db) * 4
                a(f"v_cvt_pk_bf16_f32 v{o+2*h}, v{s0}, v{s0+1}")
                a(f"v_cvt_pk_bf16_f32 v{o+2*h+1}, v{s0+2}, v{s0+3}")
            a(f"ds_write_b128 v{vAdr}, v[{o}:{o+3}] offset:{(I*2+db)*1024}")
    for n in range(4): a(f"v_mov_b32 v{PHQ+n}, 0x3f803f80")
    a(f"s_and_b32 s{sT1}, s{sWave}, 1")
    a(f"s_lshl_b32 s{sT2}, s{sT1}, 12")
    a(f"s_add_u32 s{sT2}, s{sT2}, {VAREA}")
    a(f"v_add_u32 v{vAdr}, s{sT2}, v{vT1}")
    a(f"v_lshlrev_b32 v{vT2}, 2, v{vLane}")
    a(f"s_mul_i32 s{sKT}, s{sHead}, 12288")
    a(f"s_add_u32 s{sKT}, s{sKT}, {KV_OFF}")
    a(f"s_lshr_b32 s{sT2}, s{sWave}, 1")
    a(f"s_lshl_b32 s{sT1}, s{sT2}, 11")
    a(f"s_add_u32 s{sT1}, s{sT1}, s{sKT}")
    a(f"s_lshl_b32 s{sT2}, s{sT2}, 6")
    a(f"s_add_u32 s{sT2}, s{sT2}, s{sKT}")
    a(f"s_add_u32 s{sT2}, s{sT2}, 8192")
    a("s_waitcnt lgkmcnt(0)")
    a("s_barrier")
    stamp(a, 4)
    a("s_waitcnt lgkmcnt(0)") if STAMPS else None
    def VF(n, db): return Dt((n * 2 + db) % 12) if False else ACC + ((n * 2 + db) // 4) * 24 + 8 + ((n * 2 + db) % 4) * 4
    for n in range(8):
        o = 24 + 4 * n
        off = (n >> 1) * 2 * AREA + (n & 1) * 32 * PITCH
        a(f"ds_read_b64_tr_b16 v[{o}:{o+1}], v{vAdr2} offset:{off}")
        a(f"ds_read_b64_tr_b16 v[{o+2}:{o+3}], v{vAdr2} offset:{off + 16*PITCH}")
        for db in range(2):
            a(f"ds_read_b128 v[{VF(n,db)}:{VF(n,db)+3}], v{vAdr} offset:{(n>>1)*8192 + ((n&1)*2+db)*1024}")
        if n == 3 or n == 7:
            for m in range(n - 3, n + 1):
                a(f"s_waitcnt lgkmcnt({(n-m)*4})")
                for db in range(3):
                    d = 88 + 4 * db
                    A = VF(m, db) if db < 2 else PHQ
                    c = f"v[{d}:{d+3}]" if m else "0"
                    a(f"v_mfma_f32_16x16x32_bf16 v[{d}:{d+3}], v[{A}:{A+3}], v[{24+4*m}:{27+4*m}], {c}")
    a("s_nop 6")
    for n in range(8):
        a(f"buffer_atomic_add_f32 v{88+n}, v{vT2}, s[{S_WS}:{S_WS+3}], s{sT1} offen offset:{n*256}")
    a("s_mov_b64 exec, 0xffff")
    a(f"buffer_atomic_add_f32 v96, v{vT2}, s[{S_WS}:{S_WS+3}], s{sT2} offen")
    a("s_mov_b64 exec, -1")
    stamp(a, 5)
    a(f"s_lshl_b32 s{sT1}, s{sTW}, 7")
    a(f"s_add_u32 s{sT1}, s{sT1}, {F_KV}")
    def signal():
        a("s_waitcnt vmcnt(0)")
        a("s_barrier")
        a(f"s_cmp_lg_u32 s{sWave}, 0")
        a("s_cbranch_scc1 L1q_nosig")
        a(f"v_mov_b32 v{vT2}, s{sE}")
        a(f"s_lshl_b32 s{sT2}, s{sTT}, 2")
        a(f"s_add_u32 s{sT2}, s{sT2}, s{sT1}")
        a("s_mov_b64 exec, 1")
        a(f"buffer_store_dword v{vT2}, v{vZ}, s[{S_WS}:{S_WS+3}], s{sT2} offen sc1")
        a("s_mov_b64 exec, -1")
        a.label("L1q_nosig")
        if PF_W2:
            a(f"buffer_load_dword v234, v232, s[{S_W}:{S_W+3}], 0 offen")
            a(f"buffer_load_dword v234, v233, s[{S_T}:{S_T+3}], 0 offen")
    a(f"v_lshlrev_b32 v{vAdr2}, 4, v{vq}")
    a(f"v_lshl_add_u32 v{vAdr}, v{vc}, 8, v{vAdr2}")
    a(f"v_lshl_add_u32 v{vAdr}, v{vr_}, 6, v{vAdr}")
    softmax(0, mid=signal)
    stamp(a, 6)
    a(f"s_cmp_lg_u32 s{sWave}, 0")
    a("s_cbranch_scc1 Lq_kv")
    a(f"v_and_b32 v{vZ}, 7, v{vLane}")
    a(f"v_lshlrev_b32 v{vZ}, 2, v{vZ}")
    poll(a, "kv", vT2, vZ, S_WS, f"s{sT1}", sT2)
    a("s_barrier")
    stamp(a, 7)
    order = (0, 2, 1, 3, 8, 9, 4, 6, 5, 7, 10, 11)
    a(f"s_add_u32 s{sT1}, s{sKT}, 4096")
    a(f"s_add_u32 s{sT2}, s{sKT}, 8192")
    for t in order:
        if t < 8:
            a(f"buffer_load_dwordx4 v[{Dt(t)}:{Dt(t)+3}], v{vAdr}, s[{S_WS}:{S_WS+3}], s{(sKT, sT1)[t // 4]} offen offset:{(t%4)*1024} sc1")
        else:
            a(f"buffer_load_dwordx4 v[{Dt(t)}:{Dt(t)+3}], v{vAdr2}, s[{S_WS}:{S_WS+3}], s{sT2} offen offset:{(t-8)*64} sc1")
    for sg in range(2):
        a(f"s_waitcnt vmcnt({6 if sg == 0 else 0})")
        for db in range(3):
            o = 72 + (db * 2 + sg) * 4
            for h in range(2):
                fk = 2 * sg + h
                t = fk * 2 + db if db < 2 else 8 + fk
                a(f"v_cvt_pk_bf16_f32 v{o+2*h}, v{Dt(t)}, v{Dt(t)+1}")
                a(f"v_cvt_pk_bf16_f32 v{o+2*h+1}, v{Dt(t)+2}, v{Dt(t)+3}")
        a("s_nop 0")
        for db in range(3):
            for i in range(4):
                d = 24 + (i * 3 + db) * 4; o = 72 + (db * 2 + sg) * 4; b = PHQ + (i * 2 + sg) * 4
                c = f"v[{d}:{d+3}]" if sg else "0"
                a(f"v_mfma_f32_16x16x32_bf16 v[{d}:{d+3}], v[{o}:{o+3}], v[{b}:{b+3}], {c}")
    a("s_nop 7")
    for i in range(4):
        a(f"v_add_f32 v{96+2*i}, 0x358637bd, v{24+(i*3+2)*4}")
    for i in range(4):
        a(f"v_rcp_f32 v{96+2*i}, v{96+2*i}")
    a("s_nop 0")
    for i in range(4):
        a(f"v_mul_f32 v{96+2*i}, v{96+2*i}, v{vG+i}")
    for i in range(4):
        d = 24 + i * 12
        for n in range(0, 8, 2):
            a(pk_mul_b(d + n, d + n, 96 + 2 * i))
        for n in range(4):
            a(f"v_cvt_pk_bf16_f32 v{PHQ+4*i+n}, v{d+2*n}, v{d+2*n+1}")
        a(f"buffer_store_dwordx4 v[{PHQ+4*i}:{PHQ+4*i+3}], v{vOA}, s[{S_WS}:{S_WS+3}], s{sKW} offen offset:{i*256} {WT}")
    a("s_branch L1_fin")

    a.label("L1_g1")
    NS, TB, WB = 3, 16384, 28672
    SB = TB + WB
    MT, MW = 4, 7
    vDT = [8, 9, 10, 11]; vDW = [12, 13, 14, 15, 16, 17, 18]
    vRT = [20, 21, 22]; vRE = [23, 24, 25]; vRO = [26, 27, 28]; vR6 = [29, 30, 31]
    vF = [32, 76]; ACC = 120
    LDW = 7168
    srd(a, S_T, 4, 2048 * 1024 * 2)
    srd(a, 56, 100, 2048)
    srd(a, S_WS, sWSp, WS_BYTES)
    srd(a, S_W, 40, 2048 * 3584 * 2)
    srd(a, S_AUX, 42, 7168)
    a("s_and_b32 s39, s2, 127")
    def g_rdT(slot): return [(vRT[slot], i * 256) for i in range(MT)]
    def g_rdW(slot): return [((vRO if b & 1 else vRE)[slot], (b >> 1) * 4096, (b >> 1) * 4096 + 256) for b in range(6)] + [(vR6[slot], 0, 256)]
    def g_mf(fT, fW):
        m = []
        for i in range(MT):
            for j in range(MW):
                d = ACC + (i * MW + j) * 4
                m.append(f"v_mfma_f32_16x16x32_bf16 v[{d}:{d+3}], v[{fW(j)}:{fW(j)+3}], v[{fT(i)}:{fT(i)+3}], v[{d}:{d+3}]")
        return m
    pg = Part(srdT=S_T, srdW=S_W, vDT=vDT, vDW=vDW, stT=8 * 16384, stW=64 * LDW, rdT=g_rdT, rdW=g_rdW, mf=g_mf)
    core = Core(a, "g", NS, SB, TB, MT, MW, vF, sW1024, sN, sRho, sKT, sKW, sT1, sT2, sCnt)
    pg.auxT = "sc1"
    def hook():
        a(f"v_lshrrev_b32 v{vT1}, 2, v{vLane}")
        a(f"v_mul_u32_u24 v{vT1}, {LDW}, v{vT1}")
        a(f"v_lshl_add_u32 v{vT1}, v{vc}, 4, v{vT1}")
        a(f"v_and_b32 v{vT2}, 32, v{vLane}")
        a(f"v_xor_b32 v{vT1}, v{vT2}, v{vT1}")
        a(f"s_mul_i32 s{sT1}, s{sWave}, {16*LDW}")
        a(f"s_mul_i32 s{sT2}, s{sTW}, 448")
        a(f"s_add_u32 s{sT1}, s{sT1}, s{sT2}")
        for j, v in enumerate(vDW):
            a(f"s_add_u32 s{sT2}, s{sT1}, {j*64}")
            a(f"v_add_u32 v{v}, s{sT2}, v{vT1}")
        a(f"s_cmp_ge_u32 s{sWave}, 4")
        a("s_cbranch_scc1 L1g_h1")
        core.prologue(pg, True, "W")
        a(f"s_waitcnt vmcnt({NS*7})")
        a("s_branch L1g_h2")
        a.label("L1g_h1")
        for i in range(4): a(f"v_mov_b32 v{32+i}, 0")
        a(f"v_lshlrev_b32 v{vT1}, 4, v{vLane}")
        a(f"v_lshl_add_u32 v{vT1}, s39, 12, v{vT1}")
        a(f"s_add_u32 s{sT1}, s{sW1024}, {KV_OFF}")
        a(f"buffer_store_dwordx4 v[32:35], v{vT1}, s[{S_WS}:{S_WS+3}], s{sT1} offen sc1")
        npf = 0
        if PF_W1:
            a(f"v_lshlrev_b32 v39, 7, v{vLane}")
            a(f"v_lshl_add_u32 v39, s{sW1024}, 3, v39")
            a(f"v_lshl_add_u32 v39, s39, 15, v39")
            for n in range(4):
                if n: a(f"v_add_u32 v39, {4*MB}, v39")
                a(f"buffer_load_dword v40, v39, s[{S_W}:{S_W+3}], 0 offen")
            npf = 4
        a(f"s_cmp_lg_u32 s{sWave}, 4")
        a("s_cbranch_scc1 L1g_h3")
        a("s_memrealtime s[88:89]")
        a("v_mov_b32 v37, 0")
        a("s_waitcnt lgkmcnt(0)")
        a("s_or_b32 s88, s88, 1")
        a("v_mov_b32 v36, s88")
        a("v_mov_b32 v38, s88")
        a("s_mov_b64 exec, 1")
        a(f"buffer_atomic_cmpswap v[36:37], v37, s[{S_DBG}:{S_DBG+3}], 0 offen sc0 sc1")
        a("s_mov_b64 exec, -1")
        a(f"s_waitcnt vmcnt({2+npf})")
        a("s_branch L1g_h2")
        a.label("L1g_h3")
        a(f"s_waitcnt vmcnt({1+npf})")
        a.label("L1g_h2")
    ln_phase(a, 120, S_T, 56, S_WS, sWave, 39, hook)
    stamp(a, 2)
    srd(a, S_T, sWSp, 4 * MB, HT_OFF)
    a(f"s_mov_b32 s{sN}, 0")
    a(f"v_lshlrev_b32 v{vT1}, 4, v{vLane}")
    a(f"s_lshr_b32 s{sT1}, s{sWave}, 1")
    a(f"s_lshl_b32 s{sT1}, s{sT1}, 14")
    a(f"s_and_b32 s{sT2}, s{sWave}, 1")
    a(f"s_lshl_b32 s{sT2}, s{sT2}, 10")
    a(f"s_add_u32 s{sT1}, s{sT1}, s{sT2}")
    a(f"s_lshl_b32 s{sT2}, s{sTT}, 11")
    a(f"s_add_u32 s{sT1}, s{sT1}, s{sT2}")
    for j, v in enumerate(vDT):
        a(f"s_add_u32 s{sT2}, s{sT1}, {j*2*16384}")
        a(f"v_add_u32 v{v}, s{sT2}, v{vT1}")
    a(f"s_mul_i32 s{sT1}, s{sTW}, 448")
    a(f"s_and_b32 s{sT2}, s{sWave}, 1")
    a(f"s_lshl_b32 s{sKT}, s{sT2}, 8")
    a(f"s_add_u32 s{sKT}, s{sKT}, s{sT1}")
    a(f"s_lshl_b32 s{sT2}, s{sT2}, 5")
    a(f"s_add_u32 s{sT1}, s{sT1}, s{sT2}")
    a(f"v_lshlrev_b32 v{vT1}, 3, v{vq}")
    for b in range(6):
        a(f"buffer_load_dwordx2 v[{76+2*b}:{77+2*b}], v{vT1}, s[{S_AUX}:{S_AUX+3}], s{sKT} offen offset:{32*b}")
    a(f"buffer_load_dwordx2 v[88:89], v{vT1}, s[{S_AUX}:{S_AUX+3}], s{sT1} offen offset:192")
    phase3_pre(a)
    a(f"v_and_b32 v{vT1}, 15, v{vLane}")
    a(f"v_lshlrev_b32 v{vT1}, 4, v{vT1}")
    a(f"v_lshl_add_u32 v{vT1}, v{vq}, 11, v{vT1}")
    a(f"s_lshr_b32 s{sT1}, s{sWave}, 2")
    a(f"s_lshl_b32 s{sT1}, s{sT1}, 13")
    a(f"s_bfe_u32 s{sT2}, s{sWave}, 0x10001")
    a(f"s_lshl_b32 s{sT2}, s{sT2}, 10")
    a(f"s_add_u32 s{sT1}, s{sT1}, s{sT2}")
    for s in range(NS):
        a(f"s_add_u32 s{sT2}, s{sT1}, {s*SB}")
        a(f"v_add_u32 v{vRT[s]}, s{sT2}, v{vT1}")
    a(f"v_lshlrev_b32 v{vT1}, 9, v{vq}")
    a(f"v_lshl_add_u32 v{vT1}, v{vr_}, 6, v{vT1}")
    a(f"v_and_b32 v{vT2}, 1, v{vq}")
    a(f"v_lshl_add_u32 v{vT1}, v{vT2}, 5, v{vT1}")
    a(f"v_lshl_add_u32 v{vT1}, v{vc}, 3, v{vT1}")
    a(f"v_xor_b32 v{vT2}, 32, v{vT1}")
    a(f"s_lshr_b32 s{sT1}, s{sWave}, 2")
    a(f"s_lshl_b32 s{sT1}, s{sT1}, 11")
    a(f"s_add_u32 s{sT1}, s{sT1}, {TB}")
    a(f"s_and_b32 s{sT2}, s{sWave}, 1")
    a(f"s_lshl_b32 s{sKT}, s{sT2}, 5")
    a(f"v_xor_b32 v7, s{sKT}, v{vT1}")
    a(f"s_lshl_b32 s{sKT}, s{sT2}, 14")
    a(f"s_add_u32 s{sKT}, s{sKT}, s{sT1}")
    for s in range(NS):
        a(f"s_add_u32 s{sT2}, s{sKT}, {s*SB}")
        a(f"v_add_u32 v{vRE[s]}, s{sT2}, v{vT1}")
        a(f"v_add_u32 v{vRO[s]}, s{sT2}, v{vT2}")
        a(f"s_add_u32 s{sT2}, s{sT1}, {s*SB + 3*4096}")
        a(f"v_add_u32 v{vR6[s]}, s{sT2}, v7")
    def g_epi(kg):
        stamp(a, 1)
        stamp_cyc(a, CYC + 2)
        keep = (0, 1) if kg == 0 else (2, 3)
        send = (2, 3) if kg == 0 else (0, 1)
        a(f"s_mul_i32 s{sT1}, s{sW1024}, 28")
        a(f"v_lshlrev_b32 v{vT1}, 4, v{vLane}")
        a(f"v_add_u32 v{vT1}, s{sT1}, v{vT1}")
        a(f"v_and_b32 v{vT2}, 15, v{vLane}")
        a(f"v_lshlrev_b32 v{vT2}, 4, v{vT2}")
        a(f"v_lshl_add_u32 v{vT2}, v{vq}, 14, v{vT2}")
        a(f"s_lshl_b32 s{sT1}, s{sTT}, 11")
        a(f"s_bfe_u32 s{sT2}, s{sWave}, 0x10001")
        a(f"s_lshl_b32 s{sT2}, s{sT2}, 10")
        a(f"s_add_u32 s{sT1}, s{sT1}, s{sT2}")
        a(f"s_add_u32 s{sT1}, s{sT1}, {U_OFF}")
        a(f"v_add_u32 v{vT2}, s{sT1}, v{vT2}")
        a(f"s_mul_i32 s{sN}, s{sTW}, 7")
        a(f"s_and_b32 s{sT2}, s{sWave}, 1")
        a(f"s_add_u32 s{sKW}, s{sN}, 3")
        a(f"s_lshl_b32 s{sKW}, s{sKW}, 16")
        a(f"s_lshl_b32 s{sT1}, s{sT2}, 3")
        a(f"s_add_u32 s{sKW}, s{sKW}, s{sT1}")
        a(f"s_lshl_b32 s{sT2}, s{sT2}, 2")
        a(f"s_add_u32 s{sN}, s{sN}, s{sT2}")
        a(f"s_lshl_b32 s{sN}, s{sN}, 16")
        a("s_barrier")
        a("s_nop 4")
        for n in range(14):
            r = ACC + (send[0] * MW + n) * 4
            a(f"ds_write_b128 v{vT1}, v[{r}:{r+3}] offset:{kg*14336 + n*1024}")
        a("s_waitcnt lgkmcnt(0)")
        a("s_barrier")
        for n in range(14):
            a(f"ds_read_b128 v[{32+4*n}:{35+4*n}], v{vT1} offset:{(1-kg)*14336 + n*1024}")
        import struct, math
        f2u = lambda f: struct.unpack("<I", struct.pack("<f", f))[0]
        c0 = -2 * math.sqrt(2 / math.pi) * math.log2(math.e)
        a(f"s_mov_b32 s{sKT}, {f2u(c0 * 0.044715):#x}")
        a(f"v_mov_b32 v6, {f2u(c0):#x}")
        for n in range(14):
            a(f"s_waitcnt lgkmcnt({13-n})")
            i = keep[n // 7]; b = n % 7
            r = ACC + (i * MW + b) * 4; t = 32 + 4 * n; w = 96 + 4 * (((n // 7) * 4 + b // 2) % 4) + 2 * (b & 1)
            for e in (0, 2): a(pk_add(r + e, r + e, t + e))
            for e in (0, 2): a(f"v_pk_mul_f32 v[{t+e}:{t+e+1}], v[{r+e}:{r+e+1}], v[{r+e}:{r+e+1}]")
            for e in (0, 2): a(pk_fma_sL(t + e, t + e, sKT, 6, 0, 0))
            for e in (0, 2): a(f"v_pk_mul_f32 v[{t+e}:{t+e+1}], v[{t+e}:{t+e+1}], v[{r+e}:{r+e+1}]")
            for e in range(4): a(f"v_exp_f32 v{t+e}, v{t+e}")
            if b & 1: a(f"s_add_u32 s{sT1}, s{sN}, {(b//2) << 16}")
            else: a("s_nop 0")
            for e in (0, 2): a(f"v_pk_add_f32 v[{t+e}:{t+e+1}], v[{t+e}:{t+e+1}], 1.0 op_sel_hi:[1,0]")
            for e in range(4): a(f"v_rcp_f32 v{t+e}, v{t+e}")
            a("s_nop 0")
            for e in (0, 2): a(f"v_pk_mul_f32 v[{r+e}:{r+e+1}], v[{r+e}:{r+e+1}], v[{t+e}:{t+e+1}]")
            a(f"v_cvt_pk_bf16_f32 v{w}, v{r}, v{r+1}")
            a(f"v_cvt_pk_bf16_f32 v{w+1}, v{r+2}, v{r+3}")
            if b == 6:
                a(f"buffer_store_dwordx2 v[{w}:{w+1}], v{vT2}, s[{S_WS}:{S_WS+3}], s{sKW} offen offset:{i*256} {WT}")
            elif b & 1:
                a(f"buffer_store_dwordx4 v[{w-2}:{w+1}], v{vT2}, s[{S_WS}:{S_WS+3}], s{sT1} offen offset:{i*256} {WT}")
        for z in (5, 6, 7): stamp(a, z)
    a("s_waitcnt vmcnt(0)")
    a(f"v_mov_b32 v{vT1}, {90112+256}")
    a(f"s_cmp_lg_u32 s{sWave}, 4")
    a("s_cbranch_scc1 L1g_ne")
    a("v_cmp_eq_u32 vcc, 0, v36")
    a("s_nop 1")
    a("v_cndmask_b32 v36, v36, v38, vcc")
    a("s_mov_b64 exec, 1")
    a(f"ds_write_b32 v{vT1}, v36")
    a("s_mov_b64 exec, -1")
    a("s_waitcnt lgkmcnt(0)")
    a.label("L1g_ne")
    a("s_barrier")
    a(f"ds_read_b32 v{vT2}, v{vT1}")
    a(f"v_lshlrev_b32 v{vT1}, 9, v{vLane}")
    a(f"s_lshl_b32 s{sT1}, s39, 2")
    a(f"s_add_u32 s{sT1}, s{sT1}, {F_LN}")
    a("s_waitcnt lgkmcnt(0)")
    a(f"v_readfirstlane_b32 s{sE}, v{vT2}")
    stamp(a, 3)
    a(f"s_cmp_ge_u32 s{sWave}, 4")
    a("s_cbranch_scc1 L1g_nold")
    a(f"s_cmp_lg_u32 s{sWave}, 0")
    a("s_cbranch_scc1 L1g_nf")
    a("s_mov_b64 exec, 0xff")
    a(f"buffer_store_dword v{vT2}, v{vT1}, s[{S_WS}:{S_WS+3}], s{sT1} offen sc1")
    a("s_mov_b64 exec, -1")
    a.label("L1g_nf")
    for b in range(7):
        for h in range(2):
            d = ACC + b * 4 + 2 * h
            a(f"v_lshlrev_b32 v{d}, 16, v{76+2*b+h}")
            a(f"v_and_b32 v{d+1}, 0xffff0000, v{76+2*b+h}")
    for i in range(1, 4):
        for n in range(28):
            a(f"v_mov_b32 v{ACC+i*28+n}, v{ACC+n}")
    a("s_barrier")
    stamp(a, 4)
    core.prologue(pg, True, "T")
    core.fs = 0; core.first(pg, True, vm=0); core.run(pg, 32, True)
    g_epi(0)
    a("s_branch L1_fin")
    a.label("L1g_nold")
    for i in range(MT * MW * 4):
        a(f"v_mov_b32 v{ACC+i}, 0")
    a(f"s_cmp_lg_u32 s{sWave}, 4")
    a("s_cbranch_scc1 Lq_lng")
    a(f"v_lshlrev_b32 v{vT1}, 3, v{vLane}")
    a(f"s_and_b32 s{sT2}, s2, 7")
    a(f"s_lshl_b32 s{sT2}, s{sT2}, 9")
    a(f"s_add_u32 s{sT2}, s{sT2}, {F_LN}")
    poll(a, "lng", 36, vT1, S_WS, f"s{sT2}", sT1, wide=True)
    a("s_barrier")
    core.fs = 0; core.first(pg, False); core.run(pg, 32, False)
    g_epi(1)
    a.label("L1_fin")
    if FUSE:
        phase3(a)
        stamp_end(a, 13, 0, sWave, 8, sWSp, 8, "L1_st")
    else:
        stamp_end(a, 9, 1, sWave, 8, sWSp, S_AUX, "L1_st")
    a.label("L1_end")
    a("s_endpgm")
    return dict(name=name, grid=256, block=512, lds=135168, vgpr=256 if FUSE else 232)


def gen_k2(a):
    name = "k2_kernel"
    kernel_header(a, name)
    S_WS = 8
    a("s_cmp_ge_u32 s2, 256")
    a("s_cbranch_scc1 L2_end")
    a(f"s_load_dwordx2 s[4:5], s[0:1], {A_WS}")
    stamp(a, 0)
    stamp_cyc(a, CYC)
    stamp_cyc(a, CYC + 2)
    a("v_lshrrev_b32 v2, 6, v0")
    a("v_and_b32 v1, 63, v0")
    a("v_readfirstlane_b32 s20, v2")
    a("v_lshlrev_b32 v3, 4, v1")
    a("s_and_b32 s21, s2, 31")
    a("s_lshr_b32 s22, s2, 5")
    a("s_lshl_b32 s22, s22, 2")
    a("s_add_u32 s22, s22, s20")
    a("s_mul_i32 s23, s21, 12288")
    a(f"s_add_u32 s23, s23, {KV_OFF}")
    a("s_lshl_b32 s24, s21, 7")
    a("s_lshl_b32 s25, s22, 2")
    a("s_add_u32 s24, s24, s25")
    a("s_lshl_b32 s24, s24, 11")
    a(f"s_add_u32 s24, s24, {PQ_OFF}")
    a("v_and_b32 v4, 15, v1")
    a("v_lshlrev_b32 v5, 3, v4")
    a("s_lshl_b32 s25, s22, 9")
    a(f"s_add_u32 s25, s25, {G_OFF}")
    a("s_waitcnt lgkmcnt(0)")
    srd(a, S_WS, 4, WS_BYTES)
    for t in range(12):
        if t % 4 == 0 and t: a("s_add_u32 s23, s23, 4096")
        a(f"buffer_load_dwordx4 v[{16+4*t}:{19+4*t}], v3, s[8:11], s23 offen offset:{(t%4)*1024}")
    for n in range(8):
        if n == 4: a("s_add_u32 s24, s24, 4096")
        a(f"buffer_load_dwordx4 v[{64+4*n}:{67+4*n}], v3, s[8:11], s24 offen offset:{(n%4)*1024}")
    for i in range(4):
        a(f"buffer_load_dword v{8+i}, v5, s[8:11], s25 offen offset:{i*128}")
    a("v_lshrrev_b32 v6, 4, v1")
    a("v_lshlrev_b32 v6, 15, v6")
    a("v_lshl_add_u32 v6, v4, 4, v6")
    a("s_lshl_b32 s26, s21, 17")
    a("s_lshl_b32 s27, s22, 10")
    a("s_add_u32 s26, s26, s27")
    a(f"s_add_u32 s26, s26, {OP_OFF}")
    a("s_waitcnt vmcnt(12)")
    for db in range(3):
        for sg in range(2):
            o = 96 + (db * 2 + sg) * 4
            for h in range(2):
                fk = 2 * sg + h
                t = fk * 2 + db if db < 2 else 8 + fk
                a(f"v_cvt_pk_bf16_f32 v{o+2*h}, v{16+4*t}, v{17+4*t}")
                a(f"v_cvt_pk_bf16_f32 v{o+2*h+1}, v{18+4*t}, v{19+4*t}")
    a("s_waitcnt vmcnt(4)")
    for sg in range(2):
        for i in range(4):
            for db in range(3):
                d = 16 + (i * 3 + db) * 4; o = 96 + (db * 2 + sg) * 4; b = 64 + (i * 2 + sg) * 4
                c = f"v[{d}:{d+3}]" if sg else "0"
                a(f"v_mfma_f32_16x16x32_bf16 v[{d}:{d+3}], v[{o}:{o+3}], v[{b}:{b+3}], {c}")
    a("s_waitcnt vmcnt(0)")
    a("s_nop 7")
    for i in range(4):
        a(f"v_add_f32 v{12+i}, 0x358637bd, v{16+(i*3+2)*4}")
    for i in range(4):
        a(f"v_rcp_f32 v{12+i}, v{12+i}")
    a("s_nop 0")
    for i in range(4):
        a(f"v_mul_f32 v{12+i}, v{12+i}, v{8+i}")
    for i in range(4):
        d = 16 + i * 12
        for n in range(8):
            a(f"v_mul_f32 v{d+n}, v{d+n}, v{12+i}")
        for n in range(4):
            a(f"v_cvt_pk_bf16_f32 v{64+4*i+n}, v{d+2*n}, v{d+2*n+1}")
        a(f"buffer_store_dwordx4 v[{64+4*i}:{67+4*i}], v6, s[8:11], s26 offen offset:{i*256}")
    stamp_end(a, 2, 2, 20, 16, 4, 12, "L2_st")
    a.label("L2_end")
    a("s_endpgm")
    return dict(name=name, grid=256, block=256, lds=0, vgpr=120)

def gen_k3(a):
    name = "k3_kernel"
    kernel_header(a, name)
    S_U, S_W2, S_OP, S_WO, S_WS, S_OUT = 8, 12, 16, 20, 24, 56
    sWave, sW1024, sN, sRho, sKT, sKW, sT1, sT2, sCnt, sTD, sTS = 28, 29, 30, 31, 32, 33, 34, 35, 36, 37, 38
    sWSp = 44
    ST = 48
    vLane, vT1, vT2, vq, vr_, vc = 1, 2, 3, 4, 5, 6
    NS, TB, SB = 4, 16384, 32768
    vD1T = [8, 9, 10, 11]; vD1W = [12, 13, 14, 15]; vD2T = [16, 17, 18, 19]; vD2W = [20, 21, 22, 23]
    vR1T = [24, 25]; vR1E = [26, 27]; vR1O = [28, 29]; vR2T = [30, 31]; vR2E = [32, 33]; vR2O = [34, 35]
    vOMG = 36; vB2 = 44
    vF = [52, 84]; ACC = 116
    a("s_cmp_ge_u32 s2, 256")
    a("s_cbranch_scc1 L3_end")
    a(f"s_load_dwordx2 s[{sWSp}:{sWSp+1}], s[0:1], {A_WS}")
    a(f"s_load_dwordx4 s[4:7], s[0:1], {A_W2}")
    a(f"s_load_dwordx2 s[40:41], s[0:1], {A_WO}")
    a(f"s_load_dwordx2 s[42:43], s[0:1], {A_OUT}")
    stamp(a, 0)
    stamp_cyc(a, CYC)
    a(f"v_lshrrev_b32 v{vT1}, 6, v0")
    a(f"v_and_b32 v{vLane}, 63, v0")
    a(f"v_readfirstlane_b32 s{sWave}, v{vT1}")
    lane_bits(a, vLane, vq, vr_, vc)
    a(f"s_lshr_b32 s{sT2}, s2, 3")
    a(f"s_bfe_u32 s{sTD}, s2, 0x10001")
    a(f"s_lshl_b32 s{sTD}, s{sTD}, 2")
    a(f"s_and_b32 s3, s{sT2}, 3")
    a(f"s_add_u32 s{sTD}, s{sTD}, s3")
    a(f"s_bfe_u32 s{sTS}, s2, 0x10002")
    a(f"s_lshl_b32 s{sTS}, s{sTS}, 3")
    a(f"s_lshr_b32 s{sRho}, s{sT2}, 2")
    a(f"s_add_u32 s{sTS}, s{sTS}, s{sRho}")
    a(f"s_add_u32 s{sRho}, s{sRho}, s3")
    a(f"s_and_b32 s{sW1024}, s{sWave}, 3")
    a(f"s_lshl_b32 s{sW1024}, s{sW1024}, 10")
    a(f"s_and_b32 s{sN}, s2, 1")
    a(f"s_mul_i32 s{sN}, s{sN}, 36")
    a("s_waitcnt lgkmcnt(0)")
    srd(a, S_U, sWSp, 448 * 16384, U_OFF)
    srd(a, S_W2, 4, 3584 * 2048 * 2)
    srd(a, S_OP, sWSp, 4 * MB, OP_OFF)
    srd(a, S_WO, 40, 1024 * 1024 * 2)
    srd(a, S_WS, sWSp, WS_BYTES)
    srd(a, S_OUT, 6, 4096)
    a(f"v_lshlrev_b32 v{vT1}, 4, v{vLane}")
    for (vD, R16, sTile) in ((vD1T, 16384, sTD), (vD2T, 32768, sTS)):
        a(f"s_bfe_u32 s{sT1}, s{sWave}, 0x10001")
        a(f"s_mul_i32 s{sT1}, s{sT1}, {R16}")
        a(f"s_and_b32 s{sT2}, s{sWave}, 1")
        a(f"s_lshl_b32 s{sT2}, s{sT2}, 10")
        a(f"s_add_u32 s{sT1}, s{sT1}, s{sT2}")
        a(f"s_lshl_b32 s{sT2}, s{sTile}, 11")
        a(f"s_add_u32 s{sT1}, s{sT1}, s{sT2}")
        for j, v in enumerate(vD):
            a(f"s_add_u32 s{sT2}, s{sT1}, {j*2*R16}")
            a(f"v_add_u32 v{v}, s{sT2}, v{vT1}")
    for (vD, LD, sTile) in ((vD1W, 4096, sTS), (vD2W, 2048, sTD)):
        a(f"v_bfe_u32 v{vT1}, v{vLane}, 2, 3")
        a(f"v_mul_u32_u24 v{vT1}, {LD}, v{vT1}")
        a(f"v_lshrrev_b32 v{vT2}, 5, v{vLane}")
        a(f"v_lshl_add_u32 v{vT1}, v{vT2}, 6, v{vT1}")
        a(f"v_lshl_add_u32 v{vT1}, v{vc}, 4, v{vT1}")
        a(f"v_and_b32 v{vT2}, 16, v{vLane}")
        a(f"v_lshlrev_b32 v{vT2}, 1, v{vT2}")
        a(f"v_xor_b32 v{vT1}, v{vT2}, v{vT1}")
        a(f"s_mul_i32 s{sT1}, s{sW1024}, {8*LD//1024}")
        a(f"s_lshl_b32 s{sT2}, s{sTile}, 8")
        a(f"s_add_u32 s{sT1}, s{sT1}, s{sT2}")
        for j, v in enumerate(vD):
            a(f"s_add_u32 s{sT2}, s{sT1}, {(j&1)*32*LD + (j>>1)*128}")
            a(f"v_add_u32 v{v}, s{sT2}, v{vT1}")
    def rdT(vR): return lambda slot: [(vR[slot // 2], (slot % 2) * SB + i * 256) for i in range(4)]
    def rdW(vE, vO): return lambda slot: [((vO if b & 1 else vE)[slot // 2], (slot % 2) * SB + (b >> 1) * 512, (slot % 2) * SB + (b >> 1) * 512 + 2048) for b in range(4)]
    def mf1(fT, fW):
        return [f"v_mfma_f32_16x16x32_bf16 v[{ACC+(i*4+j)*4}:{ACC+(i*4+j)*4+3}], v[{fT(i)}:{fT(i)+3}], v[{fW(j)}:{fW(j)+3}], v[{ACC+(i*4+j)*4}:{ACC+(i*4+j)*4+3}]" for i in range(4) for j in range(4)]
    def mf2(fT, fW):
        return [f"v_mfma_f32_16x16x32_bf16 v[{ACC+(i*4+j)*4}:{ACC+(i*4+j)*4+3}], v[{fW(i)}:{fW(i)+3}], v[{fT(j)}:{fT(j)+3}], v[{ACC+(i*4+j)*4}:{ACC+(i*4+j)*4+3}]" for j in range(4) for i in range(4)]
    p1 = Part(srdT=S_U, srdW=S_W2, vDT=vD1T, vDW=vD1W, stT=8 * 16384, stW=64 * 4096, rdT=rdT(vR1T), rdW=rdW(vR1E, vR1O), mf=mf1)
    p2 = Part(srdT=S_OP, srdW=S_WO, vDT=vD2T, vDW=vD2W, stT=8 * 32768, stW=64 * 2048, rdT=rdT(vR2T), rdW=rdW(vR2E, vR2O), mf=mf2)
    core = Core(a, "k3", NS, SB, TB, 4, 4, vF, sW1024, sN, sRho, sKT, sKW, sT1, sT2, sCnt)
    a(f"v_and_b32 v{vT1}, 15, v{vLane}")
    a(f"s_lshl_b32 s{sT1}, s{sTS}, 7")
    a(f"s_and_b32 s{sT2}, s{sWave}, 1")
    a(f"s_lshl_b32 s{sT2}, s{sT2}, 6")
    a(f"s_add_u32 s{sT1}, s{sT1}, s{sT2}")
    a(f"v_add_u32 v7, s{sT1}, v{vT1}")
    a(f"v_lshlrev_b32 v{vT1}, 3, v7")
    a(f"v_lshlrev_b32 v{vT2}, 1, v7")
    a(f"s_mov_b32 s{sT1}, {G_OFF+4}")
    for j in range(4):
        a(f"buffer_load_dword v{vOMG+2*j}, v{vT1}, s[{S_WS}:{S_WS+3}], s{sT1} offen offset:{j*128}")
        a(f"buffer_load_ushort v{vB2+2*j}, v{vT2}, s[{S_OUT}:{S_OUT+3}], 0 offen offset:{j*32}")
    a(f"s_cmp_ge_u32 s{sWave}, 4")
    a("s_cbranch_scc1 L3_nold0")
    core.prologue(p1, True)
    a.label("L3_nold0")
    a(f"v_and_b32 v{vT1}, 15, v{vLane}")
    a(f"v_lshlrev_b32 v{vT1}, 4, v{vT1}")
    a(f"v_lshl_add_u32 v{vT1}, v{vq}, 11, v{vT1}")
    a(f"s_lshr_b32 s{sT1}, s{sWave}, 2")
    a(f"s_lshl_b32 s{sT1}, s{sT1}, 13")
    a(f"v_add_u32 v{vT1}, s{sT1}, v{vT1}")
    a(f"s_bfe_u32 s{sKT}, s{sWave}, 0x10001")
    a(f"s_and_b32 s{sKW}, s{sWave}, 1")
    for vR, sel in ((vR1T, sKT), (vR2T, sKW)):
        a(f"s_lshl_b32 s{sT2}, s{sel}, 10")
        a(f"v_add_u32 v{vR[0]}, s{sT2}, v{vT1}")
        a(f"v_add_u32 v{vR[1]}, {2*SB}, v{vR[0]}")
    a(f"v_lshrrev_b32 v{vT1}, 1, v{vq}")
    a(f"v_lshlrev_b32 v{vT1}, 10, v{vT1}")
    a(f"v_and_b32 v{vT2}, 1, v{vq}")
    a(f"v_mul_u32_u24 v{vT2}, 288, v{vT2}")
    a(f"v_add_u32 v{vT1}, v{vT2}, v{vT1}")
    a(f"v_lshl_add_u32 v{vT1}, v{vr_}, 6, v{vT1}")
    a(f"v_lshl_add_u32 v{vT1}, v{vc}, 3, v{vT1}")
    a(f"s_lshr_b32 s{sT1}, s{sT1}, 1")
    a(f"s_add_u32 s{sT1}, s{sT1}, {TB}")
    a(f"v_add_u32 v{vT1}, s{sT1}, v{vT1}")
    for vE, vO, sel in ((vR1E, vR1O, sKW), (vR2E, vR2O, sKT)):
        a(f"s_lshl_b32 s{sT2}, s{sel}, 13")
        a(f"v_add_u32 v{vE[0]}, s{sT2}, v{vT1}")
        a(f"v_add_u32 v{vE[1]}, {2*SB}, v{vE[0]}")
        a(f"v_xor_b32 v{vO[0]}, 32, v{vE[0]}")
        a(f"v_xor_b32 v{vO[1]}, 32, v{vE[1]}")
    for i in range(64):
        a(f"v_mov_b32 v{ACC+i}, 0")

    def epi(role, kg):
        tag = f"{role}{kg}"
        stamp(a, 1)
        stamp_cyc(a, CYC + 2)
        keep = (0, 1) if kg == 0 else (2, 3)
        send = (2, 3) if kg == 0 else (0, 1)
        a(f"s_lshl_b32 s{sT1}, s{sW1024}, 4")
        a(f"v_lshlrev_b32 v{vT1}, 4, v{vLane}")
        a(f"v_add_u32 v{vT2}, s{sT1}, v{vT1}")
        srd(a, S_OUT, 42, 2048 * 1024 * 2)
        a(f"s_lshl_b32 s{sKT}, s2, 3")
        a(f"s_add_u32 s{sKT}, s{sKT}, s{sWave}")
        a(f"s_lshl_b32 s{sKT}, s{sKT}, 12")
        a(f"s_add_u32 s{sKT}, s{sKT}, {XCH_OFF}")
        a(f"s_xor_b32 s{sKW}, s{sKT}, {8*4096}")
        a("s_barrier")
        for n in range(8):
            r = ACC + send[0] * 16 + 4 * n
            a(f"ds_write_b128 v{vT2}, v[{r}:{r+3}] offset:{kg*8192 + n*1024}")
        a("s_waitcnt lgkmcnt(0)")
        a("s_barrier")
        for n in range(8):
            a(f"ds_read_b128 v[{52+4*n}:{55+4*n}], v{vT2} offset:{(1-kg)*8192 + n*1024}")
        K0 = ACC + keep[0] * 16
        jk = (0, 2) if role == 0 else (1, 3)
        js = (1, 3) if role == 0 else (0, 2)
        order = [(ii, j) for j in js for ii in range(2)] + [(ii, j) for j in jk for ii in range(2)]
        a("s_waitcnt lgkmcnt(0)")
        cnt = 0
        for (ii, j) in order:
            n = ii * 4 + j; r = K0 + 4 * n
            for e in (0, 2): a(pk_add(r + e, r + e, 52 + 4 * n + e))
            if role == 0:
                for e in (0, 2): a(pk_mul_b(r + e, r + e, vOMG + 2 * j))
            if j in js:
                a(f"buffer_store_dwordx4 v[{r}:{r+3}], v{vT1}, s[{S_WS}:{S_WS+3}], s{sKT} offen offset:{cnt*1024} sc1")
                cnt += 1
        a(f"v_lshlrev_b32 v{vT2}, 11, v7")
        a(f"v_and_b32 v8, 1, v{vq}")
        a(f"v_lshl_add_u32 v{vT2}, v8, 5, v{vT2}")
        a(f"v_lshrrev_b32 v8, 1, v{vq}")
        a(f"v_lshl_add_u32 v{vT2}, v8, 4, v{vT2}")
        a(f"s_lshl_b32 s{sT1}, s{sTD}, 8")
        a(f"s_bfe_u32 s{sT2}, s{sWave}, 0x10001")
        a(f"s_lshl_b32 s{sT2}, s{sT2}, 7")
        a(f"s_add_u32 s{sT1}, s{sT1}, s{sT2}")
        a(f"s_add_u32 s{sN}, s{sT1}, {kg*64}")
        a(f"s_lshl_b32 s{sT1}, s2, 8")
        a(f"s_add_u32 s{sT1}, s{sT1}, {FLAG_OFF}")
        a(f"s_xor_b32 s{sT2}, s{sT1}, 256")
        a("v_mov_b32 v8, 0")
        a("v_mov_b32 v9, 1")
        a("s_waitcnt vmcnt(0)")
        a("s_barrier")
        if kg == 0:
            a(f"s_cmp_lg_u32 s{sWave}, 0")
            a(f"s_cbranch_scc1 L3_nf{tag}")
            a("s_mov_b64 exec, 1")
            a(f"buffer_store_dword v9, v8, s[{S_WS}:{S_WS+3}], s{sT1} offen sc1")
            a("s_mov_b64 exec, -1")
            a.label(f"L3_nf{tag}")
        stamp(a, 2)
        a.label(f"L3_poll{tag}")
        a(f"buffer_load_dword v9, v8, s[{S_WS}:{S_WS+3}], s{sT2} offen sc1")
        a("s_waitcnt vmcnt(0)")
        a(f"v_readfirstlane_b32 s{sCnt}, v9")
        a(f"s_cmp_eq_u32 s{sCnt}, 1")
        a(f"s_cbranch_scc1 L3_go{tag}")
        a("s_sleep 2")
        a(f"s_branch L3_poll{tag}")
        a.label(f"L3_go{tag}")
        for n in range(4):
            a(f"buffer_load_dwordx4 v[{52+4*n}:{55+4*n}], v{vT1}, s[{S_WS}:{S_WS+3}], s{sKW} offen offset:{n*1024} sc1")
        for jn, j in enumerate(jk):
            a(f"s_waitcnt vmcnt({2 if jn == 0 else 1})" if jn == 0 else "s_waitcnt vmcnt(1)")
            o = 84 + 4 * jn
            for ii in range(2):
                r = K0 + 4 * (ii * 4 + j); t = 52 + 4 * (jn * 2 + ii)
                for e in (0, 2): a(pk_add(r + e, r + e, t + e))
                a(f"v_cvt_pk_bf16_f32 v{o+2*ii}, v{r}, v{r+1}")
                a(f"v_cvt_pk_bf16_f32 v{o+2*ii+1}, v{r+2}, v{r+3}")
            a("s_nop 1")
            a(f"v_permlane16_swap_b32 v{o}, v{o+2}")
            a(f"v_permlane16_swap_b32 v{o+1}, v{o+3}")
            a(f"s_add_u32 s{sT1}, s{sN}, {j*16*2048}")
            a(f"buffer_store_dwordx4 v[{o}:{o+3}], v{vT2}, s[{S_OUT}:{S_OUT+3}], s{sT1} offen")
        a("s_branch L3_fin")

    a("s_bitcmp1_b32 s2, 0")
    a("s_cbranch_scc1 L3_B")
    a(f"s_cmp_ge_u32 s{sWave}, 4")
    a("s_cbranch_scc1 L3_A1")
    for kg in range(2):
        if kg: a.label("L3_A1")
        core.fs = 0; core.first(p1, kg == 0); core.run(p1, 36, kg == 0)
        if kg: a("s_waitcnt vmcnt(0)")
        epi(0, kg)
    a.label("L3_B")
    a(f"s_cmp_ge_u32 s{sWave}, 4")
    a("s_cbranch_scc1 L3_B1")
    for kg in range(2):
        if kg: a.label("L3_B1")
        core.fs = 0; core.first(p1, kg == 0)
        sl = core.run(p1, 20, kg == 0, nxt_part=p2)
        if kg: a("s_waitcnt vmcnt(0)")
        else:
            for j in range(4):
                a(f"v_lshlrev_b32 v{vB2+2*j}, 16, v{vB2+2*j}")
                a(f"v_mul_f32 v{vB2+2*j}, v{vB2+2*j}, v{vOMG+2*j}")
        a("s_nop 7")
        for i in range(4):
            for j in range(4):
                for e in (0, 2):
                    r = ACC + (i * 4 + j) * 4 + e
                    a(pk_fma_bb(r, r, vOMG + 2 * j, vB2 + 2 * j) if kg == 0 else pk_mul_b(r, r, vOMG + 2 * j))
        core.run(p2, 16, kg == 0, slot0=sl)
        epi(1, kg)
    a.label("L3_fin")
    stamp_end(a, 4, 2, sWave, 8, sWSp, S_U, "L3_st")
    a.label("L3_end")
    a("s_endpgm")
    return dict(name=name, grid=256, block=512, lds=131072, vgpr=180)

KERNELS = [gen_k0, gen_k1, gen_k3]

def build(kernels=None):
    a = Asm()
    infos = []
    for g in (kernels or [gen_k1]):
        infos.append(g(a))
    ref = open(f"cdna_kernels/{NAME}.s.ref").read().split("\n")
    hdr = [l for l in ref if l.startswith(";") and "@launch" not in l and "Override" not in l and "grid=ceil" not in l]
    hdr = hdr[:14]
    txt = "\n".join(hdr) + "\n"
    for i in infos:
        txt += f"; @launch {'' if SINGLE else 'kernel=' + i['name'] + ' '}grid=({i['grid']},1,1) block=({i['block']},1,1) lds={i['lds']}\n"
    txt += '.amdgcn_target "amdgcn-amd-amdhsa--gfx950"\n'
    txt += a.text().replace("STAMPWAVE", str(STAMPWAVE))
    for i in infos:
        v = (i['vgpr'] + 3) // 4 * 4
        txt += kernel_desc(i['name'], v, v)
    return txt

if __name__ == "__main__":
    STAMPS = "--stamps" in sys.argv
    for x in sys.argv:
        if x.startswith("--D"):
            k, v = x[3:].split("="); globals()[k] = eval(v)
    out = sys.argv[1] if len(sys.argv) > 1 and not sys.argv[1].startswith("--") else f"cdna_kernels/{NAME}.s"
    open(out, "w").write(build())
```

```python
import sys
from asmlib import *

NAME = "gated_mix__linear_kernel_hedgehog__mixer_token_mlp__prompt"
MB = 1 << 20
HT_OFF = 0
G_OFF = 4 * MB
U_OFF = 8 * MB
PQ_OFF = 16 * MB
KV_OFF = 24 * MB
OP_OFF = 28 * MB
XCH_OFF = 64 * MB
FLAG_OFF = 40 * MB
STAMP_OFF = 48 * MB
WS_BYTES = 268435456
A_X, A_WQKV, A_WPHI, A_WO, A_BX, A_W1, A_B1, A_W2, A_B2, A_GW, A_OUT, A_DBG, A_WS = [8 * i for i in range(13)]
STAMPS = False
STAMPWAVE = 0
PF_W2 = 0
PF_CODE = 0
PRIO = 0
P3W = 1
XBF = 1
OUTAUX = ''
M0HOIST = 0
DMA_LO = 0
DMA_HI = 100
RD_START = 0
PF_W1 = 0
FUSE = 1
NA = 32
NSTAMP = [13]
SINGLE = 0
CYC = 60
WT = 'sc1'

def log2(x):
    l = x.bit_length() - 1
    assert 1 << l == x, x
    return l

def srd(a, s, base, nbytes, off=0):
    if off:
        a(f"s_add_u32 s{s}, s{base}, {off}")
        a(f"s_addc_u32 s{s+1}, s{base+1}, 0")
    else:
        a(f"s_mov_b32 s{s}, s{base}")
        a(f"s_mov_b32 s{s+1}, s{base+1}")
    a(f"s_mov_b32 s{s+2}, {nbytes}")
    a(f"s_mov_b32 s{s+3}, 0x20000")

def rnd_bf16(a, v, tmp=None):
    a(f"v_cvt_pk_bf16_f32 v{v}, v{v}, v{v}")
    a(f"v_and_b32 v{v}, 0xffff0000, v{v}")

SB0 = 64
def stamp(a, i):
    if STAMPS: a(f"s_memrealtime s[{SB0+2*i}:{SB0+2*i+1}]")
def stamp_cyc(a, s):
    if STAMPS: a(f"s_memtime s[{s}:{s+1}]")
def stamp_end(a, n, kidx, swave, v0, wsbase, sS, label):
    if not STAMPS: return
    a("s_waitcnt vmcnt(0)")
    stamp(a, n - 1)
    a(f"s_cmp_lg_u32 s{swave}, STAMPWAVE")
    a(f"s_cbranch_scc1 {label}")
    a("s_waitcnt lgkmcnt(0)")
    srd(a, sS, wsbase, 64 * 1024, STAMP_OFF + kidx * 65536)
    a(f"s_lshl_b32 s3, s2, 7")
    a(f"v_mov_b32 v{v0+2}, s3")
    a("s_mov_b64 exec, 1")
    for i in range(n + 2):
        src = SB0 + 2 * i if i < n else CYC + 2 * (i - n)
        a(f"v_mov_b32 v{v0}, s{src}")
        a(f"v_mov_b32 v{v0+1}, s{src+1}")
        a(f"buffer_store_dwordx2 v[{v0}:{v0+1}], v{v0+2}, s[{sS}:{sS+3}], 0 offen offset:{8*i if i < n else 112 + 8*(i-n)}")
        a("s_nop 1")
    a.label(label)

def gen_k0(a):
    name = "k0_kernel"
    kernel_header(a, name)
    a("s_cmp_ge_u32 s2, 256")
    a("s_cbranch_scc1 L0_end")
    a(f"s_load_dwordx2 s[4:5], s[0:1], {A_X}")
    a(f"s_load_dwordx2 s[6:7], s[0:1], {A_GW}")
    a(f"s_load_dwordx2 s[24:25], s[0:1], {A_WS}")
    stamp(a, 0)
    stamp_cyc(a, CYC)
    stamp_cyc(a, CYC + 2)
    a("v_lshrrev_b32 v2, 6, v0")
    a("v_and_b32 v1, 63, v0")
    a("v_readfirstlane_b32 s20, v2")
    a("v_lshlrev_b32 v3, 3, v0")
    a("v_lshlrev_b32 v4, 4, v1")
    a("s_lshl_b32 s21, s2, 14")
    a("s_lshl_b32 s22, s20, 12")
    a("s_add_u32 s22, s22, s21")
    a("s_waitcnt lgkmcnt(0)")
    srd(a, 8, 4, 2048 * 1024 * 2)
    srd(a, 12, 6, 2048)
    srd(a, 16, 24, WS_BYTES)
    a("buffer_load_dwordx4 v[16:19], v4, s[8:11], s22 offen")
    a("buffer_load_dwordx4 v[20:23], v4, s[8:11], s22 offen offset:1024")
    a("buffer_load_dwordx4 v[24:27], v4, s[8:11], s22 offen offset:2048")
    a("buffer_load_dwordx4 v[28:31], v4, s[8:11], s22 offen offset:3072")
    a("buffer_load_dwordx4 v[32:35], v4, s[12:15], 0 offen")
    a("buffer_load_dwordx4 v[36:39], v4, s[12:15], 0 offen offset:1024")
    for r in range(8):
        if r % 2 == 0:
            a(f"s_add_u32 s23, s21, {r*2048}")
        a(f"buffer_load_dwordx2 v[{40+2*r}:{41+2*r}], v3, s[8:11], s23 offen offset:{(r%2)*2048}")
    for i in range(4):
        a(f"v_mov_b32 v{8+i}, 0")
    a("v_lshlrev_b32 v5, 4, v0")
    a("s_mul_i32 s23, s2, 1536")
    a(f"s_add_u32 s23, s23, {KV_OFF}")
    a("v_cmp_gt_u32 vcc, 96, v0")
    a("s_and_saveexec_b64 s[26:27], vcc")
    a("s_cbranch_execz L0_nz")
    a("buffer_store_dwordx4 v[8:11], v5, s[16:19], s23 offen")
    a("s_lshl_b32 s23, s2, 8")
    a(f"s_add_u32 s23, s23, {FLAG_OFF}")
    a("v_cmp_gt_u32 vcc, 16, v0")
    a("s_and_b64 exec, exec, vcc")
    a("s_cbranch_execz L0_nz")
    a("buffer_store_dwordx4 v[8:11], v5, s[16:19], s23 offen")
    a.label("L0_nz")
    a("s_mov_b64 exec, s[26:27]")
    a("s_mov_b32 s28, 0x3f803f80")
    a("v_mov_b32 v12, 0\nv_mov_b32 v13, 0\nv_mov_b32 v14, 0\nv_mov_b32 v15, 0")
    a("s_waitcnt vmcnt(8)")
    for i in range(8):
        a(f"v_dot2_f32_bf16 v12, v{16+i}, s28, v12")
        a(f"v_dot2_f32_bf16 v13, v{16+i}, v{32+i}, v13")
        a(f"v_dot2_f32_bf16 v14, v{24+i}, s28, v14")
        a(f"v_dot2_f32_bf16 v15, v{24+i}, v{32+i}, v15")
    def wave_reduce(regs):
        a("s_nop 2")
        for m in ("row_shr:1", "row_shr:2", "row_shr:4", "row_shr:8"):
            for r in regs:
                a(f"v_add_f32_dpp v{r}, v{r}, v{r} {m} row_mask:0xf bank_mask:0xf bound_ctrl:0")
            if len(regs) < 3: a("s_nop 1")
        for m, mask in (("row_bcast:15", "0xa"), ("row_bcast:31", "0xc")):
            for r in regs:
                a(f"v_add_f32_dpp v{r}, v{r}, v{r} {m} row_mask:{mask} bank_mask:0xf")
            if len(regs) < 3: a("s_nop 1")
        a("s_nop 0")
    wave_reduce([12, 13, 14, 15])
    a("v_readlane_b32 s30, v12, 63")
    a("v_readlane_b32 s31, v13, 63")
    a("v_readlane_b32 s32, v14, 63")
    a("v_readlane_b32 s33, v15, 63")
    a("s_mov_b32 s29, 0x3a800000")
    a("v_mov_b32 v6, s29")
    a("v_mul_f32 v8, s30, v6")
    a("v_mul_f32 v9, s32, v6")
    a("v_mov_b32 v12, 0\nv_mov_b32 v14, 0")
    for i in range(8):
        for base, mean, acc, t in ((16, 8, 12, 56), (24, 9, 14, 58)):
            a(f"v_lshlrev_b32 v{t}, 16, v{base+i}")
            a(f"v_and_b32 v{t+1}, 0xffff0000, v{base+i}")
            a(f"v_sub_f32 v{t}, v{t}, v{mean}")
            a(f"v_sub_f32 v{t+1}, v{t+1}, v{mean}")
            a(f"v_fmac_f32 v{acc}, v{t}, v{t}")
            a(f"v_fmac_f32 v{acc}, v{t+1}, v{t+1}")
    wave_reduce([12, 14])
    a("v_readlane_b32 s34, v12, 63")
    a("v_readlane_b32 s35, v14, 63")
    a("v_cmp_eq_u32 vcc, 1, v1")
    a("v_mov_b32 v10, s34\nv_mov_b32 v11, s35")
    a("v_mov_b32 v12, s31\nv_mov_b32 v13, s33")
    a("v_cndmask_b32 v10, v10, v11, vcc")
    a("v_cndmask_b32 v8, v8, v9, vcc")
    a("v_cndmask_b32 v12, v12, v13, vcc")
    a("v_mul_f32 v10, v10, v6")
    rnd_bf16(a, 10)
    rnd_bf16(a, 8)
    rnd_bf16(a, 12)
    a("v_add_f32 v10, 0x3727c5ac, v10")
    a("v_mul_f32 v12, 0xbfb8aa3b, v12")
    rnd_bf16(a, 10)
    a("v_exp_f32 v12, v12")
    a("v_sqrt_f32 v10, v10")
    a("s_nop 0")
    a("v_add_f32 v12, 1.0, v12")
    rnd_bf16(a, 10)
    a("v_rcp_f32 v12, v12")
    a("v_rcp_f32 v9, v10")
    a("s_nop 0")
    rnd_bf16(a, 12)
    a("v_sub_f32 v13, 1.0, v12")
    rnd_bf16(a, 13)
    a("s_lshl_b32 s23, s20, 4")
    a("v_lshlrev_b32 v5, 3, v1")
    a("v_add_u32 v7, s23, v5")
    a("s_lshl_b32 s22, s2, 6")
    a(f"s_add_u32 s22, s22, {G_OFF}")
    a("s_mov_b64 exec, 3")
    a("ds_write_b64 v7, v[8:9]")
    a("buffer_store_dwordx2 v[12:13], v7, s[16:19], s22 offen")
    a("s_mov_b64 exec, -1")
    a("v_mov_b32 v5, 0")
    a("s_waitcnt lgkmcnt(0)")
    a("s_barrier")
    for i in range(4):
        a(f"ds_read_b128 v[{16+4*i}:{19+4*i}], v5 offset:{16*i}")
    a("s_waitcnt vmcnt(0) lgkmcnt(0)")
    for r in range(8):
        b = 64 + 4 * r
        for k in range(2):
            a(f"v_lshlrev_b32 v{b+2*k}, 16, v{40+2*r+k}")
            a(f"v_and_b32 v{b+2*k+1}, 0xffff0000, v{40+2*r+k}")
        for cidx in range(4):
            a(f"v_sub_f32 v{b+cidx}, v{b+cidx}, v{16+2*r}")
        for k in range(2):
            a(f"v_cvt_pk_bf16_f32 v{56+k}, v{b+2*k}, v{b+2*k+1}")
        for k in range(2):
            a(f"v_lshlrev_b32 v{b+2*k}, 16, v{56+k}")
            a(f"v_and_b32 v{b+2*k+1}, 0xffff0000, v{56+k}")
        for cidx in range(4):
            a(f"v_mul_f32 v{b+cidx}, v{b+cidx}, v{17+2*r}")
    a("v_lshlrev_b32 v5, 6, v0")
    a("s_lshl_b32 s23, s2, 14")
    if HT_OFF: a(f"s_add_u32 s23, s23, {HT_OFF}")
    for cidx in range(4):
        o = 96 + 4 * cidx
        for p in range(4):
            a(f"v_cvt_pk_bf16_f32 v{o+p}, v{64 + 8*p + cidx}, v{64 + 8*p + 4 + cidx}")
        a(f"buffer_store_dwordx4 v[{o}:{o+3}], v5, s[16:19], s23 offen offset:{16*cidx}")
    stamp_end(a, 2, 0, 20, 16, 24, 16, "L0_st")
    a.label("L0_end")
    a("s_endpgm")
    return dict(name=name, grid=256, block=256, lds=64, vgpr=112)


class Part:
    def __init__(self, **kw): self.__dict__.update(kw)

class Core:
    def __init__(self, a, tag, NS, SB, TB, MT, MW, vF, sW1024, sN, sRho, sKT, sKW, sT1, sT2, sCnt):
        self.__dict__.update(locals()); del self.__dict__['self']
        self.fs = 0
    def rot(self, p):
        g = getattr(p, "norot", None)
        guard = [] if g is None else [f"s_cmp_eq_u32 s{self.sT2}, {g}", f"s_cselect_b32 s{self.sT1}, s{self.sN}, s{self.sT1}"]
        return [f"s_add_u32 s{self.sT1}, s{self.sN}, s{self.sRho}",
                f"s_and_b32 s{self.sT1}, s{self.sT1}, 3",
                f"s_andn2_b32 s{self.sT2}, s{self.sN}, 3",
                f"s_or_b32 s{self.sT1}, s{self.sT1}, s{self.sT2}"] + guard + [
                f"s_mul_i32 s{self.sKT}, s{self.sT1}, {p.stT}",
                f"s_mul_i32 s{self.sKW}, s{self.sT1}, {p.stW}",
                f"s_add_u32 s{self.sN}, s{self.sN}, 1"]
    def dma(self, p, slot, which="TW"):
        g = []
        aux = getattr(p, "auxT", "")
        for j, v in enumerate(p.vDT if "T" in which else []):
            g.append([f"s_add_u32 m0, s{self.sW1024}, {slot*self.SB + j*4096}", "s_nop 0",
                      f"buffer_load_dwordx4 v{v}, s[{p.srdT}:{p.srdT+3}], s{self.sKT} offen {aux} lds"])
        for j, v in enumerate(p.vDW if "W" in which else []):
            g.append([f"s_add_u32 m0, s{self.sW1024}, {slot*self.SB + getattr(p, 'TB', self.TB) + j*4096}", "s_nop 0",
                      f"buffer_load_dwordx4 v{v}, s[{p.srdW}:{p.srdW+3}], s{self.sKW} offen lds"])
        r = self.rot(p)
        g[0] = r + g[0]
        return g
    def P(self, p): return len(p.vDT) + len(p.vDW)
    def fT(self, fs, i): return self.vF[fs] + 4 * i
    def fW(self, fs, j): return self.vF[fs] + 4 * self.MT + 4 * j
    def reads(self, p, slot, fs):
        tl = [[f"ds_read_b128 v[{self.fT(fs,i)}:{self.fT(fs,i)+3}], v{vb} offset:{o}"] for i, (vb, o) in enumerate(p.rdT(slot))]
        wl = []
        for j, (vb, o1, o2) in enumerate(p.rdW(slot)):
            b = self.fW(fs, j)
            wl.append([f"ds_read_b64_tr_b16 v[{b}:{b+1}], v{vb} offset:{o1}"])
            wl.append([f"ds_read_b64_tr_b16 v[{b+2}:{b+3}], v{vb} offset:{o2}"])
        out = []
        while tl or wl:
            if tl: out.append(tl.pop(0))
            if wl: out.append(wl.pop(0))
            if wl: out.append(wl.pop(0))
        return out
    def prologue(self, p, loader, which="TW"):
        a = self.a
        if loader:
            for s in range(self.NS):
                for g in self.dma(p, s, which):
                    for l in g: a(l)
    def first(self, p, loader, vm=None):
        a = self.a
        if loader: a(f"s_waitcnt vmcnt({(self.NS-1)*self.P(p) if vm is None else vm})")
        a("s_barrier")
        for g in self.reads(p, 0, self.fs):
            for l in g: a(l)
    def stage(self, slot, cur, nxt, dmap, vm, loader, extra=None):
        a = self.a
        f = self.fs
        if nxt is not None:
            a(f"s_waitcnt vmcnt({vm}) lgkmcnt(0)" if loader else "s_waitcnt lgkmcnt(0)")
            a("s_barrier")
            rd = self.reads(nxt, (slot + 1) % self.NS, 1 - f)
        else:
            a("s_waitcnt lgkmcnt(0)")
            rd = []
        m = cur.mf(lambda i: self.fT(f, i), lambda j: self.fW(f, j))
        nm = len(m)
        slots = [[] for _ in range(nm)]
        for idx, g in enumerate(rd):
            slots[min(idx + RD_START, nm - 1)].extend(g)
        fill = []
        if dmap is not None and loader: fill = self.dma(dmap, slot)
        if extra: fill = fill + extra
        lo = nm * DMA_LO // 100; hi = max(lo + 1, nm * DMA_HI // 100)
        for idx, g in enumerate(fill):
            pos = lo + (idx * (hi - lo)) // len(fill)
            if M0HOIST and pos > 0 and "s_nop 0" in g:
                k = g.index("s_nop 0")
                slots[pos - 1].extend(g[:k]); slots[pos] = g[k+1:] + slots[pos]
            else:
                slots[pos].extend(g)
        for i in range(nm):
            a(m[i])
            for l in slots[i]: a(l)
        self.fs = 1 - f
    def run(self, p, nst, loader, nxt_part=None, count_reg_init=None, slot0=0, extra=None, nxt_n0=0, hook=None):
        a = self.a; NS = self.NS
        UN = NS if NS % 2 == 0 else 2 * NS
        nloop = (nst - NS) // UN
        ntail = nst - nloop * UN
        P = self.P(p)
        lab = f"L_{self.tag}_{len(a.lines)}"
        if nloop > 0:
            a(f"s_mov_b32 s{self.sCnt}, {nloop}" if count_reg_init is None else count_reg_init)
            a.label(lab)
            for s in range(UN):
                self.stage((slot0 + s) % NS, p, p, p, (NS - 2) * P, loader, extra if s == 1 else None)
            a(f"s_sub_u32 s{self.sCnt}, s{self.sCnt}, 1")
            a(f"s_cmp_lg_u32 s{self.sCnt}, 0")
            a(f"s_cbranch_scc1 {lab}")
        for s in range(ntail):
            rem = ntail - 1 - s
            slot = (slot0 + s) % NS
            if rem >= NS:
                self.stage(slot, p, p, p, (NS - 2) * P, loader)
            elif nxt_part is None:
                if rem == NS - 1 and hook: hook()
                self.stage(slot, p, p if rem else None, None, min(NS - 2, max(rem - 1, 0)) * P, loader)
            else:
                assert self.P(nxt_part) == P
                if rem == NS - 1 and loader: a(f"s_mov_b32 s{self.sN}, {nxt_n0}")
                if rem == NS - 1 and hook: hook()
                self.stage(slot, p, p if rem else nxt_part, nxt_part, (NS - 2) * P, loader)
        return (slot0 + ntail) % NS

sE = 51
F_LN, F_KV, F_U, F_O, F_X = FLAG_OFF, FLAG_OFF + 4096, FLAG_OFF + 8192, FLAG_OFF + 12288, FLAG_OFF + 16384
def poll(a, tag, vD, vA, srd_, sAddr, sC, wide=False, target=None):
    a(f"s_mov_b32 s{sC}, 0")
    a.label(f"Lp_{tag}")
    if wide: a(f"buffer_load_dwordx2 v[{vD}:{vD+1}], v{vA}, s[{srd_}:{srd_+3}], {sAddr} offen sc1")
    else: a(f"buffer_load_dword v{vD}, v{vA}, s[{srd_}:{srd_+3}], {sAddr} offen sc1")
    a(f"s_add_u32 s{sC}, s{sC}, 1")
    a("s_waitcnt vmcnt(0)")
    poll_check(a, vD, wide, target)
    a(f"s_cbranch_vccz Lq_{tag}")
    a(f"s_cmp_ge_u32 s{sC}, 0x200000")
    a(f"s_cbranch_scc1 Lq_{tag}")
    a("s_sleep 1")
    a(f"s_branch Lp_{tag}")
    a.label(f"Lq_{tag}")
def poll_check(a, vD, wide=False, target=None):
    if target == "nz":
        a(f"v_cmp_eq_u32 vcc, 0, v{vD}")
        return
    if wide:
        a(f"v_xor_b32 v{vD}, s{sE}, v{vD}")
        a(f"v_xor_b32 v{vD+1}, s{sE}, v{vD+1}")
        a(f"v_or_b32 v{vD}, v{vD}, v{vD+1}")
        a(f"v_cmp_ne_u32 vcc, 0, v{vD}")
    else:
        a(f"v_cmp_ne_u32 vcc, s{sE}, v{vD}")

S_DBG = 52

def ln_phase(a, R, S_X, S_GW, S_WS, sWave, sIdx, dma_hook):
    v = lambda n: f"v{R+n}"
    vv = lambda n, c: f"v[{R+n}:{R+n+c-1}]"
    s21, s22, s23 = 32, 33, 34
    a(f"v_and_b32 {v(3)}, 255, v0")
    a(f"v_lshlrev_b32 {v(3)}, 3, {v(3)}")
    a(f"v_lshlrev_b32 {v(4)}, 4, v1")
    a(f"s_lshl_b32 s{s21}, s{sIdx}, 15")
    a(f"s_lshl_b32 s{s22}, s{sWave}, 12")
    a(f"s_add_u32 s{s22}, s{s22}, s{s21}")
    for n in range(4):
        a(f"buffer_load_dwordx4 {vv(16+4*n,4)}, {v(4)}, s[{S_X}:{S_X+3}], s{s22} offen offset:{n*1024}")
    a(f"buffer_load_dwordx4 {vv(32,4)}, {v(4)}, s[{S_GW}:{S_GW+3}], 0 offen")
    a(f"buffer_load_dwordx4 {vv(36,4)}, {v(4)}, s[{S_GW}:{S_GW+3}], 0 offen offset:1024")
    a(f"s_lshr_b32 s{s23}, s{sWave}, 2")
    a(f"s_lshl_b32 s{s23}, s{s23}, 14")
    a(f"s_add_u32 s{s21}, s{s21}, s{s23}")
    for r in range(8):
        if r and r % 2 == 0: a(f"s_add_u32 s{s21}, s{s21}, 4096")
        a(f"buffer_load_dwordx2 {vv(40+2*r,2)}, {v(3)}, s[{S_X}:{S_X+3}], s{s21} offen offset:{(r%2)*2048}")
    nd = dma_hook()
    a(f"s_mov_b32 s35, 0x3f803f80")
    for n in range(12, 16): a(f"v_mov_b32 {v(n)}, 0")
    for i in range(8):
        a(f"v_dot2_f32_bf16 {v(12)}, {v(16+i)}, s35, {v(12)}")
        a(f"v_dot2_f32_bf16 {v(13)}, {v(16+i)}, {v(32+i)}, {v(13)}")
        a(f"v_dot2_f32_bf16 {v(14)}, {v(24+i)}, s35, {v(14)}")
        a(f"v_dot2_f32_bf16 {v(15)}, {v(24+i)}, {v(32+i)}, {v(15)}")
    def wave_reduce(regs):
        a("s_nop 2")
        for m in ("row_shr:1", "row_shr:2", "row_shr:4", "row_shr:8"):
            for r in regs:
                a(f"v_add_f32_dpp {v(r)}, {v(r)}, {v(r)} {m} row_mask:0xf bank_mask:0xf bound_ctrl:0")
            if len(regs) < 3: a("s_nop 1")
        for m, mask in (("row_bcast:15", "0xa"), ("row_bcast:31", "0xc")):
            for r in regs:
                a(f"v_add_f32_dpp {v(r)}, {v(r)}, {v(r)} {m} row_mask:{mask} bank_mask:0xf")
            if len(regs) < 3: a("s_nop 1")
        a("s_nop 0")
    wave_reduce([12, 13, 14, 15])
    for n in range(4): a(f"v_readlane_b32 s{88+n}, {v(12+n)}, 63")
    a(f"v_mov_b32 {v(6)}, 0x3a800000")
    a("s_nop 0")
    a(f"v_mul_f32 {v(8)}, s88, {v(6)}")
    a(f"v_mul_f32 {v(10)}, s90, {v(6)}")
    for n in (12, 13, 14, 15): a(f"v_mov_b32 {v(n)}, 0")
    for i in range(8):
        for base, mean, acc, t in ((16, 8, 12, 56), (24, 10, 14, 58)):
            a(f"v_lshlrev_b32 {v(t)}, 16, {v(base+i)}")
            a(f"v_and_b32 {v(t+1)}, 0xffff0000, {v(base+i)}")
            a(f"v_pk_add_f32 {vv(t,2)}, {vv(t,2)}, {vv(mean,2)} op_sel_hi:[1,0] neg_lo:[0,1] neg_hi:[0,1]")
            a(f"v_pk_fma_f32 {vv(acc,2)}, {vv(t,2)}, {vv(t,2)}, {vv(acc,2)}")
    a(f"v_add_f32 {v(12)}, {v(12)}, {v(13)}")
    a(f"v_add_f32 {v(14)}, {v(14)}, {v(15)}")
    wave_reduce([12, 14])
    a(f"v_readlane_b32 s88, {v(12)}, 63")
    a(f"v_readlane_b32 s90, {v(14)}, 63")
    a("v_cmp_eq_u32 vcc, 1, v1")
    a(f"v_mov_b32 {v(12)}, s89")
    a(f"v_mov_b32 {v(13)}, s91")
    a(f"v_cndmask_b32 {v(8)}, {v(8)}, {v(10)}, vcc")
    a(f"v_mov_b32 {v(10)}, s88")
    a(f"v_mov_b32 {v(11)}, s90")
    a(f"v_cndmask_b32 {v(12)}, {v(12)}, {v(13)}, vcc")
    a(f"v_cndmask_b32 {v(10)}, {v(10)}, {v(11)}, vcc")
    a(f"v_mul_f32 {v(10)}, {v(10)}, {v(6)}")
    rnd_bf16(a, R + 10); rnd_bf16(a, R + 8); rnd_bf16(a, R + 12)
    a(f"v_add_f32 {v(10)}, 0x3727c5ac, {v(10)}")
    a(f"v_mul_f32 {v(12)}, 0xbfb8aa3b, {v(12)}")
    rnd_bf16(a, R + 10)
    a(f"v_exp_f32 {v(12)}, {v(12)}")
    a(f"v_sqrt_f32 {v(10)}, {v(10)}")
    a("s_nop 0")
    a(f"v_add_f32 {v(12)}, 1.0, {v(12)}")
    rnd_bf16(a, R + 10)
    a(f"v_rcp_f32 {v(12)}, {v(12)}")
    a(f"v_rcp_f32 {v(9)}, {v(10)}")
    a(f"s_lshl_b32 s{s23}, s{sWave}, 4")
    rnd_bf16(a, R + 12)
    a(f"v_sub_f32 {v(13)}, 1.0, {v(12)}")
    rnd_bf16(a, R + 13)
    a(f"v_lshlrev_b32 {v(5)}, 3, v1")
    a(f"v_add_u32 {v(7)}, s{s23}, {v(5)}")
    a(f"v_add_u32 {v(5)}, 90112, {v(7)}")
    a(f"s_lshl_b32 s{s22}, s{sIdx}, 7")
    a(f"s_add_u32 s{s22}, s{s22}, {G_OFF}")
    a("s_mov_b64 exec, 3")
    a(f"ds_write_b64 {v(5)}, {vv(8,2)}")
    a(f"buffer_store_dwordx2 {vv(12,2)}, {v(7)}, s[{S_WS}:{S_WS+3}], s{s22} offen sc1")
    a("s_mov_b64 exec, -1")
    a(f"s_lshr_b32 s{s23}, s{sWave}, 2")
    a(f"s_lshl_b32 s{s22}, s{s23}, 6")
    a(f"s_add_u32 s{s22}, s{s22}, 90112")
    a(f"v_mov_b32 {v(5)}, s{s22}")
    a("s_waitcnt lgkmcnt(0)")
    a("s_barrier")
    for i in range(4):
        a(f"ds_read_b128 {vv(16+4*i,4)}, {v(5)} offset:{16*i}")
    a(f"s_mul_i32 s{s22}, s{s23}, 45056")
    a(f"v_lshlrev_b32 {v(5)}, 3, {v(3)}")
    a(f"v_add_u32 {v(5)}, s{s22}, {v(5)}")
    a(f"v_lshl_add_u32 {v(7)}, s29, 2, {v(4)}")
    a(f"v_add_u32 {v(6)}, s{s22}, {v(7)}")
    a(f"s_lshl_b32 s{s21}, s{sIdx}, 1")
    a(f"s_add_u32 s{s21}, s{s21}, s{s23}")
    a(f"s_lshl_b32 s{s21}, s{s21}, 14")
    if HT_OFF: a(f"s_add_u32 s{s21}, s{s21}, {HT_OFF}")
    a("s_waitcnt lgkmcnt(0)")
    for r in range(8):
        b = 64 + 4 * r
        for k in range(2):
            a(f"v_lshlrev_b32 {v(b+2*k)}, 16, {v(40+2*r+k)}")
            a(f"v_and_b32 {v(b+2*k+1)}, 0xffff0000, {v(40+2*r+k)}")
        for k in range(2):
            a(f"v_pk_add_f32 {vv(b+2*k,2)}, {vv(b+2*k,2)}, {vv(16+2*r,2)} op_sel_hi:[1,0] neg_lo:[0,1] neg_hi:[0,1]")
        a(f"v_mov_b32 {v(58)}, {v(17+2*r)}")
        for k in range(2):
            a(f"v_cvt_pk_bf16_f32 {v(56+k)}, {v(b+2*k)}, {v(b+2*k+1)}")
        for k in range(2):
            a(f"v_lshlrev_b32 {v(b+2*k)}, 16, {v(56+k)}")
            a(f"v_and_b32 {v(b+2*k+1)}, 0xffff0000, {v(56+k)}")
        for k in range(2):
            a(f"v_pk_mul_f32 {vv(b+2*k,2)}, {vv(b+2*k,2)}, {vv(58,2)} op_sel_hi:[1,0]")
    for cidx in range(4):
        o = 96 + 4 * cidx
        for p in range(4):
            a(f"v_cvt_pk_bf16_f32 {v(o+p)}, {v(64 + 8*p + cidx)}, {v(64 + 8*p + 4 + cidx)}")
        a(f"ds_write_b128 {v(5)}, {vv(o,4)} offset:{16*cidx}")
    a("s_waitcnt lgkmcnt(0)")
    for cidx in range(4):
        a(f"ds_read_b128 {vv(64+4*cidx,4)}, {v(6)} offset:{cidx*1024}")
    for cidx in range(4):
        a(f"s_waitcnt lgkmcnt({3-cidx})")
        a(f"buffer_store_dwordx4 {vv(64+4*cidx,4)}, {v(7)}, s[{S_WS}:{S_WS+3}], s{s21} offen offset:{cidx*1024} sc1")

def lane_bits(a, vLane, vq, vr, vc):
    a(f"v_lshrrev_b32 v{vq}, 4, v{vLane}")
    a(f"v_bfe_u32 v{vr}, v{vLane}, 2, 2")
    a(f"v_and_b32 v{vc}, 3, v{vLane}")

L2E = 0x3fb8aa3b
def bc(r):
    assert r % 2 == 0, r
    return f"v[{r}:{r+1}]", 0
def pk_fma_sL(d, x, sL, m, negx, negm):
    pm, sm = bc(m)
    return (f"v_pk_fma_f32 v[{d}:{d+1}], v[{x}:{x+1}], s[{sL}:{sL+1}], {pm} op_sel:[0,0,{sm}] op_sel_hi:[1,0,{sm}] "
            f"neg_lo:[{negx},0,{negm}] neg_hi:[{negx},0,{negm}]")
def pk_mul_b(d, x, m):
    pm, sm = bc(m)
    return f"v_pk_mul_f32 v[{d}:{d+1}], v[{x}:{x+1}], {pm} op_sel:[0,{sm}] op_sel_hi:[1,{sm}]"
def pk_fma_bb(d, x, m, c):
    pm, sm = bc(m); pc, sc = bc(c)
    return f"v_pk_fma_f32 v[{d}:{d+1}], v[{x}:{x+1}], {pm}, {pc} op_sel:[0,{sm},{sc}] op_sel_hi:[1,{sm},{sc}]"
def pk_add(d, x, y): return f"v_pk_add_f32 v[{d}:{d+1}], v[{x}:{x+1}], v[{y}:{y+1}]"

PB = 244
def phase3_pre(a):
    sWave, sW1024, sT1, sT2, sTD, sTS, sA, sB = 28, 29, 34, 35, 37, 38, 32, 33
    vLane, vT1, vT2, vq, vr_, vc = 1, 2, 3, 4, 5, 6
    TB = 16384
    a(f"v_lshlrev_b32 v{vT1}, 4, v{vLane}")
    a(f"s_bfe_u32 s{sA}, s{sWave}, 0x10001")
    a(f"s_and_b32 s{sB}, s{sWave}, 1")
    for n, (R16, sTile) in enumerate(((16384, sTD), (32768, sTS))):
        a(f"s_mul_i32 s{sT1}, s{sA}, {R16}")
        a(f"s_lshl_b32 s{sT2}, s{sB}, 10")
        a(f"s_add_u32 s{sT1}, s{sT1}, s{sT2}")
        a(f"s_lshl_b32 s{sT2}, s{sTile}, 11")
        a(f"s_add_u32 s{sT1}, s{sT1}, s{sT2}")
        a(f"v_add_u32 v{PB+n}, s{sT1}, v{vT1}")
    a(f"v_lshrrev_b32 v{vT2}, 5, v{vLane}")
    a(f"v_lshlrev_b32 v{vT2}, 6, v{vT2}")
    a(f"v_lshl_add_u32 v{vT2}, v{vc}, 4, v{vT2}")
    a(f"v_and_b32 v{vT1}, 16, v{vLane}")
    a(f"v_lshlrev_b32 v{vT1}, 1, v{vT1}")
    a(f"v_xor_b32 v{vT2}, v{vT1}, v{vT2}")
    a(f"v_bfe_u32 v{vT1}, v{vLane}, 2, 3")
    for n, (LD, sTile) in enumerate(((4096, sTS), (2048, sTD))):
        a(f"v_lshl_add_u32 v{PB+2+n}, v{vT1}, {log2(LD)}, v{vT2}")
        a(f"s_mul_i32 s{sT1}, s{sW1024}, {8*LD//1024}")
        a(f"s_lshl_b32 s{sT2}, s{sTile}, 8")
        a(f"s_add_u32 s{sT1}, s{sT1}, s{sT2}")
        a(f"v_add_u32 v{PB+2+n}, s{sT1}, v{PB+2+n}")
    a(f"v_and_b32 v{PB+8}, 15, v{vLane}")
    a(f"v_lshlrev_b32 v{vT1}, 4, v{PB+8}")
    a(f"v_lshl_add_u32 v{vT1}, v{vq}, 11, v{vT1}")
    a(f"s_lshr_b32 s{sT1}, s{sWave}, 2")
    a(f"s_lshl_b32 s{sT1}, s{sT1}, 13")
    a(f"v_add_u32 v{vT1}, s{sT1}, v{vT1}")
    for n, sel in enumerate((sA, sB)):
        a(f"v_lshl_add_u32 v{PB+4+n}, s{sel}, 10, v{vT1}")
    a(f"v_lshrrev_b32 v{vT1}, 1, v{vq}")
    a(f"v_lshlrev_b32 v{vT1}, 10, v{vT1}")
    a(f"v_and_b32 v{vT2}, 1, v{vq}")
    a(f"v_mul_u32_u24 v{vT2}, 288, v{vT2}")
    a(f"v_add_u32 v{vT1}, v{vT2}, v{vT1}")
    a(f"v_lshl_add_u32 v{vT1}, v{vr_}, 6, v{vT1}")
    a(f"v_lshl_add_u32 v{vT1}, v{vc}, 3, v{vT1}")
    a(f"s_lshr_b32 s{sT1}, s{sT1}, 1")
    a(f"s_add_u32 s{sT1}, s{sT1}, {TB}")
    a(f"v_add_u32 v{vT1}, s{sT1}, v{vT1}")
    for n, sel in enumerate((sB, sA)):
        a(f"v_lshl_add_u32 v{PB+6+n}, s{sel}, 13, v{vT1}")
    a(f"s_lshl_b32 s{sT1}, s{sTS}, 7")
    a(f"s_lshl_b32 s{sT2}, s{sB}, 6")
    a(f"s_add_u32 s{sT1}, s{sT1}, s{sT2}")
    a(f"v_add_u32 v{PB+8}, s{sT1}, v{PB+8}")
    a(f"s_lshl_b32 s46, s{sTD}, 7")
    a(f"s_add_u32 s46, s46, {F_U}")
    a(f"s_lshr_b32 s47, s{sTS}, 1")
    a(f"s_lshl_b32 s47, s47, 7")
    a(f"s_add_u32 s47, s47, {F_O}")
    a(f"s_add_u32 s48, s46, {F_O - F_U}")
    a("s_bitcmp1_b32 s2, 7")
    a(f"s_cselect_b32 s47, s46, s47")
    a(f"s_cselect_b32 s48, s46, s48")
    a(f"s_lshl_b32 s{sT1}, s{sTS}, 2")
    a(f"s_add_u32 s48, s48, s{sT1}")

def phase3(a):
    S_U, S_W2, S_WS, S_OP, S_WO, S_OUT = 8, 12, 16, 20, 24, 56
    sWave, sW1024, sN, sRho, sKT, sKW, sT1, sT2, sCnt, sTD, sTS = 28, 29, 30, 31, 32, 33, 34, 35, 36, 37, 38
    sWSp = 44
    vLane, vT1, vT2, vq, vr_, vc = 1, 2, 3, 4, 5, 6
    NS, TB, SB = 4, 16384, 32768
    vD1T = [PB, 9, 10, 11]; vD1W = [PB+2, 13, 14, 15]; vD2T = [PB+1, 17, 18, 19]; vD2W = [PB+3, 21, 22, 23]
    vR1T = [PB+4, 25]; vR1E = [PB+6, 27]; vR1O = [28, 29]; vR2T = [PB+5, 31]; vR2E = [PB+7, 33]; vR2O = [34, 35]
    vS = PB + 8
    vOMG = 36; vB2 = 44
    vF = [52, 84]; ACC = 116; ACC2 = 180
    sC2 = 39; sFl = 47; sFu = 46; sSig = 48
    stamp(a, 8)
    srd(a, S_W2, 92, 3584 * 2048 * 2)
    srd(a, S_WO, 96, 1024 * 1024 * 2)
    for vD, LD in ((vD1W, 4096), (vD2W, 2048)):
        for j in range(1, 4): a(f"v_add_u32 v{vD[j]}, {(j&1)*32*LD + (j>>1)*128}, v{vD[0]}")
    a(f"s_add_u32 s{sRho}, s{sTD}, s{sTS}")
    a(f"s_mov_b32 s{sN}, 0")
    a(f"v_mov_b32 v{vT1}, 0")
    a(f"v_mov_b32 v{vT2}, s{sE}")
    a(f"v_and_b32 v16, 15, v{vLane}")
    a("v_lshlrev_b32 v16, 2, v16")
    def rdT(vR): return lambda slot: [(vR[slot // 2], (slot % 2) * SB + i * 256) for i in range(4)]
    def rdW(vE, vO): return lambda slot: [((vO if b & 1 else vE)[slot // 2], (slot % 2) * SB + (b >> 1) * 512, (slot % 2) * SB + (b >> 1) * 512 + 2048) for b in range(4)]
    def mf1(fT, fW):
        return [f"v_mfma_f32_16x16x32_bf16 v[{ACC+(i*4+j)*4}:{ACC+(i*4+j)*4+3}], v[{fT(i)}:{fT(i)+3}], v[{fW(j)}:{fW(j)+3}], v[{ACC+(i*4+j)*4}:{ACC+(i*4+j)*4+3}]" for i in range(4) for j in range(4)]
    def mf2(fT, fW):
        return [f"v_mfma_f32_16x16x32_bf16 v[{ACC2+(i*4+j)*4}:{ACC2+(i*4+j)*4+3}], v[{fW(i)}:{fW(i)+3}], v[{fT(j)}:{fT(j)+3}], v[{ACC2+(i*4+j)*4}:{ACC2+(i*4+j)*4+3}]" for j in range(4) for i in range(4)]
    p1 = Part(srdT=S_U, srdW=S_W2, vDT=vD1T, vDW=vD1W, stT=8 * 16384, stW=64 * 4096, rdT=rdT(vR1T), rdW=rdW(vR1E, vR1O), mf=mf1, auxT='sc1')
    p2 = Part(srdT=S_OP, srdW=S_WO, vDT=vD2T, vDW=vD2W, stT=8 * 32768, stW=64 * 2048, rdT=rdT(vR2T), rdW=rdW(vR2E, vR2O), mf=mf2, auxT='sc1')
    if NA % 4: p1.norot = NA & ~3
    core = Core(a, "p3", NS, SB, TB, 4, 4, vF, sW1024, sN, sRho, sKT, sKW, sT1, sT2, sCnt)
    a("s_waitcnt vmcnt(0)")
    a("s_barrier")
    a(f"s_cmp_lg_u32 s{sWave}, 0")
    a("s_cbranch_scc1 P3_nosig")
    a("s_mov_b64 exec, 1")
    a(f"buffer_store_dword v{vT2}, v{vT1}, s[{S_WS}:{S_WS+3}], s{sSig} offen sc1")
    a("s_mov_b64 exec, -1")
    a.label("P3_nosig")
    a(f"s_cmp_ge_u32 s{sWave}, 4")
    a("s_cbranch_scc1 P3_nold0")
    a("s_bitcmp1_b32 s2, 7")
    a("s_cbranch_scc1 P3_wA")
    core.prologue(p2, True, "W")
    a("s_branch P3_nold0")
    a.label("P3_wA")
    core.prologue(p1, True, "W")
    a.label("P3_nold0")
    a(f"s_mov_b32 s{sN}, 0")
    srd(a, S_OUT, 94, 4096)
    a(f"v_lshlrev_b32 v8, 3, v{vS}")
    a(f"v_lshlrev_b32 v12, 1, v{vS}")
    a(f"s_mov_b32 s{sT1}, {G_OFF+4}")
    for j in range(4):
        a(f"buffer_load_dword v{vOMG+2*j}, v8, s[{S_WS}:{S_WS+3}], s{sT1} offen offset:{j*128} sc1")
        a(f"buffer_load_ushort v{vB2+2*j}, v12, s[{S_OUT}:{S_OUT+3}], 0 offen offset:{j*32}")
    srd(a, S_U, sWSp, 448 * 16384, U_OFF)
    srd(a, S_OP, sWSp, 4 * MB, OP_OFF)
    for vD, R16 in ((vD1T, 16384), (vD2T, 32768)):
        for j in range(1, 4): a(f"v_add_u32 v{vD[j]}, {j*2*R16}, v{vD[0]}")
    for vR in (vR1T, vR2T, vR1E, vR2E):
        a(f"v_add_u32 v{vR[1]}, {2*SB}, v{vR[0]}")
    for vE, vO in ((vR1E, vR1O), (vR2E, vR2O)):
        a(f"v_xor_b32 v{vO[0]}, 32, v{vE[0]}")
        a(f"v_xor_b32 v{vO[1]}, 32, v{vE[1]}")
    a(f"v_lshrrev_b32 v{vq}, 4, v{vLane}")
    for i in range(0, 64, 2):
        a(f"v_pk_mul_f32 v[{ACC+i}:{ACC+i+1}], v[{vT1}:{vT1+1}], v[{vT1}:{vT1+1}] op_sel_hi:[0,0]")

    def epi(role, kg):
        tag = f"{role}{kg}"
        stamp(a, 10)
        keep = (0, 1) if kg == 0 else (2, 3)
        send = (2, 3) if kg == 0 else (0, 1)
        a(f"s_lshl_b32 s{sT1}, s{sW1024}, 4")
        a(f"v_lshlrev_b32 v{vT1}, 4, v{vLane}")
        a(f"v_add_u32 v{vT2}, s{sT1}, v{vT1}")
        srd(a, S_OUT, 98, 2048 * 1024 * 2)
        a(f"s_lshl_b32 s{sKT}, s2, 3")
        a(f"s_add_u32 s{sKT}, s{sKT}, s{sWave}")
        a(f"s_lshl_b32 s{sKT}, s{sKT}, 12")
        a(f"s_add_u32 s{sKT}, s{sKT}, {XCH_OFF}")
        a(f"s_xor_b32 s{sKW}, s{sKT}, {128*8*4096}")
        a("s_barrier")
        for n in range(8):
            r = ACC + send[0] * 16 + 4 * n
            a(f"ds_write_b128 v{vT2}, v[{r}:{r+3}] offset:{kg*8192 + n*1024}")
        a("s_waitcnt lgkmcnt(0)")
        a("s_barrier")
        for n in range(8):
            a(f"ds_read_b128 v[{52+4*n}:{55+4*n}], v{vT2} offset:{(1-kg)*8192 + n*1024}")
        K0 = ACC + keep[0] * 16
        jk = (0, 2) if role == 0 else (1, 3)
        js = (1, 3) if role == 0 else (0, 2)
        order = [(ii, j) for j in js for ii in range(2)] + [(ii, j) for j in jk for ii in range(2)]
        a("s_waitcnt lgkmcnt(0)")
        cnt = 0
        for (ii, j) in order:
            n = ii * 4 + j; r = K0 + 4 * n
            for e in (0, 2): a(pk_add(r + e, r + e, 52 + 4 * n + e))
            if role == 0:
                for e in (0, 2): a(pk_mul_b(r + e, r + e, vOMG + 2 * j))
            if j in js:
                a(f"buffer_store_dwordx4 v[{r}:{r+3}], v{vT1}, s[{S_WS}:{S_WS+3}], s{sKT} offen offset:{cnt*1024} sc1")
                cnt += 1
        a(f"v_lshlrev_b32 v{vT2}, 11, v{vS}")
        a(f"v_and_b32 v8, 1, v{vq}")
        a(f"v_lshl_add_u32 v{vT2}, v8, 5, v{vT2}")
        a(f"v_lshrrev_b32 v8, 1, v{vq}")
        a(f"v_lshl_add_u32 v{vT2}, v8, 4, v{vT2}")
        a(f"s_lshl_b32 s{sT1}, s{sTD}, 8")
        a(f"s_bfe_u32 s{sT2}, s{sWave}, 0x10001")
        a(f"s_lshl_b32 s{sT2}, s{sT2}, 7")
        a(f"s_add_u32 s{sT1}, s{sT1}, s{sT2}")
        a(f"s_add_u32 s{sN}, s{sT1}, {kg*64}")
        a(f"s_lshl_b32 s{sT1}, s2, 7")
        a(f"s_add_u32 s{sT1}, s{sT1}, {F_X}")
        a(f"s_xor_b32 s{sT2}, s2, 128")
        a(f"s_lshl_b32 s{sT2}, s{sT2}, 7")
        a(f"s_add_u32 s{sT2}, s{sT2}, {F_X}")
        a("v_mov_b32 v8, 0")
        a(f"v_mov_b32 v9, s{sE}")
        a("s_waitcnt vmcnt(0)")
        a("s_barrier")
        if kg == 0:
            a(f"s_cmp_lg_u32 s{sWave}, 0")
            a(f"s_cbranch_scc1 P3_nf{tag}")
            a("s_mov_b64 exec, 1")
            a(f"buffer_store_dword v9, v8, s[{S_WS}:{S_WS+3}], s{sT1} offen sc1")
            a("s_mov_b64 exec, -1")
            a.label(f"P3_nf{tag}")
        stamp(a, 11)
        poll(a, f"x{tag}", 10, 8, S_WS, f"s{sT2}", sC2)
        for n in range(4):
            a(f"buffer_load_dwordx4 v[{52+4*n}:{55+4*n}], v{vT1}, s[{S_WS}:{S_WS+3}], s{sKW} offen offset:{n*1024} sc1")
        for jn, j in enumerate(jk):
            a(f"s_waitcnt vmcnt({2 if jn == 0 else 1})" if jn == 0 else "s_waitcnt vmcnt(1)")
            o = 84 + 4 * jn
            for ii in range(2):
                r = K0 + 4 * (ii * 4 + j); t = 52 + 4 * (jn * 2 + ii)
                for e in (0, 2): a(pk_add(r + e, r + e, t + e))
                a(f"v_cvt_pk_bf16_f32 v{o+2*ii}, v{r}, v{r+1}")
                a(f"v_cvt_pk_bf16_f32 v{o+2*ii+1}, v{r+2}, v{r+3}")
            a("s_nop 1")
            a(f"v_permlane16_swap_b32 v{o}, v{o+2}")
            a(f"v_permlane16_swap_b32 v{o+1}, v{o+3}")
            a(f"s_add_u32 s{sT1}, s{sN}, {j*16*2048}")
            a(f"buffer_store_dwordx4 v[{o}:{o+3}], v{vT2}, s[{S_OUT}:{S_OUT+3}], s{sT1} offen")
        a("s_branch P3_fin")

    a("s_bitcmp1_b32 s2, 7")
    a("s_cbranch_scc0 P3_B")
    a(f"s_cmp_ge_u32 s{sWave}, 4")
    a("s_cbranch_scc1 P3_A1")
    for kg in range(2):
        if kg:
            a.label("P3_A1")
            (a(f"s_cmp_lg_u32 s{sWave}, 4"), a("s_cbranch_scc1 Lq_depA"), poll(a, "depA", vT2, 16, S_WS, f"s{sFl}", sC2))
        if kg: a("s_waitcnt vmcnt(0)")
        a("s_barrier")
        stamp(a, 9)
        core.prologue(p1, kg == 0, "T")
        core.fs = 0; core.first(p1, kg == 0, vm=0); core.run(p1, NA, kg == 0)
        epi(0, kg)
    a.label("P3_B")
    a(f"s_cmp_ge_u32 s{sWave}, 4")
    a("s_cbranch_scc1 P3_B1")
    for kg in range(2):
        if kg:
            a.label("P3_B1")
            for i in range(0, 64, 2):
                a(f"v_pk_mul_f32 v[{ACC2+i}:{ACC2+i+1}], v[{vT1}:{vT1+1}], v[{vT1}:{vT1+1}] op_sel_hi:[0,0]")
            (a(f"s_cmp_lg_u32 s{sWave}, 4"), a("s_cbranch_scc1 Lq_depB"), poll(a, "depB", vT2, 16, S_WS, f"s{sFl}", sC2))
        if kg: a("s_waitcnt vmcnt(0)")
        a("s_barrier")
        stamp(a, 9)
        core.prologue(p2, kg == 0, "T")
        if kg == 0:
            a("s_waitcnt vmcnt(16)")
            for j in range(4):
                a(f"v_lshlrev_b32 v{vB2+2*j}, 16, v{vB2+2*j}")
                a(f"v_mul_f32 v{vB2+2*j}, v{vB2+2*j}, v{vOMG+2*j}")
            for i in range(4):
                for j in range(4):
                    for e in (0, 2):
                        r = ACC2 + (i * 4 + j) * 4 + e
                        a(f"v_pk_add_f32 v[{r}:{r+1}], v[{vB2+2*j}:{vB2+2*j+1}], v[{vT1}:{vT1+1}] op_sel_hi:[0,0]")
        core.fs = 0; core.first(p2, kg == 0, vm=0)
        hook = None if kg == 0 else (lambda: (a(f"s_cmp_lg_u32 s{sWave}, 4"), a("s_cbranch_scc1 Lq_dep2"), poll(a, "dep2", vT2, 16, S_WS, f"s{sFu}", sC2)))
        sl = core.run(p2, 16, kg == 0, nxt_part=p1, nxt_n0=NA, hook=hook)
        core.run(p1, 56 - NA, kg == 0, slot0=sl)
        a("s_nop 7")
        for i in range(4):
            for j in range(4):
                for e in (0, 2):
                    r = (i * 4 + j) * 4 + e
                    a(f"v_pk_fma_f32 v[{ACC+r}:{ACC+r+1}], v[{ACC+r}:{ACC+r+1}], v[{vOMG+2*j}:{vOMG+2*j+1}], v[{ACC2+r}:{ACC2+r+1}] op_sel_hi:[1,0,1]")
        epi(1, kg)
    a.label("P3_fin")


def phase3w_pre(a):
    sWave, sW1024, sT1, sT2, sA, sB = 28, 29, 34, 35, 32, 33
    vLane, vT1, vT2, vq, vr_, vc = 1, 2, 3, 4, 5, 6
    sTD, sTS, sRole, sN1 = 40, 41, 42, 43
    a(f"s_bfe_u32 s{sTD}, s2, 0x10001")
    a(f"s_lshl_b32 s{sTD}, s{sTD}, 2")
    a(f"s_and_b32 s{sT1}, s37, 3")
    a(f"s_add_u32 s{sTD}, s{sTD}, s{sT1}")
    a(f"s_bfe_u32 s{sTS}, s2, 0x10002")
    a(f"s_lshl_b32 s{sTS}, s{sTS}, 2")
    a(f"s_and_b32 s{sT1}, s38, 3")
    a(f"s_add_u32 s{sTS}, s{sTS}, s{sT1}")
    a(f"s_and_b32 s{sA}, s2, 1")
    a(f"s_mul_i32 s{sT1}, s{sA}, {NA}")
    a(f"s_mul_i32 s{sT2}, s{sA}, {56-NA}")
    a(f"s_add_u32 s{sT2}, s{sT2}, {2*NA}")
    a(f"s_add_u32 s{sB}, s{sA}, 2")
    a("s_bitcmp1_b32 s2, 7")
    a(f"s_cselect_b32 s{sRole}, s{sA}, s{sB}")
    a(f"s_cselect_b32 s{sN1}, s{sT1}, s{sT2}")
    a(f"v_lshlrev_b32 v{vT1}, 4, v{vLane}")
    a(f"s_bfe_u32 s{sT1}, s{sWave}, 0x10001")
    a(f"s_lshl_b32 s{sT1}, s{sT1}, 14")
    a(f"s_and_b32 s{sT2}, s{sWave}, 1")
    a(f"s_lshl_b32 s{sT2}, s{sT2}, 10")
    a(f"s_add_u32 s{sT1}, s{sT1}, s{sT2}")
    a(f"s_lshl_b32 s{sT2}, s{sTD}, 11")
    a(f"s_add_u32 s{sT1}, s{sT1}, s{sT2}")
    a(f"v_add_u32 v{PB}, s{sT1}, v{vT1}")
    a(f"s_lshl_b32 s{sT1}, s{sTS}, 12")
    a(f"s_add_u32 s{sT1}, s{sT1}, s{sW1024}")
    a(f"v_add_u32 v{PB+1}, s{sT1}, v{vT1}")
    a(f"v_lshrrev_b32 v{vT2}, 5, v{vLane}")
    a(f"v_lshlrev_b32 v{vT2}, 6, v{vT2}")
    a(f"v_lshl_add_u32 v{vT2}, v{vc}, 4, v{vT2}")
    a(f"v_and_b32 v{vT1}, 16, v{vLane}")
    a(f"v_lshlrev_b32 v{vT1}, 1, v{vT1}")
    a(f"v_xor_b32 v{vT2}, v{vT1}, v{vT2}")
    a(f"v_bfe_u32 v{vT1}, v{vLane}, 2, 3")
    for n, (LD, sTile, sh) in enumerate(((4096, sTS, 9), (2048, sTD, 8))):
        a(f"v_lshl_add_u32 v{PB+2+n}, v{vT1}, {log2(LD)}, v{vT2}")
        a(f"s_mul_i32 s{sT1}, s{sW1024}, {8*LD//1024}")
        a(f"s_lshl_b32 s{sT2}, s{sTile}, {sh}")
        a(f"s_add_u32 s{sT1}, s{sT1}, s{sT2}")
        a(f"v_add_u32 v{PB+2+n}, s{sT1}, v{PB+2+n}")
    a(f"s_lshr_b32 s{sA}, s{sWave}, 2")
    a(f"v_and_b32 v{PB+8}, 15, v{vLane}")
    a(f"v_lshlrev_b32 v{vT1}, 4, v{PB+8}")
    a(f"v_lshl_add_u32 v{PB+4}, v{vq}, 11, v{vT1}")
    a(f"v_lshl_add_u32 v{PB+4}, s{sA}, 10, v{PB+4}")
    a(f"v_lshl_add_u32 v{PB+5}, v{vq}, 12, v{vT1}")
    a(f"v_add_u32 v{PB+5}, s{sW1024}, v{PB+5}")
    a(f"v_lshrrev_b32 v{vT1}, 1, v{vq}")
    a(f"v_lshlrev_b32 v{vT1}, 10, v{vT1}")
    a(f"v_and_b32 v{vT2}, 1, v{vq}")
    a(f"v_mul_u32_u24 v{vT2}, 288, v{vT2}")
    a(f"v_add_u32 v{vT1}, v{vT2}, v{vT1}")
    a(f"v_lshl_add_u32 v{vT1}, v{vr_}, 6, v{vT1}")
    a(f"v_lshl_add_u32 v{vT1}, v{vc}, 3, v{vT1}")
    a(f"v_lshl_add_u32 v{PB+6}, s{sW1024}, 2, v{vT1}")
    a(f"v_add_u32 v{PB+6}, 8192, v{PB+6}")
    a(f"v_lshl_add_u32 v{PB+7}, s{sA}, 12, v{vT1}")
    a(f"v_add_u32 v{PB+7}, 16384, v{PB+7}")
    a(f"s_lshl_b32 s{sT1}, s{sTS}, 8")
    a(f"s_lshr_b32 s{sT2}, s{sW1024}, 4")
    a(f"s_add_u32 s{sT1}, s{sT1}, s{sT2}")
    a(f"v_add_u32 v{PB+8}, s{sT1}, v{PB+8}")
    a(f"s_lshl_b32 s46, s{sTD}, 7")
    a(f"s_add_u32 s46, s46, {F_U}")
    a(f"s_lshl_b32 s47, s{sTS}, 7")
    a(f"s_add_u32 s47, s47, {F_O}")
    a(f"s_lshl_b32 s48, s37, 7")
    a(f"s_lshl_b32 s{sT1}, s38, 2")
    a(f"s_add_u32 s48, s48, s{sT1}")
    a("s_bitcmp1_b32 s2, 7")
    a(f"s_cselect_b32 s47, s46, s47")
    a(f"s_cselect_b32 s{sT1}, 0, {F_O - F_U}")
    a(f"s_add_u32 s48, s48, s{sT1}")
    a(f"s_add_u32 s48, s48, {F_U}")

def phase3w(a):
    S_U, S_W2, S_WS, S_OP, S_WO, S_OUT = 8, 12, 16, 20, 24, 56
    sWave, sW1024, sN, sRho, sKT, sKW, sT1, sT2, sCnt = 28, 29, 30, 31, 32, 33, 34, 35, 36
    sTD, sTS, sRole, sN1 = 40, 41, 42, 43
    sWSp = 44
    vLane, vT1, vT2, vq = 1, 2, 3, 4
    NS, SB = 4, 24576
    vD1T = [PB, 9]; vD1W = [PB+2, 13, 14, 15]; vD2T = [PB+1, 17, 18, 19]; vD2W = [PB+3, 21]
    vR1T = [PB+4, 25]; vR1E = [PB+6, 27]; vR1O = [28, 29]; vR2T = [PB+5, 31]; vR2E = [PB+7, 33]; vR2O = [34, 35]
    vS = PB + 8
    vOMG = 36; vB2 = 44
    vF = [52, 84]; ACC = 116; ACC2 = 180
    sC2 = 39; sFl = 47; sFu = 46; sSig = 48
    NB = 56 - NA
    stamp(a, 8)
    srd(a, S_W2, 92, 3584 * 2048 * 2)
    srd(a, S_WO, 96, 1024 * 1024 * 2)
    for vD in (vD1W, vD2W):
        for j in range(1, len(vD)): a(f"v_add_u32 v{vD[j]}, {j*128}, v{vD[0]}")
    a(f"s_add_u32 s{sRho}, s{sTD}, s{sTS}")
    a(f"s_and_b32 s49, s2, 1")
    a(f"s_lshl_b32 s49, s49, 4")
    a("s_bitcmp1_b32 s2, 7")
    a(f"s_cselect_b32 s49, s{sN1}, s49")
    a(f"s_mov_b32 s{sN}, s49")
    a(f"v_mov_b32 v{vT1}, 0")
    a(f"v_mov_b32 v{vT2}, s{sE}")
    a(f"v_and_b32 v16, 15, v{vLane}")
    a("v_lshlrev_b32 v16, 2, v16")
    def rdT(vR): return lambda slot: [(vR[slot // 2], (slot % 2) * SB + i * 256) for i in range(4)]
    def rdW(vE, vO): return lambda slot: [((vO if b & 1 else vE)[slot // 2], (slot % 2) * SB + (b >> 1) * 512, (slot % 2) * SB + (b >> 1) * 512 + 2048) for b in range(4)]
    def mf1(fT, fW):
        return [f"v_mfma_f32_16x16x32_bf16 v[{ACC+(i*4+j)*4}:{ACC+(i*4+j)*4+3}], v[{fT(i)}:{fT(i)+3}], v[{fW(j)}:{fW(j)+3}], v[{ACC+(i*4+j)*4}:{ACC+(i*4+j)*4+3}]" for i in range(4) for j in range(4)]
    def mf2(fT, fW):
        return [f"v_mfma_f32_16x16x32_bf16 v[{ACC2+(i*4+j)*4}:{ACC2+(i*4+j)*4+3}], v[{fW(i)}:{fW(i)+3}], v[{fT(j)}:{fT(j)+3}], v[{ACC2+(i*4+j)*4}:{ACC2+(i*4+j)*4+3}]" for j in range(4) for i in range(4)]
    p1 = Part(srdT=S_U, srdW=S_W2, vDT=vD1T, vDW=vD1W, stT=4 * 16384, stW=32 * 4096, rdT=rdT(vR1T), rdW=rdW(vR1E, vR1O), mf=mf1, auxT='sc1', TB=8192)
    p2 = Part(srdT=S_OP, srdW=S_WO, vDT=vD2T, vDW=vD2W, stT=4 * 32768, stW=32 * 2048, rdT=rdT(vR2T), rdW=rdW(vR2E, vR2O), mf=mf2, auxT='sc1', TB=16384)
    core = Core(a, "p3", NS, SB, 0, 4, 4, vF, sW1024, sN, sRho, sKT, sKW, sT1, sT2, sCnt)
    a("s_waitcnt vmcnt(0)")
    a("s_barrier")
    a(f"s_cmp_lg_u32 s{sWave}, 0")
    a("s_cbranch_scc1 P3_nosig")
    a("s_mov_b64 exec, 1")
    a(f"buffer_store_dword v{vT2}, v{vT1}, s[{S_WS}:{S_WS+3}], s{sSig} offen sc1")
    a("s_mov_b64 exec, -1")
    a.label("P3_nosig")
    a(f"s_cmp_ge_u32 s{sWave}, 4")
    a("s_cbranch_scc1 P3_nold0")
    a("s_bitcmp1_b32 s2, 7")
    a("s_cbranch_scc1 P3_wA")
    core.prologue(p2, True, "W")
    a("s_branch P3_nold0")
    a.label("P3_wA")
    core.prologue(p1, True, "W")
    a.label("P3_nold0")
    a(f"s_mov_b32 s{sN}, s49")
    srd(a, S_OUT, 94, 4096)
    a(f"v_lshlrev_b32 v8, 3, v{vS}")
    a(f"v_lshlrev_b32 v12, 1, v{vS}")
    a(f"s_mov_b32 s{sT1}, {G_OFF+4}")
    for j in range(4):
        a(f"buffer_load_dword v{vOMG+2*j}, v8, s[{S_WS}:{S_WS+3}], s{sT1} offen offset:{j*128} sc1")
        a(f"buffer_load_ushort v{vB2+2*j}, v12, s[{S_OUT}:{S_OUT+3}], 0 offen offset:{j*32}")
    srd(a, S_U, sWSp, 448 * 16384, U_OFF)
    srd(a, S_OP, sWSp, 4 * MB, OP_OFF)
    a(f"v_add_u32 v{vD1T[1]}, {2*16384}, v{vD1T[0]}")
    for j in range(1, 4): a(f"v_add_u32 v{vD2T[j]}, {j*32768}, v{vD2T[0]}")
    for vR in (vR1T, vR2T, vR1E, vR2E):
        a(f"v_add_u32 v{vR[1]}, {2*SB}, v{vR[0]}")
    for vE, vO in ((vR1E, vR1O), (vR2E, vR2O)):
        a(f"v_xor_b32 v{vO[0]}, 32, v{vE[0]}")
        a(f"v_xor_b32 v{vO[1]}, 32, v{vE[1]}")
    a(f"v_lshrrev_b32 v{vq}, 4, v{vLane}")
    for i in range(0, 64, 2):
        a(f"v_pk_mul_f32 v[{ACC+i}:{ACC+i+1}], v[{vT1}:{vT1+1}], v[{vT1}:{vT1+1}] op_sel_hi:[0,0]")
    def w4poll(tag, addr):
        a(f"s_cmp_lg_u32 s{sWave}, 4")
        a(f"s_cbranch_scc1 Lq_{tag}")
        poll(a, tag, vT2, 16, S_WS, f"s{addr}", sC2)
    a("s_bitcmp1_b32 s2, 7")
    a("s_cbranch_scc0 P3_B")
    a(f"s_cmp_ge_u32 s{sWave}, 4")
    a("s_cbranch_scc1 P3_A1")
    for nl in range(2):
        if nl:
            a.label("P3_A1")
            w4poll("depA", sFl)
            a("s_waitcnt vmcnt(0)")
        a("s_barrier")
        stamp(a, 9)
        core.prologue(p1, nl == 0, "T")
        core.fs = 0; core.first(p1, nl == 0, vm=0); core.run(p1, NA, nl == 0)
        if nl == 0: a("s_branch P3_Aend")
    a.label("P3_Aend")
    a("s_nop 6")
    for j in range(4):
        for i in range(4):
            for e in (0, 2):
                r = ACC + (i * 4 + j) * 4 + e
                a(pk_mul_b(r, r, vOMG + 2 * j))
    a("s_branch P3_epi")
    a.label("P3_B")
    a("s_waitcnt vmcnt(0)")
    a("s_bitcmp0_b32 s2, 0")
    a(f"s_cselect_b32 s{sT1}, 1.0, 0")
    for j in range(4):
        a(f"v_lshlrev_b32 v{vB2+2*j}, 16, v{vB2+2*j}")
        a(f"v_mul_f32 v{vB2+2*j}, v{vB2+2*j}, v{vOMG+2*j}")
        a(f"v_mul_f32 v{vB2+2*j}, s{sT1}, v{vB2+2*j}")
    for i in range(4):
        for j in range(4):
            for e in (0, 2):
                r = ACC2 + (i * 4 + j) * 4 + e
                a(f"v_pk_add_f32 v[{r}:{r+1}], v[{vB2+2*j}:{vB2+2*j+1}], v[{vT1}:{vT1+1}] op_sel_hi:[0,0]")
    a(f"s_cmp_ge_u32 s{sWave}, 4")
    a("s_cbranch_scc1 P3_B1")
    for nl in range(2):
        if nl:
            a.label("P3_B1")
            w4poll("depB", sFl)
        a("s_barrier")
        stamp(a, 9)
        core.prologue(p2, nl == 0, "T")
        core.fs = 0; core.first(p2, nl == 0, vm=0)
        hook = None if nl == 0 else (lambda: w4poll("dep2", sFu))
        sl = core.run(p2, 16, nl == 0, nxt_part=p1, nxt_n0=f"s{sN1}", hook=hook)
        core.run(p1, NB, nl == 0, slot0=sl)
        if nl == 0: a("s_branch P3_Bend")
    a.label("P3_Bend")
    a("s_nop 6")
    for j in range(4):
        for i in range(4):
            for e in (0, 2):
                r = (i * 4 + j) * 4 + e
                a(f"v_pk_fma_f32 v[{ACC+r}:{ACC+r+1}], v[{ACC+r}:{ACC+r+1}], v[{vOMG+2*j}:{vOMG+2*j+1}], v[{ACC2+r}:{ACC2+r+1}] op_sel_hi:[1,0,1]")
    a.label("P3_epi")
    stamp(a, 10)
    a(f"s_lshl_b32 s{sT1}, s{sTD}, 3")
    a(f"s_add_u32 s{sT1}, s{sT1}, s{sTS}")
    a(f"s_lshl_b32 s{sN}, s{sT1}, 7")
    a(f"s_add_u32 s{sN}, s{sN}, {F_X}")
    a(f"s_lshl_b32 s{sT1}, s{sT1}, 19")
    a(f"s_lshl_b32 s{sT2}, s{sWave}, 12")
    a(f"s_add_u32 s{sT1}, s{sT1}, s{sT2}")
    a(f"s_add_u32 s{sT1}, s{sT1}, {XCH_OFF}")
    a(f"s_lshl_b32 s{sKT}, s{sRole}, 15")
    a(f"s_add_u32 s{sKT}, s{sKT}, s{sT1}")
    a(f"s_lshl_b32 s{sKW}, s{sRole}, 17")
    a(f"s_add_u32 s{sKW}, s{sKW}, s{sT1}")
    a(f"v_lshlrev_b32 v8, 4, v{vLane}")
    for role in range(4):
        a(f"s_cmp_eq_u32 s{sRole}, {role}")
        a(f"s_cbranch_scc1 P3_e{role}")
    for role in range(4):
        a.label(f"P3_e{role}")
        others = [(role + k) % 4 for k in (1, 2, 3)]
        for j in others:
            a(f"s_add_u32 s{sT1}, s{sKT}, {j << 17}")
            if XBF:
                o = ACC2 + 8 * j
                for i in range(4):
                    r = ACC + (i * 4 + j) * 4
                    a(f"v_cvt_pk_bf16_f32 v{o+2*i}, v{r}, v{r+1}")
                    a(f"v_cvt_pk_bf16_f32 v{o+2*i+1}, v{r+2}, v{r+3}")
                    if i & 1: a(f"buffer_store_dwordx4 v[{o+2*i-2}:{o+2*i+1}], v8, s[{S_WS}:{S_WS+3}], s{sT1} offen offset:{(i>>1)*1024} sc1")
                continue
            for i in range(4):
                r = ACC + (i * 4 + j) * 4
                a(f"buffer_store_dwordx4 v[{r}:{r+3}], v8, s[{S_WS}:{S_WS+3}], s{sT1} offen offset:{i*1024} sc1")
        for i in range(4):
            r = ACC + (i * 4 + role) * 4
            for e in (0, 2): a(f"v_pk_add_f32 v[{52+4*i+e}:{53+4*i+e}], v[{r+e}:{r+e+1}], v[{vT1}:{vT1+1}] op_sel_hi:[1,0]")
        if role < 3: a("s_branch P3_e4")
    a.label("P3_e4")
    srd(a, S_OUT, 98, 2048 * 1024 * 2)
    a(f"v_lshl_add_u32 v9, s{sRole}, 4, v{vS}")
    a("v_lshlrev_b32 v9, 11, v9")
    a(f"v_and_b32 v10, 1, v{vq}")
    a("v_lshl_add_u32 v9, v10, 5, v9")
    a(f"v_lshrrev_b32 v10, 1, v{vq}")
    a("v_lshl_add_u32 v9, v10, 4, v9")
    a(f"s_lshl_b32 s{sCnt}, s{sTD}, 8")
    a(f"s_lshr_b32 s{sT2}, s{sWave}, 2")
    a(f"s_lshl_b32 s{sT2}, s{sT2}, 7")
    a(f"s_add_u32 s{sCnt}, s{sCnt}, s{sT2}")
    a(f"v_mov_b32 v{vT2}, s{sE}")
    a(f"v_and_b32 v16, 3, v{vLane}")
    a("v_lshlrev_b32 v16, 2, v16")
    a(f"s_lshl_b32 s{sT2}, s{sRole}, 2")
    a(f"s_add_u32 s{sT2}, s{sT2}, s{sN}")
    for k in (1, 2, 3):
        a(f"s_add_u32 s{sT1}, s{sRole}, {k}")
        a(f"s_and_b32 s{sT1}, s{sT1}, 3")
        a(f"s_lshl_b32 s{sT1}, s{sT1}, 15")
        a(f"s_add_u32 s{8+k}, s{sT1}, s{sKW}")
    a("s_waitcnt vmcnt(0)")
    a("s_barrier")
    a(f"s_cmp_lg_u32 s{sWave}, 0")
    a("s_cbranch_scc1 P3_nf")
    a("s_mov_b64 exec, 1")
    a(f"buffer_store_dword v{vT2}, v{vT1}, s[{S_WS}:{S_WS+3}], s{sT2} offen sc1")
    a("s_mov_b64 exec, -1")
    a.label("P3_nf")
    stamp(a, 11)
    poll(a, "x", 10, 16, S_WS, f"s{sN}", sC2)
    nld = 2 if XBF else 4
    for k in (1, 2, 3):
        for i in range(nld):
            r = ACC + ((k - 1) * 4 + i) * 4
            a(f"buffer_load_dwordx4 v[{r}:{r+3}], v8, s[{S_WS}:{S_WS+3}], s{8+k} offen offset:{i*1024} sc1")
    for k in (1, 2, 3):
        a(f"s_waitcnt vmcnt({nld*(3-k)})")
        if XBF:
            for n in range(8):
                r = ACC + (k - 1) * 16 + n
                a(f"v_lshlrev_b32 v{ACC2+2*n}, 16, v{r}")
                a(f"v_and_b32 v{ACC2+2*n+1}, 0xffff0000, v{r}")
                a(pk_add(52 + 2 * n, 52 + 2 * n, ACC2 + 2 * n))
            continue
        for i in range(4):
            r = ACC + ((k - 1) * 4 + i) * 4
            for e in (0, 2): a(pk_add(52 + 4 * i + e, 52 + 4 * i + e, r + e))
    for h in range(2):
        o = 84 + 4 * h
        for ii in range(2):
            r = 52 + 4 * (2 * h + ii)
            a(f"v_cvt_pk_bf16_f32 v{o+2*ii}, v{r}, v{r+1}")
            a(f"v_cvt_pk_bf16_f32 v{o+2*ii+1}, v{r+2}, v{r+3}")
    for h in range(2):
        o = 84 + 4 * h
        if h == 1: a("s_nop 0")
        a(f"v_permlane16_swap_b32 v{o}, v{o+2}")
        a(f"v_permlane16_swap_b32 v{o+1}, v{o+3}")
        a(f"buffer_store_dwordx4 v[{o}:{o+3}], v9, s[{S_OUT}:{S_OUT+3}], s{sCnt} offen offset:{h*64} {OUTAUX}")

def gen_k1(a):
    name = NAME + "_kernel"
    kernel_header(a, name)
    S_T, S_W, S_WS, S_AUX = 8, 12, 16, 24
    sWave, sW1024, sN, sRho, sKT, sKW, sT1, sT2, sCnt, sTT, sTW = 28, 29, 30, 31, 32, 33, 34, 35, 36, 37, 38
    sWSp = 44
    ST = 48
    vLane, vT1, vT2, vq, vr_, vc = 1, 2, 3, 4, 5, 6
    a("s_cmp_ge_u32 s2, 256")
    a("s_cbranch_scc1 L1_end")
    a(f"s_load_dwordx2 s[{sWSp}:{sWSp+1}], s[0:1], {A_WS}")
    a(f"s_load_dwordx4 s[4:7], s[0:1], {A_X}")
    a(f"s_load_dwordx2 s[20:21], s[0:1], {A_WPHI}")
    a(f"s_load_dwordx4 s[40:43], s[0:1], {A_W1}")
    if FUSE:
        a(f"s_load_dwordx4 s[92:95], s[0:1], {A_W2}")
        a(f"s_load_dwordx2 s[96:97], s[0:1], {A_WO}")
        a(f"s_load_dwordx2 s[98:99], s[0:1], {A_OUT}")
        a(f"s_load_dwordx2 s[22:23], s[0:1], {A_DBG}")
        a(f"s_load_dwordx2 s[100:101], s[0:1], {A_GW}")
    stamp(a, 0)
    stamp_cyc(a, CYC)
    a(f"v_lshrrev_b32 v{vT1}, 6, v0")
    a(f"v_and_b32 v{vLane}, 63, v0")
    a(f"v_readfirstlane_b32 s{sWave}, v{vT1}")
    lane_bits(a, vLane, vq, vr_, vc)
    a(f"s_and_b32 s{sT1}, s2, 7")
    a(f"s_lshr_b32 s{sT2}, s2, 3")
    a(f"s_and_b32 s{sTT}, s{sT1}, 1")
    a(f"s_lshl_b32 s{sTT}, s{sTT}, 2")
    a(f"s_and_b32 s3, s{sT2}, 3")
    a(f"s_add_u32 s{sTT}, s{sTT}, s3")
    a(f"s_lshr_b32 s{sTW}, s{sT1}, 1")
    a(f"s_lshl_b32 s{sTW}, s{sTW}, 2")
    a(f"s_bfe_u32 s{sRho}, s{sT2}, 0x20002")
    a(f"s_add_u32 s{sTW}, s{sTW}, s{sRho}")
    a(f"s_add_u32 s{sRho}, s{sRho}, s3")
    a(f"s_and_b32 s{sW1024}, s{sWave}, 3")
    a(f"s_lshl_b32 s{sW1024}, s{sW1024}, 10")
    a(f"s_mov_b32 s{sN}, 0")
    if PRIO:
        a(f"s_cmp_ge_u32 s{sWave}, 4")
        a("s_cbranch_scc1 L1_p0" if PRIO == 1 else "s_cbranch_scc0 L1_p0")
        a("s_setprio 1")
        a.label("L1_p0")
    if PF_CODE:
        a(f"s_cmp_lg_u32 s{sWave}, 7")
        a("s_cbranch_scc1 L1_npc")
        a("s_getpc_b64 s[88:89]")
        a.label("L1_pc")
        a(f"v_lshlrev_b32 v8, 7, v{vLane}")
        a("v_lshl_add_u32 v8, s3, 14, v8")
        a("v_add_u32 v9, 8192, v8")
        a("v_min_u32 v8, L1_end-L1_pc, v8")
        a("v_min_u32 v9, L1_end-L1_pc, v9")
        a("global_load_dword v10, v8, s[88:89]")
        a("global_load_dword v10, v9, s[88:89]")
        a.label("L1_npc")
    a(f"s_cmp_ge_u32 s{sT2}, 16")
    a("s_waitcnt lgkmcnt(0)")
    srd(a, S_DBG, 22, 256)
    a("s_cbranch_scc1 L1_g1")

    NS, TB, WB = 4, 16384, 12288
    SB = TB + WB
    WPHI = NS * SB
    MT, MW = 4, 6
    vDT = [8, 9, 10, 11]; vDW = [12, 13, 14]
    vRT = [16, 17]; vRE = [18, 19]; vRO = [20, 21]
    vF = [24, 64]; ACC = 104
    srd(a, S_T, 4, 2048 * 1024 * 2)
    srd(a, S_W, 6, 1024 * 3072 * 2)
    srd(a, S_AUX, 20, 65536)
    srd(a, S_WS, sWSp, WS_BYTES)
    a(f"v_lshrrev_b32 v{vT1}, 2, v{vLane}")
    a(f"v_lshlrev_b32 v{vT1}, 11, v{vT1}")
    a(f"v_lshl_add_u32 v{vT1}, v{vc}, 4, v{vT1}")
    a(f"v_and_b32 v{vT2}, 32, v{vLane}")
    a(f"v_xor_b32 v{vT1}, v{vT2}, v{vT1}")
    a(f"s_lshl_b32 s{sT1}, s{sTT}, 19")
    a(f"s_lshl_b32 s{sT2}, s{sWave}, 15")
    a(f"s_add_u32 s{sT1}, s{sT1}, s{sT2}")
    for j, v in enumerate(vDT):
        a(f"s_add_u32 s{sT2}, s{sT1}, {j*64*2048}")
        a(f"v_add_u32 v{v}, s{sT2}, v{vT1}")
    a(f"v_bfe_u32 v{vT1}, v{vLane}, 2, 3")
    a(f"v_mul_u32_u24 v{vT1}, 6144, v{vT1}")
    a(f"v_lshrrev_b32 v{vT2}, 5, v{vLane}")
    a(f"v_lshl_add_u32 v{vT1}, v{vT2}, 6, v{vT1}")
    a(f"v_lshl_add_u32 v{vT1}, v{vc}, 4, v{vT1}")
    a(f"s_and_b32 s{sT1}, s{sWave}, 1")
    a(f"s_lshl_b32 s{sT1}, s{sT1}, 5")
    a(f"v_xor_b32 v{vT1}, s{sT1}, v{vT1}")
    a(f"s_mul_i32 s{sT1}, s{sWave}, {8*6144}")
    a(f"s_lshl_b32 s{sT2}, s{sTW}, 7")
    a(f"s_add_u32 s{sT1}, s{sT1}, s{sT2}")
    for j, v in enumerate(vDW):
        a(f"s_add_u32 s{sT2}, s{sT1}, {j*2048}")
        a(f"v_add_u32 v{v}, s{sT2}, v{vT1}")
    def q_rdT(slot): return [(vRT[slot // 2], (slot % 2) * SB + i * 1024) for i in range(MT)]
    def q_rdW(slot): return [((vRO if b & 1 else vRE)[slot // 2], (slot % 2) * SB + (b >> 1) * 4096, (slot % 2) * SB + (b >> 1) * 4096 + 256) for b in range(MW)]
    def q_mf(fT, fW):
        m = []
        for i in range(MT):
            for j in range(MW):
                d = ACC + (i * MW + j) * 4
                A, B = (fW(j), fT(i)) if j < 4 else (fT(i), fW(j))
                m.append(f"v_mfma_f32_16x16x32_bf16 v[{d}:{d+3}], v[{A}:{A+3}], v[{B}:{B+3}], v[{d}:{d+3}]")
        return m
    pq = Part(srdT=S_T, srdW=S_W, vDT=vDT, vDW=vDW, stT=64, stW=32 * 6144, rdT=q_rdT, rdW=q_rdW, mf=q_mf)
    core = Core(a, "q", NS, SB, TB, MT, MW, vF, sW1024, sN, sRho, sKT, sKW, sT1, sT2, sCnt)
    a(f"s_cmp_ge_u32 s{sWave}, 4")
    a("s_cbranch_scc1 L1q_nold0")
    a(f"v_lshlrev_b32 v{vT1}, 4, v{vLane}")
    a(f"s_lshl_b32 s{sT1}, s{sTW}, 12")
    a(f"s_add_u32 s{sT1}, s{sT1}, s{sW1024}")
    a(f"s_add_u32 m0, s{sW1024}, {WPHI}")
    a("s_nop 0")
    a(f"buffer_load_dwordx4 v{vT1}, s[{S_AUX}:{S_AUX+3}], s{sT1} offen lds")
    core.prologue(pq, True)
    a.label("L1q_nold0")
    (phase3w_pre if P3W else phase3_pre)(a)
    a(f"v_and_b32 v{vT1}, 15, v{vLane}")
    a(f"v_lshlrev_b32 v{vT1}, 6, v{vT1}")
    a(f"v_lshl_add_u32 v{vT1}, v{vq}, 4, v{vT1}")
    a(f"v_and_b32 v{vT2}, 8, v{vLane}")
    a(f"v_lshlrev_b32 v{vT2}, 2, v{vT2}")
    a(f"v_xor_b32 v{vT1}, v{vT2}, v{vT1}")
    a(f"s_lshr_b32 s{sT1}, s{sWave}, 1")
    a(f"s_lshl_b32 s{sT1}, s{sT1}, 12")
    a(f"v_add_u32 v{vRT[0]}, s{sT1}, v{vT1}")
    a(f"v_add_u32 v{vRT[1]}, {2*SB}, v{vRT[0]}")
    a(f"v_lshlrev_b32 v{vT1}, 10, v{vq}")
    a(f"v_lshl_add_u32 v{vT1}, v{vr_}, 6, v{vT1}")
    a(f"v_and_b32 v{vT2}, 1, v{vq}")
    a(f"v_lshl_add_u32 v{vT1}, v{vT2}, 5, v{vT1}")
    a(f"v_lshl_add_u32 v{vT1}, v{vc}, 3, v{vT1}")
    a(f"s_and_b32 s{sT1}, s{sWave}, 1")
    a(f"s_lshl_b32 s{sT1}, s{sT1}, 9")
    a(f"s_add_u32 s{sT1}, s{sT1}, {TB}")
    a(f"v_add_u32 v{vRE[0]}, s{sT1}, v{vT1}")
    a(f"v_add_u32 v{vRE[1]}, {2*SB}, v{vRE[0]}")
    a(f"v_xor_b32 v{vRO[0]}, 32, v{vRE[0]}")
    a(f"v_xor_b32 v{vRO[1]}, 32, v{vRE[1]}")
    for i in range(MT * MW * 4):
        a(f"v_mov_b32 v{ACC+i}, 0")
    a(f"s_cmp_ge_u32 s{sWave}, 4")
    a("s_cbranch_scc1 L1q_nold")
    def q_hook():
        a(f"s_cmp_lg_u32 s{sWave}, 4")
        a("s_cbranch_scc1 L1q_h")
        a(f"v_lshlrev_b32 v8, 3, v{vLane}")
        a("v_mov_b32 v9, 0")
        a("s_and_b32 s39, s2, 7")
        a("s_lshl_b32 s39, s39, 9")
        a(f"s_add_u32 s39, s39, {F_LN}")
        a(f"buffer_load_dword v7, v9, s[{S_DBG}:{S_DBG+3}], 0 offen sc1")
        a(f"buffer_load_dwordx2 v[10:11], v8, s[{S_WS}:{S_WS+3}], s39 offen sc1")
        a.label("L1q_h")
    def q_check(tag):
        a(f"s_cmp_lg_u32 s{sWave}, 4")
        a("s_cbranch_scc1 L1q_epi")
        a("s_waitcnt vmcnt(0)")
        poll_check(a, 7, target="nz")
        a(f"s_cbranch_vccz Lq_e{tag}")
        poll(a, "e" + tag, 7, 9, S_DBG, "0", sT1, target="nz")
        a(f"v_readfirstlane_b32 s{sE}, v7")
        a("s_nop 1")
        poll_check(a, 10, wide=True)
        a(f"s_cbranch_vccz Lq_{tag}")
        poll(a, tag, 10, 8, S_WS, "s39", sT1, wide=True)
        a(f"v_mov_b32 v9, {WPHI+4096}")
        a("ds_write_b32 v9, v7")
        a("s_waitcnt lgkmcnt(0)")
    core.fs = 0; core.first(pq, True); core.run(pq, 32, True)
    a("s_branch L1q_epi")
    a.label("L1q_nold")
    core.fs = 0; core.first(pq, False)
    core.run(pq, 32, False, hook=q_hook)
    q_check("lnq")
    a.label("L1q_epi")
    stamp(a, 1)
    stamp_cyc(a, CYC + 2)
    a("s_barrier")
    stamp(a, 2)
    a(f"v_mov_b32 v7, {WPHI+4096}")
    a("ds_read_b32 v7, v7")
    vPhiA = 8
    vAdr, vAdr2, vOA, vZ = 16, 17, 18, 19
    vG = 20
    PHQ = 200
    PITCH = 136
    AREA = 64 * PITCH
    sHead, sL = sRho, sN
    def Dt(t): return ACC + (t // 4) * 24 + 8 + (t % 4) * 4
    a(f"v_lshl_add_u32 v{vT1}, v{vq}, 2, v{vr_}")
    a(f"v_lshlrev_b32 v{vT2}, 6, v{vT1}")
    a(f"v_lshl_add_u32 v{vT2}, v{vc}, 3, v{vT2}")
    a(f"s_and_b32 s{sT1}, s{sWave}, 1")
    a(f"s_lshl_b32 s{sT2}, s{sT1}, 11")
    a(f"s_add_u32 s{sT2}, s{sT2}, {WPHI}")
    a(f"v_add_u32 v{vT2}, s{sT2}, v{vT2}")
    for fb in range(2):
        a(f"ds_read_b64_tr_b16 v[{vPhiA+4*fb}:{vPhiA+4*fb+1}], v{vT2} offset:{fb*32}")
        a(f"ds_read_b64_tr_b16 v[{vPhiA+4*fb+2}:{vPhiA+4*fb+3}], v{vT2} offset:{fb*32+1024}")
    a(f"s_mul_i32 s{sT2}, s{sT1}, {AREA}")
    a(f"s_lshr_b32 s{sKW}, s{sWave}, 1")
    a(f"s_lshl_b32 s{sKW}, s{sKW}, 5")
    a(f"s_add_u32 s{sT2}, s{sT2}, s{sKW}")
    a(f"v_mul_u32_u24 v{vAdr2}, {PITCH}, v{vT1}")
    a(f"v_lshl_add_u32 v{vAdr2}, v{vc}, 3, v{vAdr2}")
    a(f"v_add_u32 v{vAdr2}, s{sT2}, v{vAdr2}")
    a(f"s_mul_i32 s{sT2}, s{sWave}, {AREA}")
    a(f"v_and_b32 v{vT1}, 15, v{vLane}")
    a(f"v_mul_u32_u24 v{vAdr}, {PITCH}, v{vT1}")
    a(f"v_lshl_add_u32 v{vAdr}, v{vq}, 3, v{vAdr}")
    a(f"v_add_u32 v{vAdr}, s{sT2}, v{vAdr}")
    a(f"s_lshl_b32 s{sHead}, s{sTW}, 1")
    a(f"s_add_u32 s{sHead}, s{sHead}, s{sT1}")
    a(f"s_lshl_b32 s{sKW}, s{sTT}, 2")
    a(f"s_lshr_b32 s{sT2}, s{sWave}, 1")
    a(f"s_add_u32 s{sKW}, s{sKW}, s{sT2}")
    a(f"v_lshlrev_b32 v{vOA}, 3, v{vT1}")
    a(f"s_lshl_b32 s{sT2}, s{sKW}, 9")
    a(f"s_add_u32 s{sT2}, s{sT2}, {G_OFF}")
    for i in range(4):
        a(f"buffer_load_dword v{vG+i}, v{vOA}, s[{S_WS}:{S_WS+3}], s{sT2} offen offset:{i*128} sc1")
    a(f"v_lshlrev_b32 v{vOA}, 15, v{vq}")
    a(f"v_lshl_add_u32 v{vOA}, v{vT1}, 4, v{vOA}")
    a(f"s_lshl_b32 s{sKW}, s{sKW}, 10")
    a(f"s_lshl_b32 s{sT2}, s{sHead}, 17")
    a(f"s_add_u32 s{sKW}, s{sKW}, s{sT2}")
    a(f"s_add_u32 s{sKW}, s{sKW}, {OP_OFF}")
    a(f"s_mov_b32 s{sL}, {L2E}")
    a(f"v_mov_b32 v{vZ}, 0")
    if PF_W2:
        srd(a, S_T, 92, 3584 * 2048 * 2)
        srd(a, S_W, 96, 1024 * 1024 * 2)
        a(f"v_lshlrev_b32 v232, 7, v{vLane}")
        a(f"v_lshl_add_u32 v232, s{sWave}, 13, v232")
        a(f"v_lshl_add_u32 v232, s2, 16, v232")
        a(f"v_add_u32 v233, {8*MB}, v232")
        a(f"buffer_load_dword v234, v232, s[{S_T}:{S_T+3}], 0 offen")
    def red4x2(r1, op1, r2, op2, post=None):
        def seq(r, op):
            A, B, C, D = r, r + 2, r + 4, r + 6
            return [[f"v_permlane32_swap_b32 v{A}, v{B}", f"v_permlane32_swap_b32 v{C}, v{D}"],
                    [f"{op} v{A}, v{A}, v{B}", f"{op} v{C}, v{C}, v{D}"],
                    [f"v_permlane16_swap_b32 v{A}, v{C}"],
                    [f"{op} v{A}, v{A}, v{C}"],
                    post(A) if post else [],
                    [f"v_mov_b32 v{C}, v{A}"],
                    [f"v_permlane16_swap_b32 v{A}, v{C}"],
                    [f"v_mov_b32 v{B}, v{A}", f"v_mov_b32 v{D}, v{C}"],
                    [f"v_permlane32_swap_b32 v{A}, v{B}", f"v_permlane32_swap_b32 v{C}, v{D}"]]
        A, B = seq(r1, op1), seq(r2, op2)
        a("s_nop 1")
        for n, (x, y) in enumerate(zip(A, B)):
            for l in x: a(l)
            for l in y: a(l)
            if n in (1, 4, 5): a("s_nop 0")
    def softmax(X, mid=None):
        for i in range(4):
            for h in range(2):
                s0 = ACC + (i * MW + 2 * X + h) * 4
                a(f"v_cvt_pk_bf16_f32 v{24+4*i+2*h}, v{s0}, v{s0+1}")
                a(f"v_cvt_pk_bf16_f32 v{24+4*i+2*h+1}, v{s0+2}, v{s0+3}")
        if X == 1:
            a("s_waitcnt lgkmcnt(0)")
            a(f"v_readfirstlane_b32 s{sE}, v7")
        a("s_nop 1")
        for i in range(4):
            for fb in range(2):
                d = 40 + 8 * i + 4 * fb
                a(f"v_mfma_f32_16x16x32_bf16 v[{d}:{d+3}], v[{vPhiA+4*fb}:{vPhiA+4*fb+3}], v[{24+4*i}:{27+4*i}], 0")
        a("s_nop 3")
        for i in range(4):
            p = 40 + 8 * i
            if i == 3: a("s_nop 0")
            for (op3, op2, dst) in (("v_max3_f32", "v_max_f32", 72 + 2 * i), ("v_min3_f32", "v_min_f32", 80 + 2 * i)):
                a(f"{op3} v{dst}, v{p}, v{p+1}, v{p+2}")
                a(f"{op3} v{dst}, v{dst}, v{p+3}, v{p+4}")
                a(f"{op3} v{dst}, v{dst}, v{p+5}, v{p+6}")
                a(f"{op2} v{dst}, v{dst}, v{p+7}")
        red4x2(72, "v_max_f32", 80, "v_min_f32", post=lambda r: [f"v_mul_f32 v{r}, s{sL}, v{r}"])
        for i in range(4):
            p = 40 + 8 * i; e = ACC + (i * MW + 2 * X) * 4
            for n in range(0, 8, 2):
                a(pk_fma_sL(e + n, p + n, sL, 72 + 2 * i, 0, 1))
                a(pk_fma_sL(p + n, p + n, sL, 80 + 2 * i, 1, 0))
                for z in (e + n, e + n + 1, p + n, p + n + 1): a(f"v_exp_f32 v{z}, v{z}")
                if n == 4:
                    a(pk_add(24, e, e + 2)); a(pk_add(26, p, p + 2))
                if n == 6:
                    a(pk_add(24, 24, e + 4)); a(pk_add(26, 26, p + 4))
            a(pk_add(24, 24, e + 6)); a(pk_add(26, 26, p + 6))
            a(f"v_add_f32 v{72+2*i}, v24, v25")
            a(f"v_add_f32 v{80+2*i}, v26, v27")
            if mid and i == 1: mid()
        red4x2(72, "v_add_f32", 80, "v_add_f32", post=lambda r: [f"v_rcp_f32 v{r}, v{r}"])
        for i in range(4):
            p = 40 + 8 * i; e = ACC + (i * MW + 2 * X) * 4
            for sg, (src, rs) in enumerate(((e, 72 + 2 * i), (p, 80 + 2 * i))):
                for n in range(0, 8, 2):
                    a(pk_mul_b(src + n, src + n, rs))
                o = (88 + 8 * (i % 2) + 4 * sg) if X == 1 else PHQ + (i * 2 + sg) * 4
                for n in range(4):
                    a(f"v_cvt_pk_bf16_f32 v{o+n}, v{src+2*n}, v{src+2*n+1}")
                if X == 1:
                    for fb in range(2):
                        a(f"ds_write_b64 v{vAdr}, v[{o+2*fb}:{o+2*fb+1}] offset:{i*16*PITCH + sg*64 + fb*32}")
    softmax(1)
    stamp(a, 3)
    VAREA = 8 * AREA
    a(f"s_lshl_b32 s{sT2}, s{sWave}, 12")
    a(f"s_add_u32 s{sT2}, s{sT2}, {VAREA}")
    a(f"v_lshlrev_b32 v{vT1}, 4, v{vLane}")
    a(f"v_add_u32 v{vAdr}, s{sT2}, v{vT1}")
    for I in range(2):
        for db in range(2):
            o = 56 + 8 * I + 4 * db
            for h in range(2):
                s0 = ACC + ((2 * I + h) * MW + 4 + db) * 4
                a(f"v_cvt_pk_bf16_f32 v{o+2*h}, v{s0}, v{s0+1}")
                a(f"v_cvt_pk_bf16_f32 v{o+2*h+1}, v{s0+2}, v{s0+3}")
            a(f"ds_write_b128 v{vAdr}, v[{o}:{o+3}] offset:{(I*2+db)*1024}")
    for n in range(4): a(f"v_mov_b32 v{PHQ+n}, 0x3f803f80")
    a(f"s_and_b32 s{sT1}, s{sWave}, 1")
    a(f"s_lshl_b32 s{sT2}, s{sT1}, 12")
    a(f"s_add_u32 s{sT2}, s{sT2}, {VAREA}")
    a(f"v_add_u32 v{vAdr}, s{sT2}, v{vT1}")
    a(f"v_lshlrev_b32 v{vT2}, 2, v{vLane}")
    a(f"s_mul_i32 s{sKT}, s{sHead}, 12288")
    a(f"s_add_u32 s{sKT}, s{sKT}, {KV_OFF}")
    a(f"s_lshr_b32 s{sT2}, s{sWave}, 1")
    a(f"s_lshl_b32 s{sT1}, s{sT2}, 11")
    a(f"s_add_u32 s{sT1}, s{sT1}, s{sKT}")
    a(f"s_lshl_b32 s{sT2}, s{sT2}, 6")
    a(f"s_add_u32 s{sT2}, s{sT2}, s{sKT}")
    a(f"s_add_u32 s{sT2}, s{sT2}, 8192")
    a("s_waitcnt lgkmcnt(0)")
    a("s_barrier")
    stamp(a, 4)
    a("s_waitcnt lgkmcnt(0)") if STAMPS else None
    def VF(n, db): return Dt((n * 2 + db) % 12) if False else ACC + ((n * 2 + db) // 4) * 24 + 8 + ((n * 2 + db) % 4) * 4
    for n in range(8):
        o = 24 + 4 * n
        off = (n >> 1) * 2 * AREA + (n & 1) * 32 * PITCH
        a(f"ds_read_b64_tr_b16 v[{o}:{o+1}], v{vAdr2} offset:{off}")
        a(f"ds_read_b64_tr_b16 v[{o+2}:{o+3}], v{vAdr2} offset:{off + 16*PITCH}")
        for db in range(2):
            a(f"ds_read_b128 v[{VF(n,db)}:{VF(n,db)+3}], v{vAdr} offset:{(n>>1)*8192 + ((n&1)*2+db)*1024}")
        if n == 3 or n == 7:
            for m in range(n - 3, n + 1):
                a(f"s_waitcnt lgkmcnt({(n-m)*4})")
                for db in range(3):
                    d = 88 + 4 * db
                    A = VF(m, db) if db < 2 else PHQ
                    c = f"v[{d}:{d+3}]" if m else "0"
                    a(f"v_mfma_f32_16x16x32_bf16 v[{d}:{d+3}], v[{A}:{A+3}], v[{24+4*m}:{27+4*m}], {c}")
    a("s_nop 6")
    for n in range(8):
        a(f"buffer_atomic_add_f32 v{88+n}, v{vT2}, s[{S_WS}:{S_WS+3}], s{sT1} offen offset:{n*256}")
    a("s_mov_b64 exec, 0xffff")
    a(f"buffer_atomic_add_f32 v96, v{vT2}, s[{S_WS}:{S_WS+3}], s{sT2} offen")
    a("s_mov_b64 exec, -1")
    stamp(a, 5)
    a(f"s_lshl_b32 s{sT1}, s{sTW}, 7")
    a(f"s_add_u32 s{sT1}, s{sT1}, {F_KV}")
    def signal():
        a("s_waitcnt vmcnt(0)")
        a("s_barrier")
        a(f"s_cmp_lg_u32 s{sWave}, 0")
        a("s_cbranch_scc1 L1q_nosig")
        a(f"v_mov_b32 v{vT2}, s{sE}")
        a(f"s_lshl_b32 s{sT2}, s{sTT}, 2")
        a(f"s_add_u32 s{sT2}, s{sT2}, s{sT1}")
        a("s_mov_b64 exec, 1")
        a(f"buffer_store_dword v{vT2}, v{vZ}, s[{S_WS}:{S_WS+3}], s{sT2} offen sc1")
        a("s_mov_b64 exec, -1")
        a.label("L1q_nosig")
        if PF_W2:
            a(f"buffer_load_dword v234, v232, s[{S_W}:{S_W+3}], 0 offen")
            a(f"buffer_load_dword v234, v233, s[{S_T}:{S_T+3}], 0 offen")
    a(f"v_lshlrev_b32 v{vAdr2}, 4, v{vq}")
    a(f"v_lshl_add_u32 v{vAdr}, v{vc}, 8, v{vAdr2}")
    a(f"v_lshl_add_u32 v{vAdr}, v{vr_}, 6, v{vAdr}")
    softmax(0, mid=signal)
    stamp(a, 6)
    a(f"s_cmp_lg_u32 s{sWave}, 0")
    a("s_cbranch_scc1 Lq_kv")
    a(f"v_and_b32 v{vZ}, 7, v{vLane}")
    a(f"v_lshlrev_b32 v{vZ}, 2, v{vZ}")
    poll(a, "kv", vT2, vZ, S_WS, f"s{sT1}", sT2)
    a("s_barrier")
    stamp(a, 7)
    order = (0, 2, 1, 3, 8, 9, 4, 6, 5, 7, 10, 11)
    a(f"s_add_u32 s{sT1}, s{sKT}, 4096")
    a(f"s_add_u32 s{sT2}, s{sKT}, 8192")
    for t in order:
        if t < 8:
            a(f"buffer_load_dwordx4 v[{Dt(t)}:{Dt(t)+3}], v{vAdr}, s[{S_WS}:{S_WS+3}], s{(sKT, sT1)[t // 4]} offen offset:{(t%4)*1024} sc1")
        else:
            a(f"buffer_load_dwordx4 v[{Dt(t)}:{Dt(t)+3}], v{vAdr2}, s[{S_WS}:{S_WS+3}], s{sT2} offen offset:{(t-8)*64} sc1")
    for sg in range(2):
        a(f"s_waitcnt vmcnt({6 if sg == 0 else 0})")
        for db in range(3):
            o = 72 + (db * 2 + sg) * 4
            for h in range(2):
                fk = 2 * sg + h
                t = fk * 2 + db if db < 2 else 8 + fk
                a(f"v_cvt_pk_bf16_f32 v{o+2*h}, v{Dt(t)}, v{Dt(t)+1}")
                a(f"v_cvt_pk_bf16_f32 v{o+2*h+1}, v{Dt(t)+2}, v{Dt(t)+3}")
        a("s_nop 0")
        for db in range(3):
            for i in range(4):
                d = 24 + (i * 3 + db) * 4; o = 72 + (db * 2 + sg) * 4; b = PHQ + (i * 2 + sg) * 4
                c = f"v[{d}:{d+3}]" if sg else "0"
                a(f"v_mfma_f32_16x16x32_bf16 v[{d}:{d+3}], v[{o}:{o+3}], v[{b}:{b+3}], {c}")
    a("s_nop 7")
    for i in range(4):
        a(f"v_add_f32 v{96+2*i}, 0x358637bd, v{24+(i*3+2)*4}")
    for i in range(4):
        a(f"v_rcp_f32 v{96+2*i}, v{96+2*i}")
    a("s_nop 0")
    for i in range(4):
        a(f"v_mul_f32 v{96+2*i}, v{96+2*i}, v{vG+i}")
    for i in range(4):
        d = 24 + i * 12
        for n in range(0, 8, 2):
            a(pk_mul_b(d + n, d + n, 96 + 2 * i))
        for n in range(4):
            a(f"v_cvt_pk_bf16_f32 v{PHQ+4*i+n}, v{d+2*n}, v{d+2*n+1}")
        a(f"buffer_store_dwordx4 v[{PHQ+4*i}:{PHQ+4*i+3}], v{vOA}, s[{S_WS}:{S_WS+3}], s{sKW} offen offset:{i*256} {WT}")
    a("s_branch L1_fin")

    a.label("L1_g1")
    NS, TB, WB = 3, 16384, 28672
    SB = TB + WB
    MT, MW = 4, 7
    vDT = [8, 9, 10, 11]; vDW = [12, 13, 14, 15, 16, 17, 18]
    vRT = [20, 21, 22]; vRE = [23, 24, 25]; vRO = [26, 27, 28]; vR6 = [29, 30, 31]
    vF = [32, 76]; ACC = 120
    LDW = 7168
    srd(a, S_T, 4, 2048 * 1024 * 2)
    srd(a, 56, 100, 2048)
    srd(a, S_WS, sWSp, WS_BYTES)
    srd(a, S_W, 40, 2048 * 3584 * 2)
    srd(a, S_AUX, 42, 7168)
    a("s_and_b32 s39, s2, 127")
    def g_rdT(slot): return [(vRT[slot], i * 256) for i in range(MT)]
    def g_rdW(slot): return [((vRO if b & 1 else vRE)[slot], (b >> 1) * 4096, (b >> 1) * 4096 + 256) for b in range(6)] + [(vR6[slot], 0, 256)]
    def g_mf(fT, fW):
        m = []
        for i in range(MT):
            for j in range(MW):
                d = ACC + (i * MW + j) * 4
                m.append(f"v_mfma_f32_16x16x32_bf16 v[{d}:{d+3}], v[{fW(j)}:{fW(j)+3}], v[{fT(i)}:{fT(i)+3}], v[{d}:{d+3}]")
        return m
    pg = Part(srdT=S_T, srdW=S_W, vDT=vDT, vDW=vDW, stT=8 * 16384, stW=64 * LDW, rdT=g_rdT, rdW=g_rdW, mf=g_mf)
    core = Core(a, "g", NS, SB, TB, MT, MW, vF, sW1024, sN, sRho, sKT, sKW, sT1, sT2, sCnt)
    pg.auxT = "sc1"
    def hook():
        a(f"v_lshrrev_b32 v{vT1}, 2, v{vLane}")
        a(f"v_mul_u32_u24 v{vT1}, {LDW}, v{vT1}")
        a(f"v_lshl_add_u32 v{vT1}, v{vc}, 4, v{vT1}")
        a(f"v_and_b32 v{vT2}, 32, v{vLane}")
        a(f"v_xor_b32 v{vT1}, v{vT2}, v{vT1}")
        a(f"s_mul_i32 s{sT1}, s{sWave}, {16*LDW}")
        a(f"s_mul_i32 s{sT2}, s{sTW}, 448")
        a(f"s_add_u32 s{sT1}, s{sT1}, s{sT2}")
        for j, v in enumerate(vDW):
            a(f"s_add_u32 s{sT2}, s{sT1}, {j*64}")
            a(f"v_add_u32 v{v}, s{sT2}, v{vT1}")
        a(f"s_cmp_ge_u32 s{sWave}, 4")
        a("s_cbranch_scc1 L1g_h1")
        core.prologue(pg, True, "W")
        a(f"s_waitcnt vmcnt({NS*7})")
        a("s_branch L1g_h2")
        a.label("L1g_h1")
        for i in range(4): a(f"v_mov_b32 v{32+i}, 0")
        a(f"v_lshlrev_b32 v{vT1}, 4, v{vLane}")
        a(f"v_lshl_add_u32 v{vT1}, s39, 12, v{vT1}")
        a(f"s_add_u32 s{sT1}, s{sW1024}, {KV_OFF}")
        a(f"buffer_store_dwordx4 v[32:35], v{vT1}, s[{S_WS}:{S_WS+3}], s{sT1} offen sc1")
        npf = 0
        if PF_W1:
            a(f"v_lshlrev_b32 v39, 7, v{vLane}")
            a(f"v_lshl_add_u32 v39, s{sW1024}, 3, v39")
            a(f"v_lshl_add_u32 v39, s39, 15, v39")
            for n in range(4):
                if n: a(f"v_add_u32 v39, {4*MB}, v39")
                a(f"buffer_load_dword v40, v39, s[{S_W}:{S_W+3}], 0 offen")
            npf = 4
        a(f"s_cmp_lg_u32 s{sWave}, 4")
        a("s_cbranch_scc1 L1g_h3")
        a("s_memrealtime s[88:89]")
        a("v_mov_b32 v37, 0")
        a("s_waitcnt lgkmcnt(0)")
        a("s_or_b32 s88, s88, 1")
        a("v_mov_b32 v36, s88")
        a("v_mov_b32 v38, s88")
        a("s_mov_b64 exec, 1")
        a(f"buffer_atomic_cmpswap v[36:37], v37, s[{S_DBG}:{S_DBG+3}], 0 offen sc0 sc1")
        a("s_mov_b64 exec, -1")
        a(f"s_waitcnt vmcnt({2+npf})")
        a("s_branch L1g_h2")
        a.label("L1g_h3")
        a(f"s_waitcnt vmcnt({1+npf})")
        a.label("L1g_h2")
    ln_phase(a, 120, S_T, 56, S_WS, sWave, 39, hook)
    stamp(a, 2)
    srd(a, S_T, sWSp, 4 * MB, HT_OFF)
    a(f"s_mov_b32 s{sN}, 0")
    a(f"v_lshlrev_b32 v{vT1}, 4, v{vLane}")
    a(f"s_lshr_b32 s{sT1}, s{sWave}, 1")
    a(f"s_lshl_b32 s{sT1}, s{sT1}, 14")
    a(f"s_and_b32 s{sT2}, s{sWave}, 1")
    a(f"s_lshl_b32 s{sT2}, s{sT2}, 10")
    a(f"s_add_u32 s{sT1}, s{sT1}, s{sT2}")
    a(f"s_lshl_b32 s{sT2}, s{sTT}, 11")
    a(f"s_add_u32 s{sT1}, s{sT1}, s{sT2}")
    for j, v in enumerate(vDT):
        a(f"s_add_u32 s{sT2}, s{sT1}, {j*2*16384}")
        a(f"v_add_u32 v{v}, s{sT2}, v{vT1}")
    a(f"s_mul_i32 s{sT1}, s{sTW}, 448")
    a(f"s_and_b32 s{sT2}, s{sWave}, 1")
    a(f"s_lshl_b32 s{sKT}, s{sT2}, 8")
    a(f"s_add_u32 s{sKT}, s{sKT}, s{sT1}")
    a(f"s_lshl_b32 s{sT2}, s{sT2}, 5")
    a(f"s_add_u32 s{sT1}, s{sT1}, s{sT2}")
    a(f"v_lshlrev_b32 v{vT1}, 3, v{vq}")
    for b in range(6):
        a(f"buffer_load_dwordx2 v[{76+2*b}:{77+2*b}], v{vT1}, s[{S_AUX}:{S_AUX+3}], s{sKT} offen offset:{32*b}")
    a(f"buffer_load_dwordx2 v[88:89], v{vT1}, s[{S_AUX}:{S_AUX+3}], s{sT1} offen offset:192")
    (phase3w_pre if P3W else phase3_pre)(a)
    a(f"v_and_b32 v{vT1}, 15, v{vLane}")
    a(f"v_lshlrev_b32 v{vT1}, 4, v{vT1}")
    a(f"v_lshl_add_u32 v{vT1}, v{vq}, 11, v{vT1}")
    a(f"s_lshr_b32 s{sT1}, s{sWave}, 2")
    a(f"s_lshl_b32 s{sT1}, s{sT1}, 13")
    a(f"s_bfe_u32 s{sT2}, s{sWave}, 0x10001")
    a(f"s_lshl_b32 s{sT2}, s{sT2}, 10")
    a(f"s_add_u32 s{sT1}, s{sT1}, s{sT2}")
    for s in range(NS):
        a(f"s_add_u32 s{sT2}, s{sT1}, {s*SB}")
        a(f"v_add_u32 v{vRT[s]}, s{sT2}, v{vT1}")
    a(f"v_lshlrev_b32 v{vT1}, 9, v{vq}")
    a(f"v_lshl_add_u32 v{vT1}, v{vr_}, 6, v{vT1}")
    a(f"v_and_b32 v{vT2}, 1, v{vq}")
    a(f"v_lshl_add_u32 v{vT1}, v{vT2}, 5, v{vT1}")
    a(f"v_lshl_add_u32 v{vT1}, v{vc}, 3, v{vT1}")
    a(f"v_xor_b32 v{vT2}, 32, v{vT1}")
    a(f"s_lshr_b32 s{sT1}, s{sWave}, 2")
    a(f"s_lshl_b32 s{sT1}, s{sT1}, 11")
    a(f"s_add_u32 s{sT1}, s{sT1}, {TB}")
    a(f"s_and_b32 s{sT2}, s{sWave}, 1")
    a(f"s_lshl_b32 s{sKT}, s{sT2}, 5")
    a(f"v_xor_b32 v7, s{sKT}, v{vT1}")
    a(f"s_lshl_b32 s{sKT}, s{sT2}, 14")
    a(f"s_add_u32 s{sKT}, s{sKT}, s{sT1}")
    for s in range(NS):
        a(f"s_add_u32 s{sT2}, s{sKT}, {s*SB}")
        a(f"v_add_u32 v{vRE[s]}, s{sT2}, v{vT1}")
        a(f"v_add_u32 v{vRO[s]}, s{sT2}, v{vT2}")
        a(f"s_add_u32 s{sT2}, s{sT1}, {s*SB + 3*4096}")
        a(f"v_add_u32 v{vR6[s]}, s{sT2}, v7")
    def g_epi(kg):
        stamp(a, 1)
        stamp_cyc(a, CYC + 2)
        keep = (0, 1) if kg == 0 else (2, 3)
        send = (2, 3) if kg == 0 else (0, 1)
        a(f"s_mul_i32 s{sT1}, s{sW1024}, 28")
        a(f"v_lshlrev_b32 v{vT1}, 4, v{vLane}")
        a(f"v_add_u32 v{vT1}, s{sT1}, v{vT1}")
        a(f"v_and_b32 v{vT2}, 15, v{vLane}")
        a(f"v_lshlrev_b32 v{vT2}, 4, v{vT2}")
        a(f"v_lshl_add_u32 v{vT2}, v{vq}, 14, v{vT2}")
        a(f"s_lshl_b32 s{sT1}, s{sTT}, 11")
        a(f"s_bfe_u32 s{sT2}, s{sWave}, 0x10001")
        a(f"s_lshl_b32 s{sT2}, s{sT2}, 10")
        a(f"s_add_u32 s{sT1}, s{sT1}, s{sT2}")
        a(f"s_add_u32 s{sT1}, s{sT1}, {U_OFF}")
        a(f"v_add_u32 v{vT2}, s{sT1}, v{vT2}")
        a(f"s_mul_i32 s{sN}, s{sTW}, 7")
        a(f"s_and_b32 s{sT2}, s{sWave}, 1")
        a(f"s_add_u32 s{sKW}, s{sN}, 3")
        a(f"s_lshl_b32 s{sKW}, s{sKW}, 16")
        a(f"s_lshl_b32 s{sT1}, s{sT2}, 3")
        a(f"s_add_u32 s{sKW}, s{sKW}, s{sT1}")
        a(f"s_lshl_b32 s{sT2}, s{sT2}, 2")
        a(f"s_add_u32 s{sN}, s{sN}, s{sT2}")
        a(f"s_lshl_b32 s{sN}, s{sN}, 16")
        a("s_barrier")
        a("s_nop 4")
        for n in range(14):
            r = ACC + (send[0] * MW + n) * 4
            a(f"ds_write_b128 v{vT1}, v[{r}:{r+3}] offset:{kg*14336 + n*1024}")
        a("s_waitcnt lgkmcnt(0)")
        a("s_barrier")
        for n in range(14):
            a(f"ds_read_b128 v[{32+4*n}:{35+4*n}], v{vT1} offset:{(1-kg)*14336 + n*1024}")
        import struct, math
        f2u = lambda f: struct.unpack("<I", struct.pack("<f", f))[0]
        c0 = -2 * math.sqrt(2 / math.pi) * math.log2(math.e)
        a(f"s_mov_b32 s{sKT}, {f2u(c0 * 0.044715):#x}")
        a(f"v_mov_b32 v6, {f2u(c0):#x}")
        for n in range(14):
            a(f"s_waitcnt lgkmcnt({13-n})")
            i = keep[n // 7]; b = n % 7
            r = ACC + (i * MW + b) * 4; t = 32 + 4 * n; w = 96 + 4 * (((n // 7) * 4 + b // 2) % 4) + 2 * (b & 1)
            for e in (0, 2): a(pk_add(r + e, r + e, t + e))
            for e in (0, 2): a(f"v_pk_mul_f32 v[{t+e}:{t+e+1}], v[{r+e}:{r+e+1}], v[{r+e}:{r+e+1}]")
            for e in (0, 2): a(pk_fma_sL(t + e, t + e, sKT, 6, 0, 0))
            for e in (0, 2): a(f"v_pk_mul_f32 v[{t+e}:{t+e+1}], v[{t+e}:{t+e+1}], v[{r+e}:{r+e+1}]")
            for e in range(4): a(f"v_exp_f32 v{t+e}, v{t+e}")
            if b & 1: a(f"s_add_u32 s{sT1}, s{sN}, {(b//2) << 16}")
            else: a("s_nop 0")
            for e in (0, 2): a(f"v_pk_add_f32 v[{t+e}:{t+e+1}], v[{t+e}:{t+e+1}], 1.0 op_sel_hi:[1,0]")
            for e in range(4): a(f"v_rcp_f32 v{t+e}, v{t+e}")
            a("s_nop 0")
            for e in (0, 2): a(f"v_pk_mul_f32 v[{r+e}:{r+e+1}], v[{r+e}:{r+e+1}], v[{t+e}:{t+e+1}]")
            a(f"v_cvt_pk_bf16_f32 v{w}, v{r}, v{r+1}")
            a(f"v_cvt_pk_bf16_f32 v{w+1}, v{r+2}, v{r+3}")
            if b == 6:
                a(f"buffer_store_dwordx2 v[{w}:{w+1}], v{vT2}, s[{S_WS}:{S_WS+3}], s{sKW} offen offset:{i*256} {WT}")
            elif b & 1:
                a(f"buffer_store_dwordx4 v[{w-2}:{w+1}], v{vT2}, s[{S_WS}:{S_WS+3}], s{sT1} offen offset:{i*256} {WT}")
        for z in (5, 6, 7): stamp(a, z)
    a("s_waitcnt vmcnt(0)")
    a(f"v_mov_b32 v{vT1}, {90112+256}")
    a(f"s_cmp_lg_u32 s{sWave}, 4")
    a("s_cbranch_scc1 L1g_ne")
    a("v_cmp_eq_u32 vcc, 0, v36")
    a("s_nop 1")
    a("v_cndmask_b32 v36, v36, v38, vcc")
    a("s_mov_b64 exec, 1")
    a(f"ds_write_b32 v{vT1}, v36")
    a("s_mov_b64 exec, -1")
    a("s_waitcnt lgkmcnt(0)")
    a.label("L1g_ne")
    a("s_barrier")
    a(f"ds_read_b32 v{vT2}, v{vT1}")
    a(f"v_lshlrev_b32 v{vT1}, 9, v{vLane}")
    a(f"s_lshl_b32 s{sT1}, s39, 2")
    a(f"s_add_u32 s{sT1}, s{sT1}, {F_LN}")
    a("s_waitcnt lgkmcnt(0)")
    a(f"v_readfirstlane_b32 s{sE}, v{vT2}")
    stamp(a, 3)
    a(f"s_cmp_ge_u32 s{sWave}, 4")
    a("s_cbranch_scc1 L1g_nold")
    a(f"s_cmp_lg_u32 s{sWave}, 0")
    a("s_cbranch_scc1 L1g_nf")
    a("s_mov_b64 exec, 0xff")
    a(f"buffer_store_dword v{vT2}, v{vT1}, s[{S_WS}:{S_WS+3}], s{sT1} offen sc1")
    a("s_mov_b64 exec, -1")
    a.label("L1g_nf")
    for b in range(7):
        for h in range(2):
            d = ACC + b * 4 + 2 * h
            a(f"v_lshlrev_b32 v{d}, 16, v{76+2*b+h}")
            a(f"v_and_b32 v{d+1}, 0xffff0000, v{76+2*b+h}")
    for i in range(1, 4):
        for n in range(28):
            a(f"v_mov_b32 v{ACC+i*28+n}, v{ACC+n}")
    a("s_barrier")
    stamp(a, 4)
    core.prologue(pg, True, "T")
    core.fs = 0; core.first(pg, True, vm=0); core.run(pg, 32, True)
    g_epi(0)
    a("s_branch L1_fin")
    a.label("L1g_nold")
    for i in range(MT * MW * 4):
        a(f"v_mov_b32 v{ACC+i}, 0")
    a(f"s_cmp_lg_u32 s{sWave}, 4")
    a("s_cbranch_scc1 Lq_lng")
    a(f"v_lshlrev_b32 v{vT1}, 3, v{vLane}")
    a(f"s_and_b32 s{sT2}, s2, 7")
    a(f"s_lshl_b32 s{sT2}, s{sT2}, 9")
    a(f"s_add_u32 s{sT2}, s{sT2}, {F_LN}")
    poll(a, "lng", 36, vT1, S_WS, f"s{sT2}", sT1, wide=True)
    a("s_barrier")
    core.fs = 0; core.first(pg, False); core.run(pg, 32, False)
    g_epi(1)
    a.label("L1_fin")
    if FUSE:
        (phase3w if P3W else phase3)(a)
        stamp_end(a, 13, 0, sWave, 8, sWSp, 8, "L1_st")
    else:
        stamp_end(a, 9, 1, sWave, 8, sWSp, S_AUX, "L1_st")
    a.label("L1_end")
    a("s_endpgm")
    return dict(name=name, grid=256, block=512, lds=135168, vgpr=256 if FUSE else 232)


def gen_k2(a):
    name = "k2_kernel"
    kernel_header(a, name)
    S_WS = 8
    a("s_cmp_ge_u32 s2, 256")
    a("s_cbranch_scc1 L2_end")
    a(f"s_load_dwordx2 s[4:5], s[0:1], {A_WS}")
    stamp(a, 0)
    stamp_cyc(a, CYC)
    stamp_cyc(a, CYC + 2)
    a("v_lshrrev_b32 v2, 6, v0")
    a("v_and_b32 v1, 63, v0")
    a("v_readfirstlane_b32 s20, v2")
    a("v_lshlrev_b32 v3, 4, v1")
    a("s_and_b32 s21, s2, 31")
    a("s_lshr_b32 s22, s2, 5")
    a("s_lshl_b32 s22, s22, 2")
    a("s_add_u32 s22, s22, s20")
    a("s_mul_i32 s23, s21, 12288")
    a(f"s_add_u32 s23, s23, {KV_OFF}")
    a("s_lshl_b32 s24, s21, 7")
    a("s_lshl_b32 s25, s22, 2")
    a("s_add_u32 s24, s24, s25")
    a("s_lshl_b32 s24, s24, 11")
    a(f"s_add_u32 s24, s24, {PQ_OFF}")
    a("v_and_b32 v4, 15, v1")
    a("v_lshlrev_b32 v5, 3, v4")
    a("s_lshl_b32 s25, s22, 9")
    a(f"s_add_u32 s25, s25, {G_OFF}")
    a("s_waitcnt lgkmcnt(0)")
    srd(a, S_WS, 4, WS_BYTES)
    for t in range(12):
        if t % 4 == 0 and t: a("s_add_u32 s23, s23, 4096")
        a(f"buffer_load_dwordx4 v[{16+4*t}:{19+4*t}], v3, s[8:11], s23 offen offset:{(t%4)*1024}")
    for n in range(8):
        if n == 4: a("s_add_u32 s24, s24, 4096")
        a(f"buffer_load_dwordx4 v[{64+4*n}:{67+4*n}], v3, s[8:11], s24 offen offset:{(n%4)*1024}")
    for i in range(4):
        a(f"buffer_load_dword v{8+i}, v5, s[8:11], s25 offen offset:{i*128}")
    a("v_lshrrev_b32 v6, 4, v1")
    a("v_lshlrev_b32 v6, 15, v6")
    a("v_lshl_add_u32 v6, v4, 4, v6")
    a("s_lshl_b32 s26, s21, 17")
    a("s_lshl_b32 s27, s22, 10")
    a("s_add_u32 s26, s26, s27")
    a(f"s_add_u32 s26, s26, {OP_OFF}")
    a("s_waitcnt vmcnt(12)")
    for db in range(3):
        for sg in range(2):
            o = 96 + (db * 2 + sg) * 4
            for h in range(2):
                fk = 2 * sg + h
                t = fk * 2 + db if db < 2 else 8 + fk
                a(f"v_cvt_pk_bf16_f32 v{o+2*h}, v{16+4*t}, v{17+4*t}")
                a(f"v_cvt_pk_bf16_f32 v{o+2*h+1}, v{18+4*t}, v{19+4*t}")
    a("s_waitcnt vmcnt(4)")
    for sg in range(2):
        for i in range(4):
            for db in range(3):
                d = 16 + (i * 3 + db) * 4; o = 96 + (db * 2 + sg) * 4; b = 64 + (i * 2 + sg) * 4
                c = f"v[{d}:{d+3}]" if sg else "0"
                a(f"v_mfma_f32_16x16x32_bf16 v[{d}:{d+3}], v[{o}:{o+3}], v[{b}:{b+3}], {c}")
    a("s_waitcnt vmcnt(0)")
    a("s_nop 7")
    for i in range(4):
        a(f"v_add_f32 v{12+i}, 0x358637bd, v{16+(i*3+2)*4}")
    for i in range(4):
        a(f"v_rcp_f32 v{12+i}, v{12+i}")
    a("s_nop 0")
    for i in range(4):
        a(f"v_mul_f32 v{12+i}, v{12+i}, v{8+i}")
    for i in range(4):
        d = 16 + i * 12
        for n in range(8):
            a(f"v_mul_f32 v{d+n}, v{d+n}, v{12+i}")
        for n in range(4):
            a(f"v_cvt_pk_bf16_f32 v{64+4*i+n}, v{d+2*n}, v{d+2*n+1}")
        a(f"buffer_store_dwordx4 v[{64+4*i}:{67+4*i}], v6, s[8:11], s26 offen offset:{i*256}")
    stamp_end(a, 2, 2, 20, 16, 4, 12, "L2_st")
    a.label("L2_end")
    a("s_endpgm")
    return dict(name=name, grid=256, block=256, lds=0, vgpr=120)

def gen_k3(a):
    name = "k3_kernel"
    kernel_header(a, name)
    S_U, S_W2, S_OP, S_WO, S_WS, S_OUT = 8, 12, 16, 20, 24, 56
    sWave, sW1024, sN, sRho, sKT, sKW, sT1, sT2, sCnt, sTD, sTS = 28, 29, 30, 31, 32, 33, 34, 35, 36, 37, 38
    sWSp = 44
    ST = 48
    vLane, vT1, vT2, vq, vr_, vc = 1, 2, 3, 4, 5, 6
    NS, TB, SB = 4, 16384, 32768
    vD1T = [8, 9, 10, 11]; vD1W = [12, 13, 14, 15]; vD2T = [16, 17, 18, 19]; vD2W = [20, 21, 22, 23]
    vR1T = [24, 25]; vR1E = [26, 27]; vR1O = [28, 29]; vR2T = [30, 31]; vR2E = [32, 33]; vR2O = [34, 35]
    vOMG = 36; vB2 = 44
    vF = [52, 84]; ACC = 116
    a("s_cmp_ge_u32 s2, 256")
    a("s_cbranch_scc1 L3_end")
    a(f"s_load_dwordx2 s[{sWSp}:{sWSp+1}], s[0:1], {A_WS}")
    a(f"s_load_dwordx4 s[4:7], s[0:1], {A_W2}")
    a(f"s_load_dwordx2 s[40:41], s[0:1], {A_WO}")
    a(f"s_load_dwordx2 s[42:43], s[0:1], {A_OUT}")
    stamp(a, 0)
    stamp_cyc(a, CYC)
    a(f"v_lshrrev_b32 v{vT1}, 6, v0")
    a(f"v_and_b32 v{vLane}, 63, v0")
    a(f"v_readfirstlane_b32 s{sWave}, v{vT1}")
    lane_bits(a, vLane, vq, vr_, vc)
    a(f"s_lshr_b32 s{sT2}, s2, 3")
    a(f"s_bfe_u32 s{sTD}, s2, 0x10001")
    a(f"s_lshl_b32 s{sTD}, s{sTD}, 2")
    a(f"s_and_b32 s3, s{sT2}, 3")
    a(f"s_add_u32 s{sTD}, s{sTD}, s3")
    a(f"s_bfe_u32 s{sTS}, s2, 0x10002")
    a(f"s_lshl_b32 s{sTS}, s{sTS}, 3")
    a(f"s_lshr_b32 s{sRho}, s{sT2}, 2")
    a(f"s_add_u32 s{sTS}, s{sTS}, s{sRho}")
    a(f"s_add_u32 s{sRho}, s{sRho}, s3")
    a(f"s_and_b32 s{sW1024}, s{sWave}, 3")
    a(f"s_lshl_b32 s{sW1024}, s{sW1024}, 10")
    a(f"s_and_b32 s{sN}, s2, 1")
    a(f"s_mul_i32 s{sN}, s{sN}, 36")
    a("s_waitcnt lgkmcnt(0)")
    srd(a, S_U, sWSp, 448 * 16384, U_OFF)
    srd(a, S_W2, 4, 3584 * 2048 * 2)
    srd(a, S_OP, sWSp, 4 * MB, OP_OFF)
    srd(a, S_WO, 40, 1024 * 1024 * 2)
    srd(a, S_WS, sWSp, WS_BYTES)
    srd(a, S_OUT, 6, 4096)
    a(f"v_lshlrev_b32 v{vT1}, 4, v{vLane}")
    for (vD, R16, sTile) in ((vD1T, 16384, sTD), (vD2T, 32768, sTS)):
        a(f"s_bfe_u32 s{sT1}, s{sWave}, 0x10001")
        a(f"s_mul_i32 s{sT1}, s{sT1}, {R16}")
        a(f"s_and_b32 s{sT2}, s{sWave}, 1")
        a(f"s_lshl_b32 s{sT2}, s{sT2}, 10")
        a(f"s_add_u32 s{sT1}, s{sT1}, s{sT2}")
        a(f"s_lshl_b32 s{sT2}, s{sTile}, 11")
        a(f"s_add_u32 s{sT1}, s{sT1}, s{sT2}")
        for j, v in enumerate(vD):
            a(f"s_add_u32 s{sT2}, s{sT1}, {j*2*R16}")
            a(f"v_add_u32 v{v}, s{sT2}, v{vT1}")
    for (vD, LD, sTile) in ((vD1W, 4096, sTS), (vD2W, 2048, sTD)):
        a(f"v_bfe_u32 v{vT1}, v{vLane}, 2, 3")
        a(f"v_mul_u32_u24 v{vT1}, {LD}, v{vT1}")
        a(f"v_lshrrev_b32 v{vT2}, 5, v{vLane}")
        a(f"v_lshl_add_u32 v{vT1}, v{vT2}, 6, v{vT1}")
        a(f"v_lshl_add_u32 v{vT1}, v{vc}, 4, v{vT1}")
        a(f"v_and_b32 v{vT2}, 16, v{vLane}")
        a(f"v_lshlrev_b32 v{vT2}, 1, v{vT2}")
        a(f"v_xor_b32 v{vT1}, v{vT2}, v{vT1}")
        a(f"s_mul_i32 s{sT1}, s{sW1024}, {8*LD//1024}")
        a(f"s_lshl_b32 s{sT2}, s{sTile}, 8")
        a(f"s_add_u32 s{sT1}, s{sT1}, s{sT2}")
        for j, v in enumerate(vD):
            a(f"s_add_u32 s{sT2}, s{sT1}, {(j&1)*32*LD + (j>>1)*128}")
            a(f"v_add_u32 v{v}, s{sT2}, v{vT1}")
    def rdT(vR): return lambda slot: [(vR[slot // 2], (slot % 2) * SB + i * 256) for i in range(4)]
    def rdW(vE, vO): return lambda slot: [((vO if b & 1 else vE)[slot // 2], (slot % 2) * SB + (b >> 1) * 512, (slot % 2) * SB + (b >> 1) * 512 + 2048) for b in range(4)]
    def mf1(fT, fW):
        return [f"v_mfma_f32_16x16x32_bf16 v[{ACC+(i*4+j)*4}:{ACC+(i*4+j)*4+3}], v[{fT(i)}:{fT(i)+3}], v[{fW(j)}:{fW(j)+3}], v[{ACC+(i*4+j)*4}:{ACC+(i*4+j)*4+3}]" for i in range(4) for j in range(4)]
    def mf2(fT, fW):
        return [f"v_mfma_f32_16x16x32_bf16 v[{ACC+(i*4+j)*4}:{ACC+(i*4+j)*4+3}], v[{fW(i)}:{fW(i)+3}], v[{fT(j)}:{fT(j)+3}], v[{ACC+(i*4+j)*4}:{ACC+(i*4+j)*4+3}]" for j in range(4) for i in range(4)]
    p1 = Part(srdT=S_U, srdW=S_W2, vDT=vD1T, vDW=vD1W, stT=8 * 16384, stW=64 * 4096, rdT=rdT(vR1T), rdW=rdW(vR1E, vR1O), mf=mf1)
    p2 = Part(srdT=S_OP, srdW=S_WO, vDT=vD2T, vDW=vD2W, stT=8 * 32768, stW=64 * 2048, rdT=rdT(vR2T), rdW=rdW(vR2E, vR2O), mf=mf2)
    core = Core(a, "k3", NS, SB, TB, 4, 4, vF, sW1024, sN, sRho, sKT, sKW, sT1, sT2, sCnt)
    a(f"v_and_b32 v{vT1}, 15, v{vLane}")
    a(f"s_lshl_b32 s{sT1}, s{sTS}, 7")
    a(f"s_and_b32 s{sT2}, s{sWave}, 1")
    a(f"s_lshl_b32 s{sT2}, s{sT2}, 6")
    a(f"s_add_u32 s{sT1}, s{sT1}, s{sT2}")
    a(f"v_add_u32 v7, s{sT1}, v{vT1}")
    a(f"v_lshlrev_b32 v{vT1}, 3, v7")
    a(f"v_lshlrev_b32 v{vT2}, 1, v7")
    a(f"s_mov_b32 s{sT1}, {G_OFF+4}")
    for j in range(4):
        a(f"buffer_load_dword v{vOMG+2*j}, v{vT1}, s[{S_WS}:{S_WS+3}], s{sT1} offen offset:{j*128}")
        a(f"buffer_load_ushort v{vB2+2*j}, v{vT2}, s[{S_OUT}:{S_OUT+3}], 0 offen offset:{j*32}")
    a(f"s_cmp_ge_u32 s{sWave}, 4")
    a("s_cbranch_scc1 L3_nold0")
    core.prologue(p1, True)
    a.label("L3_nold0")
    a(f"v_and_b32 v{vT1}, 15, v{vLane}")
    a(f"v_lshlrev_b32 v{vT1}, 4, v{vT1}")
    a(f"v_lshl_add_u32 v{vT1}, v{vq}, 11, v{vT1}")
    a(f"s_lshr_b32 s{sT1}, s{sWave}, 2")
    a(f"s_lshl_b32 s{sT1}, s{sT1}, 13")
    a(f"v_add_u32 v{vT1}, s{sT1}, v{vT1}")
    a(f"s_bfe_u32 s{sKT}, s{sWave}, 0x10001")
    a(f"s_and_b32 s{sKW}, s{sWave}, 1")
    for vR, sel in ((vR1T, sKT), (vR2T, sKW)):
        a(f"s_lshl_b32 s{sT2}, s{sel}, 10")
        a(f"v_add_u32 v{vR[0]}, s{sT2}, v{vT1}")
        a(f"v_add_u32 v{vR[1]}, {2*SB}, v{vR[0]}")
    a(f"v_lshrrev_b32 v{vT1}, 1, v{vq}")
    a(f"v_lshlrev_b32 v{vT1}, 10, v{vT1}")
    a(f"v_and_b32 v{vT2}, 1, v{vq}")
    a(f"v_mul_u32_u24 v{vT2}, 288, v{vT2}")
    a(f"v_add_u32 v{vT1}, v{vT2}, v{vT1}")
    a(f"v_lshl_add_u32 v{vT1}, v{vr_}, 6, v{vT1}")
    a(f"v_lshl_add_u32 v{vT1}, v{vc}, 3, v{vT1}")
    a(f"s_lshr_b32 s{sT1}, s{sT1}, 1")
    a(f"s_add_u32 s{sT1}, s{sT1}, {TB}")
    a(f"v_add_u32 v{vT1}, s{sT1}, v{vT1}")
    for vE, vO, sel in ((vR1E, vR1O, sKW), (vR2E, vR2O, sKT)):
        a(f"s_lshl_b32 s{sT2}, s{sel}, 13")
        a(f"v_add_u32 v{vE[0]}, s{sT2}, v{vT1}")
        a(f"v_add_u32 v{vE[1]}, {2*SB}, v{vE[0]}")
        a(f"v_xor_b32 v{vO[0]}, 32, v{vE[0]}")
        a(f"v_xor_b32 v{vO[1]}, 32, v{vE[1]}")
    for i in range(64):
        a(f"v_mov_b32 v{ACC+i}, 0")

    def epi(role, kg):
        tag = f"{role}{kg}"
        stamp(a, 1)
        stamp_cyc(a, CYC + 2)
        keep = (0, 1) if kg == 0 else (2, 3)
        send = (2, 3) if kg == 0 else (0, 1)
        a(f"s_lshl_b32 s{sT1}, s{sW1024}, 4")
        a(f"v_lshlrev_b32 v{vT1}, 4, v{vLane}")
        a(f"v_add_u32 v{vT2}, s{sT1}, v{vT1}")
        srd(a, S_OUT, 42, 2048 * 1024 * 2)
        a(f"s_lshl_b32 s{sKT}, s2, 3")
        a(f"s_add_u32 s{sKT}, s{sKT}, s{sWave}")
        a(f"s_lshl_b32 s{sKT}, s{sKT}, 12")
        a(f"s_add_u32 s{sKT}, s{sKT}, {XCH_OFF}")
        a(f"s_xor_b32 s{sKW}, s{sKT}, {8*4096}")
        a("s_barrier")
        for n in range(8):
            r = ACC + send[0] * 16 + 4 * n
            a(f"ds_write_b128 v{vT2}, v[{r}:{r+3}] offset:{kg*8192 + n*1024}")
        a("s_waitcnt lgkmcnt(0)")
        a("s_barrier")
        for n in range(8):
            a(f"ds_read_b128 v[{52+4*n}:{55+4*n}], v{vT2} offset:{(1-kg)*8192 + n*1024}")
        K0 = ACC + keep[0] * 16
        jk = (0, 2) if role == 0 else (1, 3)
        js = (1, 3) if role == 0 else (0, 2)
        order = [(ii, j) for j in js for ii in range(2)] + [(ii, j) for j in jk for ii in range(2)]
        a("s_waitcnt lgkmcnt(0)")
        cnt = 0
        for (ii, j) in order:
            n = ii * 4 + j; r = K0 + 4 * n
            for e in (0, 2): a(pk_add(r + e, r + e, 52 + 4 * n + e))
            if role == 0:
                for e in (0, 2): a(pk_mul_b(r + e, r + e, vOMG + 2 * j))
            if j in js:
                a(f"buffer_store_dwordx4 v[{r}:{r+3}], v{vT1}, s[{S_WS}:{S_WS+3}], s{sKT} offen offset:{cnt*1024} sc1")
                cnt += 1
        a(f"v_lshlrev_b32 v{vT2}, 11, v7")
        a(f"v_and_b32 v8, 1, v{vq}")
        a(f"v_lshl_add_u32 v{vT2}, v8, 5, v{vT2}")
        a(f"v_lshrrev_b32 v8, 1, v{vq}")
        a(f"v_lshl_add_u32 v{vT2}, v8, 4, v{vT2}")
        a(f"s_lshl_b32 s{sT1}, s{sTD}, 8")
        a(f"s_bfe_u32 s{sT2}, s{sWave}, 0x10001")
        a(f"s_lshl_b32 s{sT2}, s{sT2}, 7")
        a(f"s_add_u32 s{sT1}, s{sT1}, s{sT2}")
        a(f"s_add_u32 s{sN}, s{sT1}, {kg*64}")
        a(f"s_lshl_b32 s{sT1}, s2, 8")
        a(f"s_add_u32 s{sT1}, s{sT1}, {FLAG_OFF}")
        a(f"s_xor_b32 s{sT2}, s{sT1}, 256")
        a("v_mov_b32 v8, 0")
        a("v_mov_b32 v9, 1")
        a("s_waitcnt vmcnt(0)")
        a("s_barrier")
        if kg == 0:
            a(f"s_cmp_lg_u32 s{sWave}, 0")
            a(f"s_cbranch_scc1 L3_nf{tag}")
            a("s_mov_b64 exec, 1")
            a(f"buffer_store_dword v9, v8, s[{S_WS}:{S_WS+3}], s{sT1} offen sc1")
            a("s_mov_b64 exec, -1")
            a.label(f"L3_nf{tag}")
        stamp(a, 2)
        a.label(f"L3_poll{tag}")
        a(f"buffer_load_dword v9, v8, s[{S_WS}:{S_WS+3}], s{sT2} offen sc1")
        a("s_waitcnt vmcnt(0)")
        a(f"v_readfirstlane_b32 s{sCnt}, v9")
        a(f"s_cmp_eq_u32 s{sCnt}, 1")
        a(f"s_cbranch_scc1 L3_go{tag}")
        a("s_sleep 2")
        a(f"s_branch L3_poll{tag}")
        a.label(f"L3_go{tag}")
        for n in range(4):
            a(f"buffer_load_dwordx4 v[{52+4*n}:{55+4*n}], v{vT1}, s[{S_WS}:{S_WS+3}], s{sKW} offen offset:{n*1024} sc1")
        for jn, j in enumerate(jk):
            a(f"s_waitcnt vmcnt({2 if jn == 0 else 1})" if jn == 0 else "s_waitcnt vmcnt(1)")
            o = 84 + 4 * jn
            for ii in range(2):
                r = K0 + 4 * (ii * 4 + j); t = 52 + 4 * (jn * 2 + ii)
                for e in (0, 2): a(pk_add(r + e, r + e, t + e))
                a(f"v_cvt_pk_bf16_f32 v{o+2*ii}, v{r}, v{r+1}")
                a(f"v_cvt_pk_bf16_f32 v{o+2*ii+1}, v{r+2}, v{r+3}")
            a("s_nop 1")
            a(f"v_permlane16_swap_b32 v{o}, v{o+2}")
            a(f"v_permlane16_swap_b32 v{o+1}, v{o+3}")
            a(f"s_add_u32 s{sT1}, s{sN}, {j*16*2048}")
            a(f"buffer_store_dwordx4 v[{o}:{o+3}], v{vT2}, s[{S_OUT}:{S_OUT+3}], s{sT1} offen")
        a("s_branch L3_fin")

    a("s_bitcmp1_b32 s2, 0")
    a("s_cbranch_scc1 L3_B")
    a(f"s_cmp_ge_u32 s{sWave}, 4")
    a("s_cbranch_scc1 L3_A1")
    for kg in range(2):
        if kg: a.label("L3_A1")
        core.fs = 0; core.first(p1, kg == 0); core.run(p1, 36, kg == 0)
        if kg: a("s_waitcnt vmcnt(0)")
        epi(0, kg)
    a.label("L3_B")
    a(f"s_cmp_ge_u32 s{sWave}, 4")
    a("s_cbranch_scc1 L3_B1")
    for kg in range(2):
        if kg: a.label("L3_B1")
        core.fs = 0; core.first(p1, kg == 0)
        sl = core.run(p1, 20, kg == 0, nxt_part=p2)
        if kg: a("s_waitcnt vmcnt(0)")
        else:
            for j in range(4):
                a(f"v_lshlrev_b32 v{vB2+2*j}, 16, v{vB2+2*j}")
                a(f"v_mul_f32 v{vB2+2*j}, v{vB2+2*j}, v{vOMG+2*j}")
        a("s_nop 7")
        for i in range(4):
            for j in range(4):
                for e in (0, 2):
                    r = ACC + (i * 4 + j) * 4 + e
                    a(pk_fma_bb(r, r, vOMG + 2 * j, vB2 + 2 * j) if kg == 0 else pk_mul_b(r, r, vOMG + 2 * j))
        core.run(p2, 16, kg == 0, slot0=sl)
        epi(1, kg)
    a.label("L3_fin")
    stamp_end(a, 4, 2, sWave, 8, sWSp, S_U, "L3_st")
    a.label("L3_end")
    a("s_endpgm")
    return dict(name=name, grid=256, block=512, lds=131072, vgpr=180)

KERNELS = [gen_k0, gen_k1, gen_k3]

def build(kernels=None):
    a = Asm()
    infos = []
    for g in (kernels or [gen_k1]):
        infos.append(g(a))
    ref = open(f"cdna_kernels/{NAME}.s.ref").read().split("\n")
    hdr = [l for l in ref if l.startswith(";") and "@launch" not in l and "Override" not in l and "grid=ceil" not in l]
    hdr = hdr[:14]
    txt = "\n".join(hdr) + "\n"
    for i in infos:
        txt += f"; @launch {'' if SINGLE else 'kernel=' + i['name'] + ' '}grid=({i['grid']},1,1) block=({i['block']},1,1) lds={i['lds']}\n"
    txt += '.amdgcn_target "amdgcn-amd-amdhsa--gfx950"\n'
    txt += a.text().replace("STAMPWAVE", str(STAMPWAVE))
    for i in infos:
        v = (i['vgpr'] + 3) // 4 * 4
        txt += kernel_desc(i['name'], v, v)
    return txt

if __name__ == "__main__":
    STAMPS = "--stamps" in sys.argv
    for x in sys.argv:
        if x.startswith("--D"):
            k, v = x[3:].split("="); globals()[k] = eval(v)
    out = sys.argv[1] if len(sys.argv) > 1 and not sys.argv[1].startswith("--") else f"cdna_kernels/{NAME}.s"
    open(out, "w").write(build())
```

```python
import sys
from asmlib import *

NAME = "gated_mix__linear_kernel_hedgehog__mixer_token_mlp__prompt"
MB = 1 << 20
HT_OFF = 0
G_OFF = 4 * MB
U_OFF = 8 * MB
PQ_OFF = 16 * MB
KV_OFF = 24 * MB
OP_OFF = 28 * MB
XCH_OFF = 64 * MB
FLAG_OFF = 40 * MB
STAMP_OFF = 48 * MB
WS_BYTES = 268435456
A_X, A_WQKV, A_WPHI, A_WO, A_BX, A_W1, A_B1, A_W2, A_B2, A_GW, A_OUT, A_DBG, A_WS = [8 * i for i in range(13)]
STAMPS = False
STAMPWAVE = 0
PF_W2 = 0
PF_CODE = 0
PRIO = 0
P3W = 1
XBF = 1
SENT = 0
KVSPLIT = 0
PIPEPOLL = 0
SWAPQG = 0
LNPROG = 0
OUTAUX = ''
M0HOIST = 0
DMA_LO = 0
DMA_HI = 100
RD_START = 0
PF_W1 = 0
FUSE = 1
NA = 32
NSTAMP = [13]
SINGLE = 0
CYC = 60
WT = 'sc1'

def log2(x):
    l = x.bit_length() - 1
    assert 1 << l == x, x
    return l

def srd(a, s, base, nbytes, off=0):
    if off:
        a(f"s_add_u32 s{s}, s{base}, {off}")
        a(f"s_addc_u32 s{s+1}, s{base+1}, 0")
    else:
        a(f"s_mov_b32 s{s}, s{base}")
        a(f"s_mov_b32 s{s+1}, s{base+1}")
    a(f"s_mov_b32 s{s+2}, {nbytes}")
    a(f"s_mov_b32 s{s+3}, 0x20000")

def rnd_bf16(a, v, tmp=None):
    a(f"v_cvt_pk_bf16_f32 v{v}, v{v}, v{v}")
    a(f"v_and_b32 v{v}, 0xffff0000, v{v}")

SB0 = 64
def stamp(a, i):
    if STAMPS: a(f"s_memrealtime s[{SB0+2*i}:{SB0+2*i+1}]")
def stamp_cyc(a, s):
    if STAMPS: a(f"s_memtime s[{s}:{s+1}]")
def stamp_end(a, n, kidx, swave, v0, wsbase, sS, label):
    if not STAMPS: return
    a("s_waitcnt vmcnt(0)")
    stamp(a, n - 1)
    a(f"s_cmp_lg_u32 s{swave}, STAMPWAVE")
    a(f"s_cbranch_scc1 {label}")
    a("s_waitcnt lgkmcnt(0)")
    srd(a, sS, wsbase, 64 * 1024, STAMP_OFF + kidx * 65536)
    a(f"s_lshl_b32 s3, s2, 7")
    a(f"v_mov_b32 v{v0+2}, s3")
    a("s_mov_b64 exec, 1")
    for i in range(n + 2):
        src = SB0 + 2 * i if i < n else CYC + 2 * (i - n)
        a(f"v_mov_b32 v{v0}, s{src}")
        a(f"v_mov_b32 v{v0+1}, s{src+1}")
        a(f"buffer_store_dwordx2 v[{v0}:{v0+1}], v{v0+2}, s[{sS}:{sS+3}], 0 offen offset:{8*i if i < n else 112 + 8*(i-n)}")
        a("s_nop 1")
    a.label(label)

def gen_k0(a):
    name = "k0_kernel"
    kernel_header(a, name)
    a("s_cmp_ge_u32 s2, 256")
    a("s_cbranch_scc1 L0_end")
    a(f"s_load_dwordx2 s[4:5], s[0:1], {A_X}")
    a(f"s_load_dwordx2 s[6:7], s[0:1], {A_GW}")
    a(f"s_load_dwordx2 s[24:25], s[0:1], {A_WS}")
    stamp(a, 0)
    stamp_cyc(a, CYC)
    stamp_cyc(a, CYC + 2)
    a("v_lshrrev_b32 v2, 6, v0")
    a("v_and_b32 v1, 63, v0")
    a("v_readfirstlane_b32 s20, v2")
    a("v_lshlrev_b32 v3, 3, v0")
    a("v_lshlrev_b32 v4, 4, v1")
    a("s_lshl_b32 s21, s2, 14")
    a("s_lshl_b32 s22, s20, 12")
    a("s_add_u32 s22, s22, s21")
    a("s_waitcnt lgkmcnt(0)")
    srd(a, 8, 4, 2048 * 1024 * 2)
    srd(a, 12, 6, 2048)
    srd(a, 16, 24, WS_BYTES)
    a("buffer_load_dwordx4 v[16:19], v4, s[8:11], s22 offen")
    a("buffer_load_dwordx4 v[20:23], v4, s[8:11], s22 offen offset:1024")
    a("buffer_load_dwordx4 v[24:27], v4, s[8:11], s22 offen offset:2048")
    a("buffer_load_dwordx4 v[28:31], v4, s[8:11], s22 offen offset:3072")
    a("buffer_load_dwordx4 v[32:35], v4, s[12:15], 0 offen")
    a("buffer_load_dwordx4 v[36:39], v4, s[12:15], 0 offen offset:1024")
    for r in range(8):
        if r % 2 == 0:
            a(f"s_add_u32 s23, s21, {r*2048}")
        a(f"buffer_load_dwordx2 v[{40+2*r}:{41+2*r}], v3, s[8:11], s23 offen offset:{(r%2)*2048}")
    for i in range(4):
        a(f"v_mov_b32 v{8+i}, 0")
    a("v_lshlrev_b32 v5, 4, v0")
    a("s_mul_i32 s23, s2, 1536")
    a(f"s_add_u32 s23, s23, {KV_OFF}")
    a("v_cmp_gt_u32 vcc, 96, v0")
    a("s_and_saveexec_b64 s[26:27], vcc")
    a("s_cbranch_execz L0_nz")
    a("buffer_store_dwordx4 v[8:11], v5, s[16:19], s23 offen")
    a("s_lshl_b32 s23, s2, 8")
    a(f"s_add_u32 s23, s23, {FLAG_OFF}")
    a("v_cmp_gt_u32 vcc, 16, v0")
    a("s_and_b64 exec, exec, vcc")
    a("s_cbranch_execz L0_nz")
    a("buffer_store_dwordx4 v[8:11], v5, s[16:19], s23 offen")
    a.label("L0_nz")
    a("s_mov_b64 exec, s[26:27]")
    a("s_mov_b32 s28, 0x3f803f80")
    a("v_mov_b32 v12, 0\nv_mov_b32 v13, 0\nv_mov_b32 v14, 0\nv_mov_b32 v15, 0")
    a("s_waitcnt vmcnt(8)")
    for i in range(8):
        a(f"v_dot2_f32_bf16 v12, v{16+i}, s28, v12")
        a(f"v_dot2_f32_bf16 v13, v{16+i}, v{32+i}, v13")
        a(f"v_dot2_f32_bf16 v14, v{24+i}, s28, v14")
        a(f"v_dot2_f32_bf16 v15, v{24+i}, v{32+i}, v15")
    def wave_reduce(regs):
        a("s_nop 2")
        for m in ("row_shr:1", "row_shr:2", "row_shr:4", "row_shr:8"):
            for r in regs:
                a(f"v_add_f32_dpp v{r}, v{r}, v{r} {m} row_mask:0xf bank_mask:0xf bound_ctrl:0")
            if len(regs) < 3: a("s_nop 1")
        for m, mask in (("row_bcast:15", "0xa"), ("row_bcast:31", "0xc")):
            for r in regs:
                a(f"v_add_f32_dpp v{r}, v{r}, v{r} {m} row_mask:{mask} bank_mask:0xf")
            if len(regs) < 3: a("s_nop 1")
        a("s_nop 0")
    wave_reduce([12, 13, 14, 15])
    a("v_readlane_b32 s30, v12, 63")
    a("v_readlane_b32 s31, v13, 63")
    a("v_readlane_b32 s32, v14, 63")
    a("v_readlane_b32 s33, v15, 63")
    a("s_mov_b32 s29, 0x3a800000")
    a("v_mov_b32 v6, s29")
    a("v_mul_f32 v8, s30, v6")
    a("v_mul_f32 v9, s32, v6")
    a("v_mov_b32 v12, 0\nv_mov_b32 v14, 0")
    for i in range(8):
        for base, mean, acc, t in ((16, 8, 12, 56), (24, 9, 14, 58)):
            a(f"v_lshlrev_b32 v{t}, 16, v{base+i}")
            a(f"v_and_b32 v{t+1}, 0xffff0000, v{base+i}")
            a(f"v_sub_f32 v{t}, v{t}, v{mean}")
            a(f"v_sub_f32 v{t+1}, v{t+1}, v{mean}")
            a(f"v_fmac_f32 v{acc}, v{t}, v{t}")
            a(f"v_fmac_f32 v{acc}, v{t+1}, v{t+1}")
    wave_reduce([12, 14])
    a("v_readlane_b32 s34, v12, 63")
    a("v_readlane_b32 s35, v14, 63")
    a("v_cmp_eq_u32 vcc, 1, v1")
    a("v_mov_b32 v10, s34\nv_mov_b32 v11, s35")
    a("v_mov_b32 v12, s31\nv_mov_b32 v13, s33")
    a("v_cndmask_b32 v10, v10, v11, vcc")
    a("v_cndmask_b32 v8, v8, v9, vcc")
    a("v_cndmask_b32 v12, v12, v13, vcc")
    a("v_mul_f32 v10, v10, v6")
    rnd_bf16(a, 10)
    rnd_bf16(a, 8)
    rnd_bf16(a, 12)
    a("v_add_f32 v10, 0x3727c5ac, v10")
    a("v_mul_f32 v12, 0xbfb8aa3b, v12")
    rnd_bf16(a, 10)
    a("v_exp_f32 v12, v12")
    a("v_sqrt_f32 v10, v10")
    a("s_nop 0")
    a("v_add_f32 v12, 1.0, v12")
    rnd_bf16(a, 10)
    a("v_rcp_f32 v12, v12")
    a("v_rcp_f32 v9, v10")
    a("s_nop 0")
    rnd_bf16(a, 12)
    a("v_sub_f32 v13, 1.0, v12")
    rnd_bf16(a, 13)
    a("s_lshl_b32 s23, s20, 4")
    a("v_lshlrev_b32 v5, 3, v1")
    a("v_add_u32 v7, s23, v5")
    a("s_lshl_b32 s22, s2, 6")
    a(f"s_add_u32 s22, s22, {G_OFF}")
    a("s_mov_b64 exec, 3")
    a("ds_write_b64 v7, v[8:9]")
    a("buffer_store_dwordx2 v[12:13], v7, s[16:19], s22 offen")
    a("s_mov_b64 exec, -1")
    a("v_mov_b32 v5, 0")
    a("s_waitcnt lgkmcnt(0)")
    a("s_barrier")
    for i in range(4):
        a(f"ds_read_b128 v[{16+4*i}:{19+4*i}], v5 offset:{16*i}")
    a("s_waitcnt vmcnt(0) lgkmcnt(0)")
    for r in range(8):
        b = 64 + 4 * r
        for k in range(2):
            a(f"v_lshlrev_b32 v{b+2*k}, 16, v{40+2*r+k}")
            a(f"v_and_b32 v{b+2*k+1}, 0xffff0000, v{40+2*r+k}")
        for cidx in range(4):
            a(f"v_sub_f32 v{b+cidx}, v{b+cidx}, v{16+2*r}")
        for k in range(2):
            a(f"v_cvt_pk_bf16_f32 v{56+k}, v{b+2*k}, v{b+2*k+1}")
        for k in range(2):
            a(f"v_lshlrev_b32 v{b+2*k}, 16, v{56+k}")
            a(f"v_and_b32 v{b+2*k+1}, 0xffff0000, v{56+k}")
        for cidx in range(4):
            a(f"v_mul_f32 v{b+cidx}, v{b+cidx}, v{17+2*r}")
    a("v_lshlrev_b32 v5, 6, v0")
    a("s_lshl_b32 s23, s2, 14")
    if HT_OFF: a(f"s_add_u32 s23, s23, {HT_OFF}")
    for cidx in range(4):
        o = 96 + 4 * cidx
        for p in range(4):
            a(f"v_cvt_pk_bf16_f32 v{o+p}, v{64 + 8*p + cidx}, v{64 + 8*p + 4 + cidx}")
        a(f"buffer_store_dwordx4 v[{o}:{o+3}], v5, s[16:19], s23 offen offset:{16*cidx}")
    stamp_end(a, 2, 0, 20, 16, 24, 16, "L0_st")
    a.label("L0_end")
    a("s_endpgm")
    return dict(name=name, grid=256, block=256, lds=64, vgpr=112)


class Part:
    def __init__(self, **kw): self.__dict__.update(kw)

class Core:
    def __init__(self, a, tag, NS, SB, TB, MT, MW, vF, sW1024, sN, sRho, sKT, sKW, sT1, sT2, sCnt):
        self.__dict__.update(locals()); del self.__dict__['self']
        self.fs = 0
    def rot(self, p):
        g = getattr(p, "norot", None)
        guard = [] if g is None else [f"s_cmp_eq_u32 s{self.sT2}, {g}", f"s_cselect_b32 s{self.sT1}, s{self.sN}, s{self.sT1}"]
        return [f"s_add_u32 s{self.sT1}, s{self.sN}, s{self.sRho}",
                f"s_and_b32 s{self.sT1}, s{self.sT1}, 3",
                f"s_andn2_b32 s{self.sT2}, s{self.sN}, 3",
                f"s_or_b32 s{self.sT1}, s{self.sT1}, s{self.sT2}"] + guard + [
                f"s_mul_i32 s{self.sKT}, s{self.sT1}, {p.stT}",
                f"s_mul_i32 s{self.sKW}, s{self.sT1}, {p.stW}",
                f"s_add_u32 s{self.sN}, s{self.sN}, 1"]
    def dma(self, p, slot, which="TW"):
        g = []
        aux = getattr(p, "auxT", "")
        for j, v in enumerate(p.vDT if "T" in which else []):
            g.append([f"s_add_u32 m0, s{self.sW1024}, {slot*self.SB + j*4096}", "s_nop 0",
                      f"buffer_load_dwordx4 v{v}, s[{p.srdT}:{p.srdT+3}], s{self.sKT} offen {aux} lds"])
        for j, v in enumerate(p.vDW if "W" in which else []):
            g.append([f"s_add_u32 m0, s{self.sW1024}, {slot*self.SB + getattr(p, 'TB', self.TB) + j*4096}", "s_nop 0",
                      f"buffer_load_dwordx4 v{v}, s[{p.srdW}:{p.srdW+3}], s{self.sKW} offen lds"])
        r = self.rot(p)
        g[0] = r + g[0]
        return g
    def P(self, p): return len(p.vDT) + len(p.vDW)
    def fT(self, fs, i): return self.vF[fs] + 4 * i
    def fW(self, fs, j): return self.vF[fs] + 4 * self.MT + 4 * j
    def reads(self, p, slot, fs):
        tl = [[f"ds_read_b128 v[{self.fT(fs,i)}:{self.fT(fs,i)+3}], v{vb} offset:{o}"] for i, (vb, o) in enumerate(p.rdT(slot))]
        wl = []
        for j, (vb, o1, o2) in enumerate(p.rdW(slot)):
            b = self.fW(fs, j)
            wl.append([f"ds_read_b64_tr_b16 v[{b}:{b+1}], v{vb} offset:{o1}"])
            wl.append([f"ds_read_b64_tr_b16 v[{b+2}:{b+3}], v{vb} offset:{o2}"])
        out = []
        while tl or wl:
            if tl: out.append(tl.pop(0))
            if wl: out.append(wl.pop(0))
            if wl: out.append(wl.pop(0))
        return out
    def prologue(self, p, loader, which="TW"):
        a = self.a
        if loader:
            for s in range(self.NS):
                for g in self.dma(p, s, which):
                    for l in g: a(l)
    def first(self, p, loader, vm=None):
        a = self.a
        if loader: a(f"s_waitcnt vmcnt({(self.NS-1)*self.P(p) if vm is None else vm})")
        a("s_barrier")
        for g in self.reads(p, 0, self.fs):
            for l in g: a(l)
    def stage(self, slot, cur, nxt, dmap, vm, loader, extra=None):
        a = self.a
        f = self.fs
        if nxt is not None:
            a(f"s_waitcnt vmcnt({vm}) lgkmcnt(0)" if loader else "s_waitcnt lgkmcnt(0)")
            a("s_barrier")
            rd = self.reads(nxt, (slot + 1) % self.NS, 1 - f)
        else:
            a("s_waitcnt lgkmcnt(0)")
            rd = []
        m = cur.mf(lambda i: self.fT(f, i), lambda j: self.fW(f, j))
        nm = len(m)
        slots = [[] for _ in range(nm)]
        for idx, g in enumerate(rd):
            slots[min(idx + RD_START, nm - 1)].extend(g)
        fill = []
        if dmap is not None and loader: fill = self.dma(dmap, slot)
        if extra: fill = fill + extra
        lo = nm * DMA_LO // 100; hi = max(lo + 1, nm * DMA_HI // 100)
        for idx, g in enumerate(fill):
            pos = lo + (idx * (hi - lo)) // len(fill)
            if M0HOIST and pos > 0 and "s_nop 0" in g:
                k = g.index("s_nop 0")
                slots[pos - 1].extend(g[:k]); slots[pos] = g[k+1:] + slots[pos]
            else:
                slots[pos].extend(g)
        for i in range(nm):
            a(m[i])
            for l in slots[i]: a(l)
        self.fs = 1 - f
    def run(self, p, nst, loader, nxt_part=None, count_reg_init=None, slot0=0, extra=None, nxt_n0=0, hook=None):
        a = self.a; NS = self.NS
        UN = NS if NS % 2 == 0 else 2 * NS
        nloop = (nst - NS) // UN
        ntail = nst - nloop * UN
        P = self.P(p)
        lab = f"L_{self.tag}_{len(a.lines)}"
        if nloop > 0:
            a(f"s_mov_b32 s{self.sCnt}, {nloop}" if count_reg_init is None else count_reg_init)
            a.label(lab)
            for s in range(UN):
                self.stage((slot0 + s) % NS, p, p, p, (NS - 2) * P, loader, (extra or {}).get(s))
            a(f"s_sub_u32 s{self.sCnt}, s{self.sCnt}, 1")
            a(f"s_cmp_lg_u32 s{self.sCnt}, 0")
            a(f"s_cbranch_scc1 {lab}")
        for s in range(ntail):
            rem = ntail - 1 - s
            slot = (slot0 + s) % NS
            if rem >= NS:
                self.stage(slot, p, p, p, (NS - 2) * P, loader)
            elif nxt_part is None:
                if rem == NS - 1 and hook: hook()
                self.stage(slot, p, p if rem else None, None, min(NS - 2, max(rem - 1, 0)) * P, loader)
            else:
                assert self.P(nxt_part) == P
                if rem == NS - 1 and loader: a(f"s_mov_b32 s{self.sN}, {nxt_n0}")
                if rem == NS - 1 and hook: hook()
                self.stage(slot, p, p if rem else nxt_part, nxt_part, (NS - 2) * P, loader)
        return (slot0 + ntail) % NS

sE = 51
F_LN, F_KV, F_U, F_O, F_X = FLAG_OFF, FLAG_OFF + 4096, FLAG_OFF + 8192, FLAG_OFF + 12288, FLAG_OFF + 16384
def poll(a, tag, vD, vA, srd_, sAddr, sC, wide=False, target=None, vX=None):
    def ld(d):
        if wide: a(f"buffer_load_dwordx2 v[{d}:{d+1}], v{vA}, s[{srd_}:{srd_+3}], {sAddr} offen sc1")
        else: a(f"buffer_load_dword v{d}, v{vA}, s[{srd_}:{srd_+3}], {sAddr} offen sc1")
    a(f"s_mov_b32 s{sC}, 0")
    if PIPEPOLL and vX:
        ld(vX[0]); a("s_sleep 3"); ld(vX[1]); a("s_sleep 3")
        a.label(f"Lp_{tag}")
        for n in range(3):
            ld(vX[(n + 2) % 3])
            a("s_waitcnt vmcnt(2)")
            poll_check(a, vX[n], wide, target)
            a(f"s_cbranch_vccz Lq_{tag}")
            a("s_sleep 2")
        a(f"s_add_u32 s{sC}, s{sC}, 1")
        a(f"s_cmp_lt_u32 s{sC}, 0x100000")
        a(f"s_cbranch_scc1 Lp_{tag}")
        a.label(f"Lq_{tag}")
        return
    a.label(f"Lp_{tag}")
    ld(vD)
    a(f"s_add_u32 s{sC}, s{sC}, 1")
    a("s_waitcnt vmcnt(0)")
    poll_check(a, vD, wide, target)
    a(f"s_cbranch_vccz Lq_{tag}")
    a(f"s_cmp_ge_u32 s{sC}, 0x200000")
    a(f"s_cbranch_scc1 Lq_{tag}")
    a("s_sleep 1")
    a(f"s_branch Lp_{tag}")
    a.label(f"Lq_{tag}")
def poll_check(a, vD, wide=False, target=None):
    if target == "nz":
        a(f"v_cmp_eq_u32 vcc, 0, v{vD}")
        return
    if wide:
        a(f"v_xor_b32 v{vD}, s{sE}, v{vD}")
        a(f"v_xor_b32 v{vD+1}, s{sE}, v{vD+1}")
        a(f"v_or_b32 v{vD}, v{vD}, v{vD+1}")
        a(f"v_cmp_ne_u32 vcc, 0, v{vD}")
    else:
        a(f"v_cmp_ne_u32 vcc, s{sE}, v{vD}")

S_DBG = 52

def ln_phase(a, R, S_X, S_GW, S_WS, sWave, sIdx, dma_hook):
    v = lambda n: f"v{R+n}"
    vv = lambda n, c: f"v[{R+n}:{R+n+c-1}]"
    s21, s22, s23 = 32, 33, 34
    a(f"v_lshlrev_b32 {v(4)}, 4, v1")
    a(f"s_lshl_b32 s{s21}, s{sIdx}, 15")
    a(f"s_lshl_b32 s{s22}, s{sWave}, 12")
    a(f"s_add_u32 s{s22}, s{s22}, s{s21}")
    for n in range(4):
        a(f"buffer_load_dwordx4 {vv(16+4*n,4)}, {v(4)}, s[{S_X}:{S_X+3}], s{s22} offen offset:{n*1024}")
    a(f"buffer_load_dwordx4 {vv(32,4)}, {v(4)}, s[{S_GW}:{S_GW+3}], 0 offen")
    a(f"buffer_load_dwordx4 {vv(36,4)}, {v(4)}, s[{S_GW}:{S_GW+3}], 0 offen offset:1024")
    def pre():
        a(f"s_lshr_b32 s{s23}, s{sWave}, 2")
        a(f"s_mul_i32 s{s22}, s{s23}, 45056")
        a(f"s_and_b32 s35, s{sWave}, 1")
        a(f"s_lshl_b32 s35, s35, 7")
        a(f"v_xor_b32 {v(0)}, s35, {v(4)}")
        a(f"v_xor_b32 {v(1)}, 64, {v(0)}")
        a(f"s_lshl_b32 s35, s29, 2")
        a(f"s_add_u32 s35, s35, s{s22}")
        a(f"v_add_u32 {v(0)}, s35, {v(0)}")
        a(f"v_add_u32 {v(1)}, s35, {v(1)}")
        a(f"v_lshlrev_b32 {v(2)}, 5, v4")
        a(f"v_lshl_add_u32 {v(2)}, v6, 3, {v(2)}")
        a(f"s_lshr_b32 s35, s29, 3")
        a(f"v_add_u32 {v(2)}, s35, {v(2)}")
        a(f"v_lshlrev_b32 {v(3)}, 6, v5")
        a(f"v_xor_b32 {v(2)}, {v(3)}, {v(2)}")
        a(f"v_lshl_add_u32 {v(2)}, v5, 11, {v(2)}")
        a(f"v_add_u32 {v(2)}, s{s22}, {v(2)}")
        a(f"v_add_u32 {v(3)}, s29, {v(4)}")
        a(f"s_lshl_b32 s36, s{sIdx}, 1")
        a(f"s_add_u32 s36, s36, s{s23}")
        a(f"s_lshl_b32 s36, s36, 14")
        a(f"v_lshlrev_b32 {v(7)}, 3, v1")
        a(f"v_lshl_add_u32 {v(7)}, s{sWave}, 4, {v(7)}")
        a(f"v_mov_b32 {v(6)}, 0x3a800000")
        for n in range(12, 16): a(f"v_mov_b32 {v(n)}, 0")
    pre()
    dma_hook()
    a(f"s_mov_b32 s35, 0x3f803f80")
    for i in range(8):
        a(f"v_dot2_f32_bf16 {v(12)}, {v(16+i)}, s35, {v(12)}")
        a(f"v_dot2_f32_bf16 {v(14)}, {v(24+i)}, s35, {v(14)}")
        a(f"v_dot2_f32_bf16 {v(13)}, {v(16+i)}, {v(32+i)}, {v(13)}")
        a(f"v_dot2_f32_bf16 {v(15)}, {v(24+i)}, {v(32+i)}, {v(15)}")
    unp = []
    for i in range(16):
        unp.append(f"v_lshlrev_b32 {v(40+2*i)}, 16, {v(16+i)}")
        unp.append(f"v_and_b32 {v(41+2*i)}, 0xffff0000, {v(16+i)}")
    def wave_reduce(regs, fill):
        def pad(n):
            for _ in range(n):
                a(fill.pop(0) if fill else "s_nop 0")
        pad(3)
        for m, mask, bc_ in (("row_shr:1", "0xf", 1), ("row_shr:2", "0xf", 1), ("row_shr:4", "0xf", 1), ("row_shr:8", "0xf", 1), ("row_bcast:15", "0xa", 0), ("row_bcast:31", "0xc", 0)):
            for r in regs:
                a(f"v_add_f32_dpp {v(r)}, {v(r)}, {v(r)} {m} row_mask:{mask} bank_mask:0xf" + (" bound_ctrl:0" if bc_ else ""))
            pad(max(0, 3 - len(regs)) if not fill else 2)
        pad(1)
    wave_reduce([12, 14, 13, 15], unp)
    a(f"v_readlane_b32 s88, {v(12)}, 63")
    a(f"v_readlane_b32 s90, {v(14)}, 63")
    a(f"v_readlane_b32 s89, {v(13)}, 63")
    a(f"v_readlane_b32 s91, {v(15)}, 63")
    for l in unp: a(l)
    a(f"v_mul_f32 {v(8)}, s88, {v(6)}")
    a(f"v_mul_f32 {v(10)}, s90, {v(6)}")
    for i in range(8):
        for rr, mean, acc, t in ((0, 8, 12, 72), (1, 10, 14, 74)):
            x = 40 + 16 * rr + 2 * i
            a(f"v_pk_add_f32 {vv(t,2)}, {vv(x,2)}, {vv(mean,2)} op_sel_hi:[1,0] neg_lo:[0,1] neg_hi:[0,1]")
            a(f"v_pk_fma_f32 {vv(acc,2)}, {vv(t,2)}, {vv(t,2)}, {vv(acc,2)}" if i else f"v_pk_mul_f32 {vv(acc,2)}, {vv(t,2)}, {vv(t,2)}")
    a(f"v_add_f32 {v(12)}, {v(12)}, {v(13)}")
    a(f"v_add_f32 {v(14)}, {v(14)}, {v(15)}")
    gate = ["v_cmp_eq_u32 vcc, 1, v1", f"v_mov_b32 {v(76)}, s89", f"v_mov_b32 {v(77)}, s91",
            f"v_cndmask_b32 {v(8)}, {v(8)}, {v(10)}, vcc", f"v_cndmask_b32 {v(76)}, {v(76)}, {v(77)}, vcc",
            f"v_cvt_pk_bf16_f32 {v(76)}, {v(76)}, {v(76)}", f"v_cvt_pk_bf16_f32 {v(8)}, {v(8)}, {v(8)}",
            f"v_and_b32 {v(76)}, 0xffff0000, {v(76)}", f"v_and_b32 {v(8)}, 0xffff0000, {v(8)}",
            f"v_mul_f32 {v(76)}, 0xbfb8aa3b, {v(76)}", f"v_exp_f32 {v(76)}, {v(76)}", "s_nop 0",
            f"v_add_f32 {v(76)}, 1.0, {v(76)}", f"v_rcp_f32 {v(76)}, {v(76)}", "s_nop 0", f"v_cvt_pk_bf16_f32 {v(76)}, {v(76)}, {v(76)}"]
    wave_reduce([12, 14], gate)
    for l in gate: a(l)
    a(f"v_readlane_b32 s88, {v(12)}, 63")
    a(f"v_readlane_b32 s90, {v(14)}, 63")
    a(f"v_and_b32 {v(76)}, 0xffff0000, {v(76)}")
    a(f"v_sub_f32 {v(77)}, 1.0, {v(76)}")
    a(f"v_mov_b32 {v(10)}, s88")
    a(f"v_mov_b32 {v(11)}, s90")
    a(f"v_cndmask_b32 {v(10)}, {v(10)}, {v(11)}, vcc")
    a(f"v_mul_f32 {v(10)}, {v(10)}, {v(6)}")
    rnd_bf16(a, R + 10)
    a(f"v_add_f32 {v(10)}, 0x3727c5ac, {v(10)}")
    rnd_bf16(a, R + 10)
    a(f"v_sqrt_f32 {v(10)}, {v(10)}")
    rnd_bf16(a, R + 77)
    rnd_bf16(a, R + 10)
    a(f"v_rcp_f32 {v(10)}, {v(10)}")
    a(f"s_lshl_b32 s{s22}, s{sIdx}, 7")
    a(f"s_add_u32 s{s22}, s{s22}, {G_OFF}")
    a(f"v_mul_f32 {v(8)}, {v(8)}, {v(10)}")
    a(f"v_readlane_b32 s88, {v(10)}, 0")
    a(f"v_readlane_b32 s90, {v(10)}, 1")
    a(f"v_readlane_b32 s89, {v(8)}, 0")
    a(f"v_readlane_b32 s91, {v(8)}, 1")
    a("s_mov_b64 exec, 3")
    a(f"buffer_store_dwordx2 {vv(76,2)}, {v(7)}, s[{S_WS}:{S_WS+3}], s{s22} offen sc1")
    a("s_mov_b64 exec, -1")
    a(f"v_mov_b32 {v(12)}, s89")
    a(f"v_mov_b32 {v(14)}, s91")
    for rr in range(2):
        for hf in range(2):
            o = 80 + 8 * rr + 4 * hf
            for i in range(4):
                x = 40 + 16 * rr + 8 * hf + 2 * i
                a(f"v_pk_fma_f32 {vv(x,2)}, {vv(x,2)}, s[{88+2*rr}:{89+2*rr}], {vv(12+2*rr,2)} op_sel_hi:[1,0,0] neg_lo:[0,0,1] neg_hi:[0,0,1]")
            for i in range(4):
                x = 40 + 16 * rr + 8 * hf + 2 * i
                a(f"v_cvt_pk_bf16_f32 {v(o+i)}, {v(x)}, {v(x+1)}")
            a(f"ds_write_b128 {v(rr)}, {vv(o,4)} offset:{rr*2048 + hf*1024}")
    a("s_waitcnt lgkmcnt(0)")
    a("s_barrier")
    for n in range(4):
        a(f"ds_read_b64_tr_b16 {vv(96+4*n,2)}, {v(2)} offset:{n*512}")
        a(f"ds_read_b64_tr_b16 {vv(98+4*n,2)}, {v(2)} offset:{n*512 + 8192}")
    for n in range(4):
        a(f"s_waitcnt lgkmcnt({6-2*n})")
        a(f"buffer_store_dwordx4 {vv(96+4*n,4)}, {v(3)}, s[{S_WS}:{S_WS+3}], s36 offen sc1")
        if n < 3: a("s_add_u32 s36, s36, 4096")

def lane_bits(a, vLane, vq, vr, vc):
    a(f"v_lshrrev_b32 v{vq}, 4, v{vLane}")
    a(f"v_bfe_u32 v{vr}, v{vLane}, 2, 2")
    a(f"v_and_b32 v{vc}, 3, v{vLane}")

L2E = 0x3fb8aa3b
def bc(r):
    assert r % 2 == 0, r
    return f"v[{r}:{r+1}]", 0
def pk_fma_sL(d, x, sL, m, negx, negm):
    pm, sm = bc(m)
    return (f"v_pk_fma_f32 v[{d}:{d+1}], v[{x}:{x+1}], s[{sL}:{sL+1}], {pm} op_sel:[0,0,{sm}] op_sel_hi:[1,0,{sm}] "
            f"neg_lo:[{negx},0,{negm}] neg_hi:[{negx},0,{negm}]")
def pk_mul_b(d, x, m):
    pm, sm = bc(m)
    return f"v_pk_mul_f32 v[{d}:{d+1}], v[{x}:{x+1}], {pm} op_sel:[0,{sm}] op_sel_hi:[1,{sm}]"
def pk_fma_bb(d, x, m, c):
    pm, sm = bc(m); pc, sc = bc(c)
    return f"v_pk_fma_f32 v[{d}:{d+1}], v[{x}:{x+1}], {pm}, {pc} op_sel:[0,{sm},{sc}] op_sel_hi:[1,{sm},{sc}]"
def pk_add(d, x, y): return f"v_pk_add_f32 v[{d}:{d+1}], v[{x}:{x+1}], v[{y}:{y+1}]"

PB = 244
def phase3_pre(a):
    sWave, sW1024, sT1, sT2, sTD, sTS, sA, sB = 28, 29, 34, 35, 37, 38, 32, 33
    vLane, vT1, vT2, vq, vr_, vc = 1, 2, 3, 4, 5, 6
    TB = 16384
    a(f"v_lshlrev_b32 v{vT1}, 4, v{vLane}")
    a(f"s_bfe_u32 s{sA}, s{sWave}, 0x10001")
    a(f"s_and_b32 s{sB}, s{sWave}, 1")
    for n, (R16, sTile) in enumerate(((16384, sTD), (32768, sTS))):
        a(f"s_mul_i32 s{sT1}, s{sA}, {R16}")
        a(f"s_lshl_b32 s{sT2}, s{sB}, 10")
        a(f"s_add_u32 s{sT1}, s{sT1}, s{sT2}")
        a(f"s_lshl_b32 s{sT2}, s{sTile}, 11")
        a(f"s_add_u32 s{sT1}, s{sT1}, s{sT2}")
        a(f"v_add_u32 v{PB+n}, s{sT1}, v{vT1}")
    a(f"v_lshrrev_b32 v{vT2}, 5, v{vLane}")
    a(f"v_lshlrev_b32 v{vT2}, 6, v{vT2}")
    a(f"v_lshl_add_u32 v{vT2}, v{vc}, 4, v{vT2}")
    a(f"v_and_b32 v{vT1}, 16, v{vLane}")
    a(f"v_lshlrev_b32 v{vT1}, 1, v{vT1}")
    a(f"v_xor_b32 v{vT2}, v{vT1}, v{vT2}")
    a(f"v_bfe_u32 v{vT1}, v{vLane}, 2, 3")
    for n, (LD, sTile) in enumerate(((4096, sTS), (2048, sTD))):
        a(f"v_lshl_add_u32 v{PB+2+n}, v{vT1}, {log2(LD)}, v{vT2}")
        a(f"s_mul_i32 s{sT1}, s{sW1024}, {8*LD//1024}")
        a(f"s_lshl_b32 s{sT2}, s{sTile}, 8")
        a(f"s_add_u32 s{sT1}, s{sT1}, s{sT2}")
        a(f"v_add_u32 v{PB+2+n}, s{sT1}, v{PB+2+n}")
    a(f"v_and_b32 v{PB+8}, 15, v{vLane}")
    a(f"v_lshlrev_b32 v{vT1}, 4, v{PB+8}")
    a(f"v_lshl_add_u32 v{vT1}, v{vq}, 11, v{vT1}")
    a(f"s_lshr_b32 s{sT1}, s{sWave}, 2")
    a(f"s_lshl_b32 s{sT1}, s{sT1}, 13")
    a(f"v_add_u32 v{vT1}, s{sT1}, v{vT1}")
    for n, sel in enumerate((sA, sB)):
        a(f"v_lshl_add_u32 v{PB+4+n}, s{sel}, 10, v{vT1}")
    a(f"v_lshrrev_b32 v{vT1}, 1, v{vq}")
    a(f"v_lshlrev_b32 v{vT1}, 10, v{vT1}")
    a(f"v_and_b32 v{vT2}, 1, v{vq}")
    a(f"v_mul_u32_u24 v{vT2}, 288, v{vT2}")
    a(f"v_add_u32 v{vT1}, v{vT2}, v{vT1}")
    a(f"v_lshl_add_u32 v{vT1}, v{vr_}, 6, v{vT1}")
    a(f"v_lshl_add_u32 v{vT1}, v{vc}, 3, v{vT1}")
    a(f"s_lshr_b32 s{sT1}, s{sT1}, 1")
    a(f"s_add_u32 s{sT1}, s{sT1}, {TB}")
    a(f"v_add_u32 v{vT1}, s{sT1}, v{vT1}")
    for n, sel in enumerate((sB, sA)):
        a(f"v_lshl_add_u32 v{PB+6+n}, s{sel}, 13, v{vT1}")
    a(f"s_lshl_b32 s{sT1}, s{sTS}, 7")
    a(f"s_lshl_b32 s{sT2}, s{sB}, 6")
    a(f"s_add_u32 s{sT1}, s{sT1}, s{sT2}")
    a(f"v_add_u32 v{PB+8}, s{sT1}, v{PB+8}")
    a(f"s_lshl_b32 s46, s{sTD}, 7")
    a(f"s_add_u32 s46, s46, {F_U}")
    a(f"s_lshr_b32 s47, s{sTS}, 1")
    a(f"s_lshl_b32 s47, s47, 7")
    a(f"s_add_u32 s47, s47, {F_O}")
    a(f"s_add_u32 s48, s46, {F_O - F_U}")
    a("s_bitcmp1_b32 s2, 7")
    a(f"s_cselect_b32 s47, s46, s47")
    a(f"s_cselect_b32 s48, s46, s48")
    a(f"s_lshl_b32 s{sT1}, s{sTS}, 2")
    a(f"s_add_u32 s48, s48, s{sT1}")

def phase3(a):
    S_U, S_W2, S_WS, S_OP, S_WO, S_OUT = 8, 12, 16, 20, 24, 56
    sWave, sW1024, sN, sRho, sKT, sKW, sT1, sT2, sCnt, sTD, sTS = 28, 29, 30, 31, 32, 33, 34, 35, 36, 37, 38
    sWSp = 44
    vLane, vT1, vT2, vq, vr_, vc = 1, 2, 3, 4, 5, 6
    NS, TB, SB = 4, 16384, 32768
    vD1T = [PB, 9, 10, 11]; vD1W = [PB+2, 13, 14, 15]; vD2T = [PB+1, 17, 18, 19]; vD2W = [PB+3, 21, 22, 23]
    vR1T = [PB+4, 25]; vR1E = [PB+6, 27]; vR1O = [28, 29]; vR2T = [PB+5, 31]; vR2E = [PB+7, 33]; vR2O = [34, 35]
    vS = PB + 8
    vOMG = 36; vB2 = 44
    vF = [52, 84]; ACC = 116; ACC2 = 180
    sC2 = 39; sFl = 47; sFu = 46; sSig = 48
    stamp(a, 8)
    srd(a, S_W2, 92, 3584 * 2048 * 2)
    srd(a, S_WO, 96, 1024 * 1024 * 2)
    for vD, LD in ((vD1W, 4096), (vD2W, 2048)):
        for j in range(1, 4): a(f"v_add_u32 v{vD[j]}, {(j&1)*32*LD + (j>>1)*128}, v{vD[0]}")
    a(f"s_add_u32 s{sRho}, s{sTD}, s{sTS}")
    a(f"s_mov_b32 s{sN}, 0")
    a(f"v_mov_b32 v{vT1}, 0")
    a(f"v_mov_b32 v{vT2}, s{sE}")
    a(f"v_and_b32 v16, 15, v{vLane}")
    a("v_lshlrev_b32 v16, 2, v16")
    def rdT(vR): return lambda slot: [(vR[slot // 2], (slot % 2) * SB + i * 256) for i in range(4)]
    def rdW(vE, vO): return lambda slot: [((vO if b & 1 else vE)[slot // 2], (slot % 2) * SB + (b >> 1) * 512, (slot % 2) * SB + (b >> 1) * 512 + 2048) for b in range(4)]
    def mf1(fT, fW):
        return [f"v_mfma_f32_16x16x32_bf16 v[{ACC+(i*4+j)*4}:{ACC+(i*4+j)*4+3}], v[{fT(i)}:{fT(i)+3}], v[{fW(j)}:{fW(j)+3}], v[{ACC+(i*4+j)*4}:{ACC+(i*4+j)*4+3}]" for i in range(4) for j in range(4)]
    def mf2(fT, fW):
        return [f"v_mfma_f32_16x16x32_bf16 v[{ACC2+(i*4+j)*4}:{ACC2+(i*4+j)*4+3}], v[{fW(i)}:{fW(i)+3}], v[{fT(j)}:{fT(j)+3}], v[{ACC2+(i*4+j)*4}:{ACC2+(i*4+j)*4+3}]" for j in range(4) for i in range(4)]
    p1 = Part(srdT=S_U, srdW=S_W2, vDT=vD1T, vDW=vD1W, stT=8 * 16384, stW=64 * 4096, rdT=rdT(vR1T), rdW=rdW(vR1E, vR1O), mf=mf1, auxT='sc1')
    p2 = Part(srdT=S_OP, srdW=S_WO, vDT=vD2T, vDW=vD2W, stT=8 * 32768, stW=64 * 2048, rdT=rdT(vR2T), rdW=rdW(vR2E, vR2O), mf=mf2, auxT='sc1')
    if NA % 4: p1.norot = NA & ~3
    core = Core(a, "p3", NS, SB, TB, 4, 4, vF, sW1024, sN, sRho, sKT, sKW, sT1, sT2, sCnt)
    a("s_waitcnt vmcnt(0)")
    a("s_barrier")
    a(f"s_cmp_lg_u32 s{sWave}, 0")
    a("s_cbranch_scc1 P3_nosig")
    a("s_mov_b64 exec, 1")
    a(f"buffer_store_dword v{vT2}, v{vT1}, s[{S_WS}:{S_WS+3}], s{sSig} offen sc1")
    a("s_mov_b64 exec, -1")
    a.label("P3_nosig")
    a(f"s_cmp_ge_u32 s{sWave}, 4")
    a("s_cbranch_scc1 P3_nold0")
    a("s_bitcmp1_b32 s2, 7")
    a("s_cbranch_scc1 P3_wA")
    core.prologue(p2, True, "W")
    a("s_branch P3_nold0")
    a.label("P3_wA")
    core.prologue(p1, True, "W")
    a.label("P3_nold0")
    a(f"s_mov_b32 s{sN}, 0")
    srd(a, S_OUT, 94, 4096)
    a(f"v_lshlrev_b32 v8, 3, v{vS}")
    a(f"v_lshlrev_b32 v12, 1, v{vS}")
    a(f"s_mov_b32 s{sT1}, {G_OFF+4}")
    for j in range(4):
        a(f"buffer_load_dword v{vOMG+2*j}, v8, s[{S_WS}:{S_WS+3}], s{sT1} offen offset:{j*128} sc1")
        a(f"buffer_load_ushort v{vB2+2*j}, v12, s[{S_OUT}:{S_OUT+3}], 0 offen offset:{j*32}")
    srd(a, S_U, sWSp, 448 * 16384, U_OFF)
    srd(a, S_OP, sWSp, 4 * MB, OP_OFF)
    for vD, R16 in ((vD1T, 16384), (vD2T, 32768)):
        for j in range(1, 4): a(f"v_add_u32 v{vD[j]}, {j*2*R16}, v{vD[0]}")
    for vR in (vR1T, vR2T, vR1E, vR2E):
        a(f"v_add_u32 v{vR[1]}, {2*SB}, v{vR[0]}")
    for vE, vO in ((vR1E, vR1O), (vR2E, vR2O)):
        a(f"v_xor_b32 v{vO[0]}, 32, v{vE[0]}")
        a(f"v_xor_b32 v{vO[1]}, 32, v{vE[1]}")
    a(f"v_lshrrev_b32 v{vq}, 4, v{vLane}")
    for i in range(0, 64, 2):
        a(f"v_pk_mul_f32 v[{ACC+i}:{ACC+i+1}], v[{vT1}:{vT1+1}], v[{vT1}:{vT1+1}] op_sel_hi:[0,0]")

    def epi(role, kg):
        tag = f"{role}{kg}"
        stamp(a, 10)
        keep = (0, 1) if kg == 0 else (2, 3)
        send = (2, 3) if kg == 0 else (0, 1)
        a(f"s_lshl_b32 s{sT1}, s{sW1024}, 4")
        a(f"v_lshlrev_b32 v{vT1}, 4, v{vLane}")
        a(f"v_add_u32 v{vT2}, s{sT1}, v{vT1}")
        srd(a, S_OUT, 98, 2048 * 1024 * 2)
        a(f"s_lshl_b32 s{sKT}, s2, 3")
        a(f"s_add_u32 s{sKT}, s{sKT}, s{sWave}")
        a(f"s_lshl_b32 s{sKT}, s{sKT}, 12")
        a(f"s_add_u32 s{sKT}, s{sKT}, {XCH_OFF}")
        a(f"s_xor_b32 s{sKW}, s{sKT}, {128*8*4096}")
        a("s_barrier")
        for n in range(8):
            r = ACC + send[0] * 16 + 4 * n
            a(f"ds_write_b128 v{vT2}, v[{r}:{r+3}] offset:{kg*8192 + n*1024}")
        a("s_waitcnt lgkmcnt(0)")
        a("s_barrier")
        for n in range(8):
            a(f"ds_read_b128 v[{52+4*n}:{55+4*n}], v{vT2} offset:{(1-kg)*8192 + n*1024}")
        K0 = ACC + keep[0] * 16
        jk = (0, 2) if role == 0 else (1, 3)
        js = (1, 3) if role == 0 else (0, 2)
        order = [(ii, j) for j in js for ii in range(2)] + [(ii, j) for j in jk for ii in range(2)]
        a("s_waitcnt lgkmcnt(0)")
        cnt = 0
        for (ii, j) in order:
            n = ii * 4 + j; r = K0 + 4 * n
            for e in (0, 2): a(pk_add(r + e, r + e, 52 + 4 * n + e))
            if role == 0:
                for e in (0, 2): a(pk_mul_b(r + e, r + e, vOMG + 2 * j))
            if j in js:
                a(f"buffer_store_dwordx4 v[{r}:{r+3}], v{vT1}, s[{S_WS}:{S_WS+3}], s{sKT} offen offset:{cnt*1024} sc1")
                cnt += 1
        a(f"v_lshlrev_b32 v{vT2}, 11, v{vS}")
        a(f"v_and_b32 v8, 1, v{vq}")
        a(f"v_lshl_add_u32 v{vT2}, v8, 5, v{vT2}")
        a(f"v_lshrrev_b32 v8, 1, v{vq}")
        a(f"v_lshl_add_u32 v{vT2}, v8, 4, v{vT2}")
        a(f"s_lshl_b32 s{sT1}, s{sTD}, 8")
        a(f"s_bfe_u32 s{sT2}, s{sWave}, 0x10001")
        a(f"s_lshl_b32 s{sT2}, s{sT2}, 7")
        a(f"s_add_u32 s{sT1}, s{sT1}, s{sT2}")
        a(f"s_add_u32 s{sN}, s{sT1}, {kg*64}")
        a(f"s_lshl_b32 s{sT1}, s2, 7")
        a(f"s_add_u32 s{sT1}, s{sT1}, {F_X}")
        a(f"s_xor_b32 s{sT2}, s2, 128")
        a(f"s_lshl_b32 s{sT2}, s{sT2}, 7")
        a(f"s_add_u32 s{sT2}, s{sT2}, {F_X}")
        a("v_mov_b32 v8, 0")
        a(f"v_mov_b32 v9, s{sE}")
        a("s_waitcnt vmcnt(0)")
        a("s_barrier")
        if kg == 0:
            a(f"s_cmp_lg_u32 s{sWave}, 0")
            a(f"s_cbranch_scc1 P3_nf{tag}")
            a("s_mov_b64 exec, 1")
            a(f"buffer_store_dword v9, v8, s[{S_WS}:{S_WS+3}], s{sT1} offen sc1")
            a("s_mov_b64 exec, -1")
            a.label(f"P3_nf{tag}")
        stamp(a, 11)
        poll(a, f"x{tag}", 10, 8, S_WS, f"s{sT2}", sC2)
        for n in range(4):
            a(f"buffer_load_dwordx4 v[{52+4*n}:{55+4*n}], v{vT1}, s[{S_WS}:{S_WS+3}], s{sKW} offen offset:{n*1024} sc1")
        for jn, j in enumerate(jk):
            a(f"s_waitcnt vmcnt({2 if jn == 0 else 1})" if jn == 0 else "s_waitcnt vmcnt(1)")
            o = 84 + 4 * jn
            for ii in range(2):
                r = K0 + 4 * (ii * 4 + j); t = 52 + 4 * (jn * 2 + ii)
                for e in (0, 2): a(pk_add(r + e, r + e, t + e))
                a(f"v_cvt_pk_bf16_f32 v{o+2*ii}, v{r}, v{r+1}")
                a(f"v_cvt_pk_bf16_f32 v{o+2*ii+1}, v{r+2}, v{r+3}")
            a("s_nop 1")
            a(f"v_permlane16_swap_b32 v{o}, v{o+2}")
            a(f"v_permlane16_swap_b32 v{o+1}, v{o+3}")
            a(f"s_add_u32 s{sT1}, s{sN}, {j*16*2048}")
            a(f"buffer_store_dwordx4 v[{o}:{o+3}], v{vT2}, s[{S_OUT}:{S_OUT+3}], s{sT1} offen")
        a("s_branch P3_fin")

    a("s_bitcmp1_b32 s2, 7")
    a("s_cbranch_scc0 P3_B")
    a(f"s_cmp_ge_u32 s{sWave}, 4")
    a("s_cbranch_scc1 P3_A1")
    for kg in range(2):
        if kg:
            a.label("P3_A1")
            (a(f"s_cmp_lg_u32 s{sWave}, 4"), a("s_cbranch_scc1 Lq_depA"), poll(a, "depA", vT2, 16, S_WS, f"s{sFl}", sC2))
        if kg: a("s_waitcnt vmcnt(0)")
        a("s_barrier")
        stamp(a, 9)
        core.prologue(p1, kg == 0, "T")
        core.fs = 0; core.first(p1, kg == 0, vm=0); core.run(p1, NA, kg == 0)
        epi(0, kg)
    a.label("P3_B")
    a(f"s_cmp_ge_u32 s{sWave}, 4")
    a("s_cbranch_scc1 P3_B1")
    for kg in range(2):
        if kg:
            a.label("P3_B1")
            for i in range(0, 64, 2):
                a(f"v_pk_mul_f32 v[{ACC2+i}:{ACC2+i+1}], v[{vT1}:{vT1+1}], v[{vT1}:{vT1+1}] op_sel_hi:[0,0]")
            (a(f"s_cmp_lg_u32 s{sWave}, 4"), a("s_cbranch_scc1 Lq_depB"), poll(a, "depB", vT2, 16, S_WS, f"s{sFl}", sC2))
        if kg: a("s_waitcnt vmcnt(0)")
        a("s_barrier")
        stamp(a, 9)
        core.prologue(p2, kg == 0, "T")
        if kg == 0:
            a("s_waitcnt vmcnt(16)")
            for j in range(4):
                a(f"v_lshlrev_b32 v{vB2+2*j}, 16, v{vB2+2*j}")
                a(f"v_mul_f32 v{vB2+2*j}, v{vB2+2*j}, v{vOMG+2*j}")
            for i in range(4):
                for j in range(4):
                    for e in (0, 2):
                        r = ACC2 + (i * 4 + j) * 4 + e
                        a(f"v_pk_add_f32 v[{r}:{r+1}], v[{vB2+2*j}:{vB2+2*j+1}], v[{vT1}:{vT1+1}] op_sel_hi:[0,0]")
        core.fs = 0; core.first(p2, kg == 0, vm=0)
        hook = None if kg == 0 else (lambda: (a(f"s_cmp_lg_u32 s{sWave}, 4"), a("s_cbranch_scc1 Lq_dep2"), poll(a, "dep2", vT2, 16, S_WS, f"s{sFu}", sC2)))
        sl = core.run(p2, 16, kg == 0, nxt_part=p1, nxt_n0=NA, hook=hook)
        core.run(p1, 56 - NA, kg == 0, slot0=sl)
        a("s_nop 7")
        for i in range(4):
            for j in range(4):
                for e in (0, 2):
                    r = (i * 4 + j) * 4 + e
                    a(f"v_pk_fma_f32 v[{ACC+r}:{ACC+r+1}], v[{ACC+r}:{ACC+r+1}], v[{vOMG+2*j}:{vOMG+2*j+1}], v[{ACC2+r}:{ACC2+r+1}] op_sel_hi:[1,0,1]")
        epi(1, kg)
    a.label("P3_fin")


def phase3w_pre(a):
    sWave, sW1024, sT1, sT2, sA, sB = 28, 29, 34, 35, 32, 33
    vLane, vT1, vT2, vq, vr_, vc = 1, 2, 3, 4, 5, 6
    sTD, sTS, sRole, sN1 = 40, 41, 42, 43
    a(f"s_bfe_u32 s{sTD}, s2, 0x10001")
    a(f"s_lshl_b32 s{sTD}, s{sTD}, 2")
    a(f"s_and_b32 s{sT1}, s37, 3")
    a(f"s_add_u32 s{sTD}, s{sTD}, s{sT1}")
    a(f"s_bfe_u32 s{sTS}, s2, 0x10002")
    a(f"s_lshl_b32 s{sTS}, s{sTS}, 2")
    a(f"s_and_b32 s{sT1}, s38, 3")
    a(f"s_add_u32 s{sTS}, s{sTS}, s{sT1}")
    a(f"s_and_b32 s{sA}, s2, 1")
    a(f"s_mul_i32 s{sT1}, s{sA}, {NA}")
    a(f"s_mul_i32 s{sT2}, s{sA}, {56-NA}")
    a(f"s_add_u32 s{sT2}, s{sT2}, {2*NA}")
    a(f"s_add_u32 s{sB}, s{sA}, 2")
    a("s_bitcmp1_b32 s2, 7")
    a(f"s_cselect_b32 s{sRole}, s{sA}, s{sB}")
    a(f"s_cselect_b32 s{sN1}, s{sT1}, s{sT2}")
    a(f"v_lshlrev_b32 v{vT1}, 4, v{vLane}")
    a(f"s_bfe_u32 s{sT1}, s{sWave}, 0x10001")
    a(f"s_lshl_b32 s{sT1}, s{sT1}, 14")
    a(f"s_and_b32 s{sT2}, s{sWave}, 1")
    a(f"s_lshl_b32 s{sT2}, s{sT2}, 10")
    a(f"s_add_u32 s{sT1}, s{sT1}, s{sT2}")
    a(f"s_lshl_b32 s{sT2}, s{sTD}, 11")
    a(f"s_add_u32 s{sT1}, s{sT1}, s{sT2}")
    a(f"v_add_u32 v{PB}, s{sT1}, v{vT1}")
    a(f"s_lshl_b32 s{sT1}, s{sTS}, 12")
    a(f"s_add_u32 s{sT1}, s{sT1}, s{sW1024}")
    a(f"v_add_u32 v{PB+1}, s{sT1}, v{vT1}")
    a(f"v_lshrrev_b32 v{vT2}, 5, v{vLane}")
    a(f"v_lshlrev_b32 v{vT2}, 6, v{vT2}")
    a(f"v_lshl_add_u32 v{vT2}, v{vc}, 4, v{vT2}")
    a(f"v_and_b32 v{vT1}, 16, v{vLane}")
    a(f"v_lshlrev_b32 v{vT1}, 1, v{vT1}")
    a(f"v_xor_b32 v{vT2}, v{vT1}, v{vT2}")
    a(f"v_bfe_u32 v{vT1}, v{vLane}, 2, 3")
    for n, (LD, sTile, sh) in enumerate(((4096, sTS, 9), (2048, sTD, 8))):
        a(f"v_lshl_add_u32 v{PB+2+n}, v{vT1}, {log2(LD)}, v{vT2}")
        a(f"s_mul_i32 s{sT1}, s{sW1024}, {8*LD//1024}")
        a(f"s_lshl_b32 s{sT2}, s{sTile}, {sh}")
        a(f"s_add_u32 s{sT1}, s{sT1}, s{sT2}")
        a(f"v_add_u32 v{PB+2+n}, s{sT1}, v{PB+2+n}")
    a(f"s_lshr_b32 s{sA}, s{sWave}, 2")
    a(f"v_and_b32 v{PB+8}, 15, v{vLane}")
    a(f"v_lshlrev_b32 v{vT1}, 4, v{PB+8}")
    a(f"v_lshl_add_u32 v{PB+4}, v{vq}, 11, v{vT1}")
    a(f"v_lshl_add_u32 v{PB+4}, s{sA}, 10, v{PB+4}")
    a(f"v_lshl_add_u32 v{PB+5}, v{vq}, 12, v{vT1}")
    a(f"v_add_u32 v{PB+5}, s{sW1024}, v{PB+5}")
    a(f"v_lshrrev_b32 v{vT1}, 1, v{vq}")
    a(f"v_lshlrev_b32 v{vT1}, 10, v{vT1}")
    a(f"v_and_b32 v{vT2}, 1, v{vq}")
    a(f"v_mul_u32_u24 v{vT2}, 288, v{vT2}")
    a(f"v_add_u32 v{vT1}, v{vT2}, v{vT1}")
    a(f"v_lshl_add_u32 v{vT1}, v{vr_}, 6, v{vT1}")
    a(f"v_lshl_add_u32 v{vT1}, v{vc}, 3, v{vT1}")
    a(f"v_lshl_add_u32 v{PB+6}, s{sW1024}, 2, v{vT1}")
    a(f"v_add_u32 v{PB+6}, 8192, v{PB+6}")
    a(f"v_lshl_add_u32 v{PB+7}, s{sA}, 12, v{vT1}")
    a(f"v_add_u32 v{PB+7}, 16384, v{PB+7}")
    a(f"s_lshl_b32 s{sT1}, s{sTS}, 8")
    a(f"s_lshr_b32 s{sT2}, s{sW1024}, 4")
    a(f"s_add_u32 s{sT1}, s{sT1}, s{sT2}")
    a(f"v_add_u32 v{PB+8}, s{sT1}, v{PB+8}")
    a(f"s_lshl_b32 s46, s{sTD}, 7")
    a(f"s_add_u32 s46, s46, {F_U}")
    a(f"s_lshl_b32 s47, s{sTS}, 7")
    a(f"s_add_u32 s47, s47, {F_O}")
    a(f"s_lshl_b32 s48, s37, 7")
    a(f"s_lshl_b32 s{sT1}, s38, 2")
    a(f"s_add_u32 s48, s48, s{sT1}")
    a("s_bitcmp1_b32 s2, 7")
    a(f"s_cselect_b32 s47, s46, s47")
    a(f"s_cselect_b32 s{sT1}, 0, {F_O - F_U}")
    a(f"s_add_u32 s48, s48, s{sT1}")
    a(f"s_add_u32 s48, s48, {F_U}")
    if SENT:
        a(f"s_lshl_b32 s{sT1}, s{sTD}, 3")
        a(f"s_add_u32 s{sT1}, s{sT1}, s{sTS}")
        a(f"s_lshl_b32 s{sT1}, s{sT1}, 2")
        a(f"s_add_u32 s{sT1}, s{sT1}, s{sRole}")
        a(f"s_lshl_b32 s{sT1}, s{sT1}, 16")
        a(f"s_lshl_b32 s{sT2}, s{sWave}, 11")
        a(f"s_add_u32 s{sT1}, s{sT1}, s{sT2}")
        a(f"s_add_u32 s{sT1}, s{sT1}, {XCH_OFF}")
        for k, dst in ((1, 49), (2, 50), (3, 3)):
            a(f"s_add_u32 s{sT2}, s{sRole}, {k}")
            a(f"s_and_b32 s{sT2}, s{sT2}, 3")
            a(f"s_lshl_b32 s{sT2}, s{sT2}, 14")
            a(f"s_add_u32 s{dst}, s{sT1}, s{sT2}")

def xch_clear(a, vA, vD):
    if not (SENT and P3W): return
    a(f"v_lshlrev_b32 v{vA}, 4, v1")
    for n in range(4): a(f"v_mov_b32 v{vD+n}, -1")
    for sr_ in (49, 50, 3):
        for h in range(2):
            a(f"buffer_store_dwordx4 v[{vD}:{vD+3}], v{vA}, s[16:19], s{sr_} offen offset:{h*1024} sc1")

def phase3w(a):
    S_U, S_W2, S_WS, S_OP, S_WO, S_OUT = 8, 12, 16, 20, 24, 56
    sWave, sW1024, sN, sRho, sKT, sKW, sT1, sT2, sCnt = 28, 29, 30, 31, 32, 33, 34, 35, 36
    sTD, sTS, sRole, sN1 = 40, 41, 42, 43
    sWSp = 44
    vLane, vT1, vT2, vq = 1, 2, 3, 4
    NS, SB = 4, 24576
    vD1T = [PB, 9]; vD1W = [PB+2, 13, 14, 15]; vD2T = [PB+1, 17, 18, 19]; vD2W = [PB+3, 21]
    vR1T = [PB+4, 25]; vR1E = [PB+6, 27]; vR1O = [28, 29]; vR2T = [PB+5, 31]; vR2E = [PB+7, 33]; vR2O = [34, 35]
    vS = PB + 8
    vOMG = 36; vB2 = 44
    vF = [52, 84]; ACC = 116; ACC2 = 180
    sC2 = 39; sFl = 47; sFu = 46; sSig = 48
    NB = 56 - NA
    stamp(a, 8)
    srd(a, S_W2, 92, 3584 * 2048 * 2)
    srd(a, S_WO, 96, 1024 * 1024 * 2)
    for vD in (vD1W, vD2W):
        for j in range(1, len(vD)): a(f"v_add_u32 v{vD[j]}, {j*128}, v{vD[0]}")
    a(f"s_add_u32 s{sRho}, s{sTD}, s{sTS}")
    a(f"s_and_b32 s59, s2, 1")
    a(f"s_lshl_b32 s59, s59, 4")
    a("s_bitcmp1_b32 s2, 7")
    a(f"s_cselect_b32 s59, s{sN1}, s59")
    a(f"s_mov_b32 s{sN}, s59")
    a(f"v_mov_b32 v{vT1}, 0")
    a(f"v_mov_b32 v{vT2}, s{sE}")
    rng = [(r_ * NA, (r_ + 1) * NA) for r_ in range(2)] + [(2 * NA + r_ * NB, 2 * NA + (r_ + 1) * NB) for r_ in range(2)]
    lo = [32 * x // 224 for x, _ in rng]; hi = [(32 * y - 1) // 224 for _, y in rng]
    packed = sum((lo[r_] | (hi[r_] << 4)) << (8 * r_) for r_ in range(4))
    a(f"s_lshl_b32 s{sT1}, s{sRole}, 3")
    a(f"s_lshr_b32 s{sT1}, {packed:#x}, s{sT1}")
    a(f"s_bfe_u32 s{sT2}, s{sT1}, 0x40004")
    a(f"s_and_b32 s{sT1}, s{sT1}, 15")
    a(f"v_add_u32 v20, s{sT1}, v{vLane}")
    a(f"v_min_u32 v20, s{sT2}, v20")
    a(f"v_lshl_add_u32 v20, v20, 2, s{sFu}")
    a(f"s_lshl_b32 s{sKT}, s{sTD}, 3")
    a(f"s_add_u32 s{sKT}, s{sKT}, s{sTS}")
    a(f"s_lshl_b32 s{sKT}, s{sKT}, 7")
    a(f"s_add_u32 s{sKT}, s{sKT}, {F_X}")
    a(f"v_and_b32 v22, 3, v{vLane}")
    a(f"v_lshl_add_u32 v22, v22, 2, s{sKT}")
    a(f"v_cmp_gt_u32 vcc, 32, v{vLane}")
    a(f"s_lshl_b32 s{sKW}, s{sRole}, 2")
    a(f"s_add_u32 s{sKW}, s{sKW}, s{sKT}")
    if SENT: a("v_cndmask_b32 v20, v22, v20, vcc")
    a(f"v_and_b32 v16, 7, v{vLane}")
    a(f"s_and_b32 s{sT1}, s2, 1")
    a(f"s_lshl_b32 s{sT1}, s{sT1}, 5")
    a(f"s_add_u32 s{sT1}, s{sT1}, s{sFl}")
    a(f"v_lshl_add_u32 v16, v16, 2, s{sT1}")
    def rdT(vR): return lambda slot: [(vR[slot // 2], (slot % 2) * SB + i * 256) for i in range(4)]
    def rdW(vE, vO): return lambda slot: [((vO if b & 1 else vE)[slot // 2], (slot % 2) * SB + (b >> 1) * 512, (slot % 2) * SB + (b >> 1) * 512 + 2048) for b in range(4)]
    def mf1(fT, fW):
        return [f"v_mfma_f32_16x16x32_bf16 v[{ACC+(i*4+j)*4}:{ACC+(i*4+j)*4+3}], v[{fT(i)}:{fT(i)+3}], v[{fW(j)}:{fW(j)+3}], v[{ACC+(i*4+j)*4}:{ACC+(i*4+j)*4+3}]" for i in range(4) for j in range(4)]
    def mf2(fT, fW):
        return [f"v_mfma_f32_16x16x32_bf16 v[{ACC2+(i*4+j)*4}:{ACC2+(i*4+j)*4+3}], v[{fW(i)}:{fW(i)+3}], v[{fT(j)}:{fT(j)+3}], v[{ACC2+(i*4+j)*4}:{ACC2+(i*4+j)*4+3}]" for j in range(4) for i in range(4)]
    p1 = Part(srdT=S_U, srdW=S_W2, vDT=vD1T, vDW=vD1W, stT=4 * 16384, stW=32 * 4096, rdT=rdT(vR1T), rdW=rdW(vR1E, vR1O), mf=mf1, auxT='sc1', TB=8192)
    p2 = Part(srdT=S_OP, srdW=S_WO, vDT=vD2T, vDW=vD2W, stT=4 * 32768, stW=32 * 2048, rdT=rdT(vR2T), rdW=rdW(vR2E, vR2O), mf=mf2, auxT='sc1', TB=16384)
    core = Core(a, "p3", NS, SB, 0, 4, 4, vF, sW1024, sN, sRho, sKT, sKW, sT1, sT2, sCnt)
    a("s_waitcnt vmcnt(0)")
    a("s_barrier")
    a(f"s_cmp_lg_u32 s{sWave}, 0")
    a("s_cbranch_scc1 P3_nosig")
    a("s_mov_b64 exec, 1")
    a(f"buffer_store_dword v{vT2}, v{vT1}, s[{S_WS}:{S_WS+3}], s{sSig} offen sc1")
    if SENT: a(f"buffer_store_dword v{vT2}, v{vT1}, s[{S_WS}:{S_WS+3}], s{sKW} offen sc1")
    a("s_mov_b64 exec, -1")
    a.label("P3_nosig")
    a(f"s_cmp_ge_u32 s{sWave}, 4")
    a("s_cbranch_scc1 P3_nold0")
    a("s_bitcmp1_b32 s2, 7")
    a("s_cbranch_scc1 P3_wA")
    core.prologue(p2, True, "W")
    a("s_branch P3_nold0")
    a.label("P3_wA")
    core.prologue(p1, True, "W")
    a.label("P3_nold0")
    a(f"s_mov_b32 s{sN}, s59")
    srd(a, S_OUT, 94, 4096)
    a(f"v_lshlrev_b32 v8, 3, v{vS}")
    a(f"v_lshlrev_b32 v12, 1, v{vS}")
    a(f"s_mov_b32 s{sT1}, {G_OFF+4}")
    for j in range(4):
        a(f"buffer_load_dword v{vOMG+2*j}, v8, s[{S_WS}:{S_WS+3}], s{sT1} offen offset:{j*128} sc1")
        a(f"buffer_load_ushort v{vB2+2*j}, v12, s[{S_OUT}:{S_OUT+3}], 0 offen offset:{j*32}")
    srd(a, S_U, sWSp, 448 * 16384, U_OFF)
    srd(a, S_OP, sWSp, 4 * MB, OP_OFF)
    a(f"v_add_u32 v{vD1T[1]}, {2*16384}, v{vD1T[0]}")
    for j in range(1, 4): a(f"v_add_u32 v{vD2T[j]}, {j*32768}, v{vD2T[0]}")
    for vR in (vR1T, vR2T, vR1E, vR2E):
        a(f"v_add_u32 v{vR[1]}, {2*SB}, v{vR[0]}")
    for vE, vO in ((vR1E, vR1O), (vR2E, vR2O)):
        a(f"v_xor_b32 v{vO[0]}, 32, v{vE[0]}")
        a(f"v_xor_b32 v{vO[1]}, 32, v{vE[1]}")
    a(f"v_lshrrev_b32 v{vq}, 4, v{vLane}")
    for i in range(0, 64, 2):
        a(f"v_pk_mul_f32 v[{ACC+i}:{ACC+i+1}], v[{vT1}:{vT1+1}], v[{vT1}:{vT1+1}] op_sel_hi:[0,0]")
    def w4poll(tag, addr):
        a(f"s_cmp_lg_u32 s{sWave}, 4")
        a(f"s_cbranch_scc1 Lq_{tag}")
        poll(a, tag, vT2, addr, S_WS, "0", sC2, vX=[253, 254, 255])
    a("s_bitcmp1_b32 s2, 7")
    a("s_cbranch_scc0 P3_B")
    a(f"s_cmp_ge_u32 s{sWave}, 4")
    a("s_cbranch_scc1 P3_A1")
    for nl in range(2):
        if nl:
            a.label("P3_A1")
            w4poll("depA", 20)
            a("s_waitcnt vmcnt(0)")
        a("s_barrier")
        stamp(a, 9)
        core.prologue(p1, nl == 0, "T")
        core.fs = 0; core.first(p1, nl == 0, vm=0); core.run(p1, NA, nl == 0)
        if nl == 0: a("s_branch P3_Aend")
    a.label("P3_Aend")
    a("s_nop 6")
    for j in range(4):
        for i in range(4):
            for e in (0, 2):
                r = ACC + (i * 4 + j) * 4 + e
                a(pk_mul_b(r, r, vOMG + 2 * j))
    a("s_branch P3_epi")
    a.label("P3_B")
    a("s_waitcnt vmcnt(0)")
    a("s_bitcmp0_b32 s2, 0")
    a(f"s_cselect_b32 s{sT1}, 1.0, 0")
    for j in range(4):
        a(f"v_lshlrev_b32 v{vB2+2*j}, 16, v{vB2+2*j}")
        a(f"v_mul_f32 v{vB2+2*j}, v{vB2+2*j}, v{vOMG+2*j}")
        a(f"v_mul_f32 v{vB2+2*j}, s{sT1}, v{vB2+2*j}")
    for i in range(4):
        for j in range(4):
            for e in (0, 2):
                r = ACC2 + (i * 4 + j) * 4 + e
                a(f"v_pk_add_f32 v[{r}:{r+1}], v[{vB2+2*j}:{vB2+2*j+1}], v[{vT1}:{vT1+1}] op_sel_hi:[0,0]")
    a(f"s_cmp_ge_u32 s{sWave}, 4")
    a("s_cbranch_scc1 P3_B1")
    for nl in range(2):
        if nl:
            a.label("P3_B1")
            w4poll("depB", 16)
        a("s_barrier")
        stamp(a, 9)
        core.prologue(p2, nl == 0, "T")
        core.fs = 0; core.first(p2, nl == 0, vm=0)
        hook = None if nl == 0 else (lambda: w4poll("dep2", 20))
        sl = core.run(p2, 16, nl == 0, nxt_part=p1, nxt_n0=f"s{sN1}", hook=hook)
        core.run(p1, NB, nl == 0, slot0=sl)
        if nl == 0: a("s_branch P3_Bend")
    a.label("P3_Bend")
    a("s_nop 6")
    for j in range(4):
        for i in range(4):
            for e in (0, 2):
                r = (i * 4 + j) * 4 + e
                a(f"v_pk_fma_f32 v[{ACC+r}:{ACC+r+1}], v[{ACC+r}:{ACC+r+1}], v[{vOMG+2*j}:{vOMG+2*j+1}], v[{ACC2+r}:{ACC2+r+1}] op_sel_hi:[1,0,1]")
    a.label("P3_epi")
    stamp(a, 10)
    if SENT:
        a(f"s_lshl_b32 s{sT1}, s{sTD}, 3")
        a(f"s_add_u32 s{sT1}, s{sT1}, s{sTS}")
        a(f"s_lshl_b32 s{sT1}, s{sT1}, 18")
        a(f"s_lshl_b32 s{sT2}, s{sWave}, 11")
        a(f"s_add_u32 s{sT1}, s{sT1}, s{sT2}")
        a(f"s_lshl_b32 s{sKT}, s{sRole}, 14")
        a(f"s_add_u32 s{sKT}, s{sKT}, s{sT1}")
        a(f"s_add_u32 s{sKT}, s{sKT}, {XCH_OFF}")
        a(f"v_lshlrev_b32 v8, 4, v{vLane}")
        for role in range(3):
            a(f"s_cmp_eq_u32 s{sRole}, {role+1}")
            a(f"s_cbranch_scc1 P3_e{role+1}")
        for role in range(4):
            a.label(f"P3_e{role}")
            for j in [(role + k) % 4 for k in (1, 2, 3)]:
                a(f"s_add_u32 s{sT1}, s{sKT}, {j << 16}")
                o = ACC2 + 8 * j
                for i in range(4):
                    r = ACC + (i * 4 + j) * 4
                    a(f"v_cvt_pk_bf16_f32 v{o+2*i}, v{r}, v{r+1}")
                    a(f"v_cvt_pk_bf16_f32 v{o+2*i+1}, v{r+2}, v{r+3}")
                    if i & 1: a(f"buffer_store_dwordx4 v[{o+2*i-2}:{o+2*i+1}], v8, s[{S_WS}:{S_WS+3}], s{sT1} offen offset:{(i>>1)*1024} sc1")
            for i in range(4):
                r = ACC + (i * 4 + role) * 4
                for e in (0, 2): a(f"v_pk_add_f32 v[{52+4*i+e}:{53+4*i+e}], v[{r+e}:{r+e+1}], v[{vT1}:{vT1+1}] op_sel_hi:[1,0]")
            if role < 3: a("s_branch P3_e4")
        a.label("P3_e4")
        stamp(a, 11)
        a(f"s_mov_b32 s{sC2}, 0")
        a.label("P3_rx")
        for k, sr_ in enumerate((49, 50, 3)):
            for i in range(2):
                r = ACC + k * 8 + i * 4
                a(f"buffer_load_dwordx4 v[{r}:{r+3}], v8, s[{S_WS}:{S_WS+3}], s{sr_} offen offset:{i*1024} sc1")
        srd(a, S_OUT, 98, 2048 * 1024 * 2)
        a(f"v_lshl_add_u32 v9, s{sRole}, 4, v{vS}")
        a("v_lshlrev_b32 v9, 11, v9")
        a(f"v_and_b32 v10, 1, v{vq}")
        a("v_lshl_add_u32 v9, v10, 5, v9")
        a(f"v_lshrrev_b32 v10, 1, v{vq}")
        a("v_lshl_add_u32 v9, v10, 4, v9")
        a(f"s_lshl_b32 s{sCnt}, s{sTD}, 8")
        a(f"s_lshr_b32 s{sT2}, s{sWave}, 2")
        a(f"s_lshl_b32 s{sT2}, s{sT2}, 7")
        a(f"s_add_u32 s{sCnt}, s{sCnt}, s{sT2}")
        a(f"s_add_u32 s{sC2}, s{sC2}, 1")
        for k in range(3):
            a(f"s_waitcnt vmcnt({2*(2-k)})")
            r = ACC + 8 * k
            a(f"v_max3_u32 v10, v{r}, v{r+1}, v{r+2}" if k == 0 else f"v_max3_u32 v10, v10, v{r}, v{r+1}")
            rest = list(range(r + 3, r + 8)) if k == 0 else list(range(r + 2, r + 8))
            while len(rest) >= 2:
                a(f"v_max3_u32 v10, v10, v{rest[0]}, v{rest[1]}"); rest = rest[2:]
            if rest: a(f"v_max_u32 v10, v10, v{rest[0]}")
        a("v_cmp_eq_u32 vcc, -1, v10")
        a("s_cbranch_vccz P3_rxok")
        a(f"s_cmp_ge_u32 s{sC2}, 0x4000")
        a("s_cbranch_scc1 P3_rxok")
        a("s_sleep 2")
        a("s_branch P3_rx")
        a.label("P3_rxok")
        for n in range(24):
            r = ACC + n; t = ACC2 + 2 * (n % 8)
            a(f"v_lshlrev_b32 v{t}, 16, v{r}")
            a(f"v_and_b32 v{t+1}, 0xffff0000, v{r}")
            a(pk_add(52 + 2 * (n % 8), 52 + 2 * (n % 8), t))
        for h in range(2):
            o = 84 + 4 * h
            for ii in range(2):
                r = 52 + 4 * (2 * h + ii)
                a(f"v_cvt_pk_bf16_f32 v{o+2*ii}, v{r}, v{r+1}")
                a(f"v_cvt_pk_bf16_f32 v{o+2*ii+1}, v{r+2}, v{r+3}")
        for h in range(2):
            o = 84 + 4 * h
            if h == 1: a("s_nop 0")
            a(f"v_permlane16_swap_b32 v{o}, v{o+2}")
            a(f"v_permlane16_swap_b32 v{o+1}, v{o+3}")
            a(f"buffer_store_dwordx4 v[{o}:{o+3}], v9, s[{S_OUT}:{S_OUT+3}], s{sCnt} offen offset:{h*64} {OUTAUX}")
        return
    a(f"s_lshl_b32 s{sT1}, s{sTD}, 3")
    a(f"s_add_u32 s{sT1}, s{sT1}, s{sTS}")
    a(f"s_lshl_b32 s{sN}, s{sT1}, 7")
    a(f"s_add_u32 s{sN}, s{sN}, {F_X}")
    a(f"s_lshl_b32 s{sT1}, s{sT1}, 19")
    a(f"s_lshl_b32 s{sT2}, s{sWave}, 12")
    a(f"s_add_u32 s{sT1}, s{sT1}, s{sT2}")
    a(f"s_add_u32 s{sT1}, s{sT1}, {XCH_OFF}")
    a(f"s_lshl_b32 s{sKT}, s{sRole}, 15")
    a(f"s_add_u32 s{sKT}, s{sKT}, s{sT1}")
    a(f"s_lshl_b32 s{sKW}, s{sRole}, 17")
    a(f"s_add_u32 s{sKW}, s{sKW}, s{sT1}")
    a(f"v_lshlrev_b32 v8, 4, v{vLane}")
    for role in range(4):
        a(f"s_cmp_eq_u32 s{sRole}, {role}")
        a(f"s_cbranch_scc1 P3_e{role}")
    for role in range(4):
        a.label(f"P3_e{role}")
        others = [(role + k) % 4 for k in (1, 2, 3)]
        for j in others:
            a(f"s_add_u32 s{sT1}, s{sKT}, {j << 17}")
            if XBF:
                o = ACC2 + 8 * j
                for i in range(4):
                    r = ACC + (i * 4 + j) * 4
                    a(f"v_cvt_pk_bf16_f32 v{o+2*i}, v{r}, v{r+1}")
                    a(f"v_cvt_pk_bf16_f32 v{o+2*i+1}, v{r+2}, v{r+3}")
                    if i & 1: a(f"buffer_store_dwordx4 v[{o+2*i-2}:{o+2*i+1}], v8, s[{S_WS}:{S_WS+3}], s{sT1} offen offset:{(i>>1)*1024} sc1")
                continue
            for i in range(4):
                r = ACC + (i * 4 + j) * 4
                a(f"buffer_store_dwordx4 v[{r}:{r+3}], v8, s[{S_WS}:{S_WS+3}], s{sT1} offen offset:{i*1024} sc1")
        for i in range(4):
            r = ACC + (i * 4 + role) * 4
            for e in (0, 2): a(f"v_pk_add_f32 v[{52+4*i+e}:{53+4*i+e}], v[{r+e}:{r+e+1}], v[{vT1}:{vT1+1}] op_sel_hi:[1,0]")
        if role < 3: a("s_branch P3_e4")
    a.label("P3_e4")
    srd(a, S_OUT, 98, 2048 * 1024 * 2)
    a(f"v_lshl_add_u32 v9, s{sRole}, 4, v{vS}")
    a("v_lshlrev_b32 v9, 11, v9")
    a(f"v_and_b32 v10, 1, v{vq}")
    a("v_lshl_add_u32 v9, v10, 5, v9")
    a(f"v_lshrrev_b32 v10, 1, v{vq}")
    a("v_lshl_add_u32 v9, v10, 4, v9")
    a(f"s_lshl_b32 s{sCnt}, s{sTD}, 8")
    a(f"s_lshr_b32 s{sT2}, s{sWave}, 2")
    a(f"s_lshl_b32 s{sT2}, s{sT2}, 7")
    a(f"s_add_u32 s{sCnt}, s{sCnt}, s{sT2}")
    a(f"v_mov_b32 v{vT2}, s{sE}")
    a(f"v_and_b32 v16, 3, v{vLane}")
    a("v_lshlrev_b32 v16, 2, v16")
    a(f"s_lshl_b32 s{sT2}, s{sRole}, 2")
    a(f"s_add_u32 s{sT2}, s{sT2}, s{sN}")
    for k in (1, 2, 3):
        a(f"s_add_u32 s{sT1}, s{sRole}, {k}")
        a(f"s_and_b32 s{sT1}, s{sT1}, 3")
        a(f"s_lshl_b32 s{sT1}, s{sT1}, 15")
        a(f"s_add_u32 s{8+k}, s{sT1}, s{sKW}")
    a("s_waitcnt vmcnt(0)")
    a("s_barrier")
    a(f"s_cmp_lg_u32 s{sWave}, 0")
    a("s_cbranch_scc1 P3_nf")
    a("s_mov_b64 exec, 1")
    a(f"buffer_store_dword v{vT2}, v{vT1}, s[{S_WS}:{S_WS+3}], s{sT2} offen sc1")
    a("s_mov_b64 exec, -1")
    a.label("P3_nf")
    stamp(a, 11)
    poll(a, "x", 10, 16, S_WS, f"s{sN}", sC2, vX=[253, 254, 255])
    nld = 2 if XBF else 4
    for k in (1, 2, 3):
        for i in range(nld):
            r = ACC + ((k - 1) * 4 + i) * 4
            a(f"buffer_load_dwordx4 v[{r}:{r+3}], v8, s[{S_WS}:{S_WS+3}], s{8+k} offen offset:{i*1024} sc1")
    for k in (1, 2, 3):
        a(f"s_waitcnt vmcnt({nld*(3-k)})")
        if XBF:
            for n in range(8):
                r = ACC + (k - 1) * 16 + n
                a(f"v_lshlrev_b32 v{ACC2+2*n}, 16, v{r}")
                a(f"v_and_b32 v{ACC2+2*n+1}, 0xffff0000, v{r}")
                a(pk_add(52 + 2 * n, 52 + 2 * n, ACC2 + 2 * n))
            continue
        for i in range(4):
            r = ACC + ((k - 1) * 4 + i) * 4
            for e in (0, 2): a(pk_add(52 + 4 * i + e, 52 + 4 * i + e, r + e))
    for h in range(2):
        o = 84 + 4 * h
        for ii in range(2):
            r = 52 + 4 * (2 * h + ii)
            a(f"v_cvt_pk_bf16_f32 v{o+2*ii}, v{r}, v{r+1}")
            a(f"v_cvt_pk_bf16_f32 v{o+2*ii+1}, v{r+2}, v{r+3}")
    for h in range(2):
        o = 84 + 4 * h
        if h == 1: a("s_nop 0")
        a(f"v_permlane16_swap_b32 v{o}, v{o+2}")
        a(f"v_permlane16_swap_b32 v{o+1}, v{o+3}")
        a(f"buffer_store_dwordx4 v[{o}:{o+3}], v9, s[{S_OUT}:{S_OUT+3}], s{sCnt} offen offset:{h*64} {OUTAUX}")

def gen_k1(a):
    name = NAME + "_kernel"
    kernel_header(a, name)
    S_T, S_W, S_WS, S_AUX = 8, 12, 16, 24
    sWave, sW1024, sN, sRho, sKT, sKW, sT1, sT2, sCnt, sTT, sTW = 28, 29, 30, 31, 32, 33, 34, 35, 36, 37, 38
    sWSp = 44
    ST = 48
    vLane, vT1, vT2, vq, vr_, vc = 1, 2, 3, 4, 5, 6
    a("s_cmp_ge_u32 s2, 256")
    a("s_cbranch_scc1 L1_end")
    if SWAPQG: a("s_xor_b32 s2, s2, 128")
    a(f"s_load_dwordx2 s[{sWSp}:{sWSp+1}], s[0:1], {A_WS}")
    a(f"s_load_dwordx4 s[4:7], s[0:1], {A_X}")
    a(f"s_load_dwordx2 s[20:21], s[0:1], {A_WPHI}")
    a(f"s_load_dwordx4 s[40:43], s[0:1], {A_W1}")
    if FUSE:
        a(f"s_load_dwordx4 s[92:95], s[0:1], {A_W2}")
        a(f"s_load_dwordx2 s[96:97], s[0:1], {A_WO}")
        a(f"s_load_dwordx2 s[98:99], s[0:1], {A_OUT}")
        a(f"s_load_dwordx2 s[22:23], s[0:1], {A_DBG}")
        a(f"s_load_dwordx2 s[100:101], s[0:1], {A_GW}")
    stamp(a, 0)
    stamp_cyc(a, CYC)
    a(f"v_lshrrev_b32 v{vT1}, 6, v0")
    a(f"v_and_b32 v{vLane}, 63, v0")
    a(f"v_readfirstlane_b32 s{sWave}, v{vT1}")
    lane_bits(a, vLane, vq, vr_, vc)
    a(f"s_and_b32 s{sT1}, s2, 7")
    a(f"s_lshr_b32 s{sT2}, s2, 3")
    a(f"s_and_b32 s{sTT}, s{sT1}, 1")
    a(f"s_lshl_b32 s{sTT}, s{sTT}, 2")
    a(f"s_and_b32 s3, s{sT2}, 3")
    a(f"s_add_u32 s{sTT}, s{sTT}, s3")
    a(f"s_lshr_b32 s{sTW}, s{sT1}, 1")
    a(f"s_lshl_b32 s{sTW}, s{sTW}, 2")
    a(f"s_bfe_u32 s{sRho}, s{sT2}, 0x20002")
    a(f"s_add_u32 s{sTW}, s{sTW}, s{sRho}")
    a(f"s_add_u32 s{sRho}, s{sRho}, s3")
    a(f"s_and_b32 s{sW1024}, s{sWave}, 3")
    a(f"s_lshl_b32 s{sW1024}, s{sW1024}, 10")
    a(f"s_mov_b32 s{sN}, 0")
    if PRIO:
        a(f"s_cmp_ge_u32 s{sWave}, 4")
        a("s_cbranch_scc1 L1_p0" if PRIO == 1 else "s_cbranch_scc0 L1_p0")
        a("s_setprio 1")
        a.label("L1_p0")
    if PF_CODE:
        a(f"s_cmp_lg_u32 s{sWave}, 7")
        a("s_cbranch_scc1 L1_npc")
        a("s_getpc_b64 s[88:89]")
        a.label("L1_pc")
        a(f"v_lshlrev_b32 v8, 7, v{vLane}")
        a("v_lshl_add_u32 v8, s3, 14, v8")
        a("v_add_u32 v9, 8192, v8")
        a("v_min_u32 v8, L1_end-L1_pc, v8")
        a("v_min_u32 v9, L1_end-L1_pc, v9")
        a("global_load_dword v10, v8, s[88:89]")
        a("global_load_dword v10, v9, s[88:89]")
        a.label("L1_npc")
    a(f"s_cmp_ge_u32 s{sT2}, 16")
    a("s_waitcnt lgkmcnt(0)")
    srd(a, S_DBG, 22, 256)
    a("s_cbranch_scc1 L1_g1")

    NS, TB, WB = 4, 16384, 12288
    SB = TB + WB
    WPHI = NS * SB
    MT, MW = 4, 6
    vDT = [8, 9, 10, 11]; vDW = [12, 13, 14]
    vRT = [16, 17]; vRE = [18, 19]; vRO = [20, 21]
    vF = [24, 64]; ACC = 104
    srd(a, S_T, 4, 2048 * 1024 * 2)
    srd(a, S_W, 6, 1024 * 3072 * 2)
    srd(a, S_AUX, 20, 65536)
    srd(a, S_WS, sWSp, WS_BYTES)
    a(f"v_lshrrev_b32 v{vT1}, 2, v{vLane}")
    a(f"v_lshlrev_b32 v{vT1}, 11, v{vT1}")
    a(f"v_lshl_add_u32 v{vT1}, v{vc}, 4, v{vT1}")
    a(f"v_and_b32 v{vT2}, 32, v{vLane}")
    a(f"v_xor_b32 v{vT1}, v{vT2}, v{vT1}")
    a(f"s_lshl_b32 s{sT1}, s{sTT}, 19")
    a(f"s_lshl_b32 s{sT2}, s{sWave}, 15")
    a(f"s_add_u32 s{sT1}, s{sT1}, s{sT2}")
    for j, v in enumerate(vDT):
        a(f"s_add_u32 s{sT2}, s{sT1}, {j*64*2048}")
        a(f"v_add_u32 v{v}, s{sT2}, v{vT1}")
    a(f"v_bfe_u32 v{vT1}, v{vLane}, 2, 3")
    a(f"v_mul_u32_u24 v{vT1}, 6144, v{vT1}")
    a(f"v_lshrrev_b32 v{vT2}, 5, v{vLane}")
    a(f"v_lshl_add_u32 v{vT1}, v{vT2}, 6, v{vT1}")
    a(f"v_lshl_add_u32 v{vT1}, v{vc}, 4, v{vT1}")
    a(f"s_and_b32 s{sT1}, s{sWave}, 1")
    a(f"s_lshl_b32 s{sT1}, s{sT1}, 5")
    a(f"v_xor_b32 v{vT1}, s{sT1}, v{vT1}")
    a(f"s_mul_i32 s{sT1}, s{sWave}, {8*6144}")
    a(f"s_lshl_b32 s{sT2}, s{sTW}, 7")
    a(f"s_add_u32 s{sT1}, s{sT1}, s{sT2}")
    for j, v in enumerate(vDW):
        a(f"s_add_u32 s{sT2}, s{sT1}, {j*2048}")
        a(f"v_add_u32 v{v}, s{sT2}, v{vT1}")
    def q_rdT(slot): return [(vRT[slot // 2], (slot % 2) * SB + i * 1024) for i in range(MT)]
    def q_rdW(slot): return [((vRO if b & 1 else vRE)[slot // 2], (slot % 2) * SB + (b >> 1) * 4096, (slot % 2) * SB + (b >> 1) * 4096 + 256) for b in range(MW)]
    def q_mf(fT, fW):
        m = []
        for i in range(MT):
            for j in range(MW):
                d = ACC + (i * MW + j) * 4
                A, B = (fW(j), fT(i)) if j < 4 else (fT(i), fW(j))
                m.append(f"v_mfma_f32_16x16x32_bf16 v[{d}:{d+3}], v[{A}:{A+3}], v[{B}:{B+3}], v[{d}:{d+3}]")
        return m
    pq = Part(srdT=S_T, srdW=S_W, vDT=vDT, vDW=vDW, stT=64, stW=32 * 6144, rdT=q_rdT, rdW=q_rdW, mf=q_mf)
    core = Core(a, "q", NS, SB, TB, MT, MW, vF, sW1024, sN, sRho, sKT, sKW, sT1, sT2, sCnt)
    a(f"s_cmp_ge_u32 s{sWave}, 4")
    a("s_cbranch_scc1 L1q_nold0")
    a(f"v_lshlrev_b32 v{vT1}, 4, v{vLane}")
    a(f"s_lshl_b32 s{sT1}, s{sTW}, 12")
    a(f"s_add_u32 s{sT1}, s{sT1}, s{sW1024}")
    a(f"s_add_u32 m0, s{sW1024}, {WPHI}")
    a("s_nop 0")
    a(f"buffer_load_dwordx4 v{vT1}, s[{S_AUX}:{S_AUX+3}], s{sT1} offen lds")
    core.prologue(pq, True)
    a.label("L1q_nold0")
    (phase3w_pre if P3W else phase3_pre)(a)
    a(f"v_and_b32 v{vT1}, 15, v{vLane}")
    a(f"v_lshlrev_b32 v{vT1}, 6, v{vT1}")
    a(f"v_lshl_add_u32 v{vT1}, v{vq}, 4, v{vT1}")
    a(f"v_and_b32 v{vT2}, 8, v{vLane}")
    a(f"v_lshlrev_b32 v{vT2}, 2, v{vT2}")
    a(f"v_xor_b32 v{vT1}, v{vT2}, v{vT1}")
    a(f"s_lshr_b32 s{sT1}, s{sWave}, 1")
    a(f"s_lshl_b32 s{sT1}, s{sT1}, 12")
    a(f"v_add_u32 v{vRT[0]}, s{sT1}, v{vT1}")
    a(f"v_add_u32 v{vRT[1]}, {2*SB}, v{vRT[0]}")
    a(f"v_lshlrev_b32 v{vT1}, 10, v{vq}")
    a(f"v_lshl_add_u32 v{vT1}, v{vr_}, 6, v{vT1}")
    a(f"v_and_b32 v{vT2}, 1, v{vq}")
    a(f"v_lshl_add_u32 v{vT1}, v{vT2}, 5, v{vT1}")
    a(f"v_lshl_add_u32 v{vT1}, v{vc}, 3, v{vT1}")
    a(f"s_and_b32 s{sT1}, s{sWave}, 1")
    a(f"s_lshl_b32 s{sT1}, s{sT1}, 9")
    a(f"s_add_u32 s{sT1}, s{sT1}, {TB}")
    a(f"v_add_u32 v{vRE[0]}, s{sT1}, v{vT1}")
    a(f"v_add_u32 v{vRE[1]}, {2*SB}, v{vRE[0]}")
    a(f"v_xor_b32 v{vRO[0]}, 32, v{vRE[0]}")
    a(f"v_xor_b32 v{vRO[1]}, 32, v{vRE[1]}")
    for i in range(MT * MW * 4):
        a(f"v_mov_b32 v{ACC+i}, 0")
    a(f"s_cmp_ge_u32 s{sWave}, 4")
    a("s_cbranch_scc1 L1q_nold")
    def q_hook():
        a(f"s_cmp_lg_u32 s{sWave}, 4")
        a("s_cbranch_scc1 L1q_h")
        a(f"v_lshlrev_b32 v8, 3, v{vLane}")
        a("v_mov_b32 v9, 0")
        a("s_and_b32 s39, s2, 7")
        a("s_lshl_b32 s39, s39, 9")
        a(f"s_add_u32 s39, s39, {F_LN}")
        a(f"buffer_load_dword v7, v9, s[{S_DBG}:{S_DBG+3}], 0 offen sc1")
        a(f"buffer_load_dwordx2 v[10:11], v8, s[{S_WS}:{S_WS+3}], s39 offen sc1")
        a.label("L1q_h")
    def q_check(tag):
        a(f"s_cmp_lg_u32 s{sWave}, 4")
        a("s_cbranch_scc1 L1q_epi")
        a("s_waitcnt vmcnt(0)")
        poll_check(a, 7, target="nz")
        a(f"s_cbranch_vccz Lq_e{tag}")
        poll(a, "e" + tag, 7, 9, S_DBG, "0", sT1, target="nz")
        a(f"v_readfirstlane_b32 s{sE}, v7")
        a("s_nop 1")
        poll_check(a, 10, wide=True)
        a(f"s_cbranch_vccz Lq_{tag}")
        poll(a, tag, 10, 8, S_WS, "s39", sT1, wide=True)
        a(f"v_mov_b32 v9, {WPHI+4096}")
        a("ds_write_b32 v9, v7")
        a("s_waitcnt lgkmcnt(0)")
    core.fs = 0; core.first(pq, True); core.run(pq, 32, True)
    a("s_branch L1q_epi")
    a.label("L1q_nold")
    core.fs = 0; core.first(pq, False)
    core.run(pq, 32, False, hook=q_hook)
    q_check("lnq")
    a.label("L1q_epi")
    stamp(a, 1)
    stamp_cyc(a, CYC + 2)
    a("s_barrier")
    stamp(a, 2)
    a(f"v_mov_b32 v7, {WPHI+4096}")
    a("ds_read_b32 v7, v7")
    vPhiA = 8
    vAdr, vAdr2, vOA, vZ = 16, 17, 18, 19
    vG = 20
    PHQ = 200
    PITCH = 136
    AREA = 64 * PITCH
    sHead, sL = sRho, sN
    def Dt(t): return ACC + (t // 4) * 24 + 8 + (t % 4) * 4
    a(f"v_lshl_add_u32 v{vT1}, v{vq}, 2, v{vr_}")
    a(f"v_lshlrev_b32 v{vT2}, 6, v{vT1}")
    a(f"v_lshl_add_u32 v{vT2}, v{vc}, 3, v{vT2}")
    a(f"s_and_b32 s{sT1}, s{sWave}, 1")
    a(f"s_lshl_b32 s{sT2}, s{sT1}, 11")
    a(f"s_add_u32 s{sT2}, s{sT2}, {WPHI}")
    a(f"v_add_u32 v{vT2}, s{sT2}, v{vT2}")
    for fb in range(2):
        a(f"ds_read_b64_tr_b16 v[{vPhiA+4*fb}:{vPhiA+4*fb+1}], v{vT2} offset:{fb*32}")
        a(f"ds_read_b64_tr_b16 v[{vPhiA+4*fb+2}:{vPhiA+4*fb+3}], v{vT2} offset:{fb*32+1024}")
    a(f"s_mul_i32 s{sT2}, s{sT1}, {AREA}")
    a(f"s_lshr_b32 s{sKW}, s{sWave}, 1")
    a(f"s_lshl_b32 s{sKW}, s{sKW}, 5")
    a(f"s_add_u32 s{sT2}, s{sT2}, s{sKW}")
    a(f"v_mul_u32_u24 v{vAdr2}, {PITCH}, v{vT1}")
    a(f"v_lshl_add_u32 v{vAdr2}, v{vc}, 3, v{vAdr2}")
    a(f"v_add_u32 v{vAdr2}, s{sT2}, v{vAdr2}")
    a(f"s_mul_i32 s{sT2}, s{sWave}, {AREA}")
    a(f"v_and_b32 v{vT1}, 15, v{vLane}")
    a(f"v_mul_u32_u24 v{vAdr}, {PITCH}, v{vT1}")
    a(f"v_lshl_add_u32 v{vAdr}, v{vq}, 3, v{vAdr}")
    a(f"v_add_u32 v{vAdr}, s{sT2}, v{vAdr}")
    a(f"s_lshl_b32 s{sHead}, s{sTW}, 1")
    a(f"s_add_u32 s{sHead}, s{sHead}, s{sT1}")
    a(f"s_lshl_b32 s{sKW}, s{sTT}, 2")
    a(f"s_lshr_b32 s{sT2}, s{sWave}, 1")
    a(f"s_add_u32 s{sKW}, s{sKW}, s{sT2}")
    a(f"v_lshlrev_b32 v{vOA}, 3, v{vT1}")
    a(f"s_lshl_b32 s{sT2}, s{sKW}, 9")
    a(f"s_add_u32 s{sT2}, s{sT2}, {G_OFF}")
    for i in range(4):
        a(f"buffer_load_dword v{vG+i}, v{vOA}, s[{S_WS}:{S_WS+3}], s{sT2} offen offset:{i*128} sc1")
    a(f"v_lshlrev_b32 v{vOA}, 15, v{vq}")
    a(f"v_lshl_add_u32 v{vOA}, v{vT1}, 4, v{vOA}")
    a(f"s_lshl_b32 s{sKW}, s{sKW}, 10")
    a(f"s_lshl_b32 s{sT2}, s{sHead}, 17")
    a(f"s_add_u32 s{sKW}, s{sKW}, s{sT2}")
    a(f"s_add_u32 s{sKW}, s{sKW}, {OP_OFF}")
    a(f"s_mov_b32 s{sL}, {L2E}")
    a(f"v_mov_b32 v{vZ}, 0")
    xch_clear(a, 232, 236)
    if PF_W2:
        srd(a, S_T, 92, 3584 * 2048 * 2)
        srd(a, S_W, 96, 1024 * 1024 * 2)
        a(f"v_lshlrev_b32 v232, 7, v{vLane}")
        a(f"v_lshl_add_u32 v232, s{sWave}, 13, v232")
        a(f"v_lshl_add_u32 v232, s2, 16, v232")
        a(f"v_add_u32 v233, {8*MB}, v232")
        a(f"buffer_load_dword v234, v232, s[{S_T}:{S_T+3}], 0 offen")
    def red4x2(r1, op1, r2, op2, post=None):
        def seq(r, op):
            A, B, C, D = r, r + 2, r + 4, r + 6
            return [[f"v_permlane32_swap_b32 v{A}, v{B}", f"v_permlane32_swap_b32 v{C}, v{D}"],
                    [f"{op} v{A}, v{A}, v{B}", f"{op} v{C}, v{C}, v{D}"],
                    [f"v_permlane16_swap_b32 v{A}, v{C}"],
                    [f"{op} v{A}, v{A}, v{C}"],
                    post(A) if post else [],
                    [f"v_mov_b32 v{C}, v{A}"],
                    [f"v_permlane16_swap_b32 v{A}, v{C}"],
                    [f"v_mov_b32 v{B}, v{A}", f"v_mov_b32 v{D}, v{C}"],
                    [f"v_permlane32_swap_b32 v{A}, v{B}", f"v_permlane32_swap_b32 v{C}, v{D}"]]
        A, B = seq(r1, op1), seq(r2, op2)
        a("s_nop 1")
        for n, (x, y) in enumerate(zip(A, B)):
            for l in x: a(l)
            for l in y: a(l)
            if n in (1, 4, 5): a("s_nop 0")
    def softmax(X, mid=None):
        for i in range(4):
            for h in range(2):
                s0 = ACC + (i * MW + 2 * X + h) * 4
                a(f"v_cvt_pk_bf16_f32 v{24+4*i+2*h}, v{s0}, v{s0+1}")
                a(f"v_cvt_pk_bf16_f32 v{24+4*i+2*h+1}, v{s0+2}, v{s0+3}")
        if X == 1:
            a("s_waitcnt lgkmcnt(0)")
            a(f"v_readfirstlane_b32 s{sE}, v7")
        a("s_nop 1")
        for i in range(4):
            for fb in range(2):
                d = 40 + 8 * i + 4 * fb
                a(f"v_mfma_f32_16x16x32_bf16 v[{d}:{d+3}], v[{vPhiA+4*fb}:{vPhiA+4*fb+3}], v[{24+4*i}:{27+4*i}], 0")
        a("s_nop 3")
        for i in range(4):
            p = 40 + 8 * i
            if i == 3: a("s_nop 0")
            for (op3, op2, dst) in (("v_max3_f32", "v_max_f32", 72 + 2 * i), ("v_min3_f32", "v_min_f32", 80 + 2 * i)):
                a(f"{op3} v{dst}, v{p}, v{p+1}, v{p+2}")
                a(f"{op3} v{dst}, v{dst}, v{p+3}, v{p+4}")
                a(f"{op3} v{dst}, v{dst}, v{p+5}, v{p+6}")
                a(f"{op2} v{dst}, v{dst}, v{p+7}")
        red4x2(72, "v_max_f32", 80, "v_min_f32", post=lambda r: [f"v_mul_f32 v{r}, s{sL}, v{r}"])
        for i in range(4):
            p = 40 + 8 * i; e = ACC + (i * MW + 2 * X) * 4
            for n in range(0, 8, 2):
                a(pk_fma_sL(e + n, p + n, sL, 72 + 2 * i, 0, 1))
                a(pk_fma_sL(p + n, p + n, sL, 80 + 2 * i, 1, 0))
                for z in (e + n, e + n + 1, p + n, p + n + 1): a(f"v_exp_f32 v{z}, v{z}")
                if n == 4:
                    a(pk_add(24, e, e + 2)); a(pk_add(26, p, p + 2))
                if n == 6:
                    a(pk_add(24, 24, e + 4)); a(pk_add(26, 26, p + 4))
            a(pk_add(24, 24, e + 6)); a(pk_add(26, 26, p + 6))
            a(f"v_add_f32 v{72+2*i}, v24, v25")
            a(f"v_add_f32 v{80+2*i}, v26, v27")
            if mid and i == 1: mid()
        if X == 0 and KVSPLIT:
            a(f"buffer_load_dword v{vT2}, v{vZ}, s[{S_WS}:{S_WS+3}], s{sT1} offen sc1")
        red4x2(72, "v_add_f32", 80, "v_add_f32", post=lambda r: [f"v_rcp_f32 v{r}, v{r}"])
        for i in range(4):
            p = 40 + 8 * i; e = ACC + (i * MW + 2 * X) * 4
            for sg, (src, rs) in enumerate(((e, 72 + 2 * i), (p, 80 + 2 * i))):
                for n in range(0, 8, 2):
                    a(pk_mul_b(src + n, src + n, rs))
                o = (88 + 8 * (i % 2) + 4 * sg) if X == 1 else PHQ + (i * 2 + sg) * 4
                for n in range(4):
                    a(f"v_cvt_pk_bf16_f32 v{o+n}, v{src+2*n}, v{src+2*n+1}")
                if X == 1:
                    for fb in range(2):
                        a(f"ds_write_b64 v{vAdr}, v[{o+2*fb}:{o+2*fb+1}] offset:{i*16*PITCH + sg*64 + fb*32}")
    softmax(1)
    stamp(a, 3)
    VAREA = 8 * AREA
    a(f"s_lshl_b32 s{sT2}, s{sWave}, 12")
    a(f"s_add_u32 s{sT2}, s{sT2}, {VAREA}")
    a(f"v_lshlrev_b32 v{vT1}, 4, v{vLane}")
    a(f"v_add_u32 v{vAdr}, s{sT2}, v{vT1}")
    for I in range(2):
        for db in range(2):
            o = 56 + 8 * I + 4 * db
            for h in range(2):
                s0 = ACC + ((2 * I + h) * MW + 4 + db) * 4
                a(f"v_cvt_pk_bf16_f32 v{o+2*h}, v{s0}, v{s0+1}")
                a(f"v_cvt_pk_bf16_f32 v{o+2*h+1}, v{s0+2}, v{s0+3}")
            a(f"ds_write_b128 v{vAdr}, v[{o}:{o+3}] offset:{(I*2+db)*1024}")
    for n in range(4): a(f"v_mov_b32 v{PHQ+n}, 0x3f803f80")
    a(f"s_and_b32 s{sT1}, s{sWave}, 1")
    a(f"s_lshl_b32 s{sT2}, s{sT1}, 12")
    a(f"s_add_u32 s{sT2}, s{sT2}, {VAREA}")
    a(f"v_add_u32 v{vAdr}, s{sT2}, v{vT1}")
    a(f"v_lshlrev_b32 v{vT2}, 2, v{vLane}")
    a(f"s_mul_i32 s{sKT}, s{sHead}, 12288")
    a(f"s_add_u32 s{sKT}, s{sKT}, {KV_OFF}")
    a(f"s_lshr_b32 s{sT2}, s{sWave}, 1")
    a(f"s_lshl_b32 s{sT1}, s{sT2}, 11")
    a(f"s_add_u32 s{sT1}, s{sT1}, s{sKT}")
    a(f"s_lshl_b32 s{sT2}, s{sT2}, 6")
    a(f"s_add_u32 s{sT2}, s{sT2}, s{sKT}")
    a(f"s_add_u32 s{sT2}, s{sT2}, 8192")
    a("s_waitcnt lgkmcnt(0)")
    a("s_barrier")
    stamp(a, 4)
    a("s_waitcnt lgkmcnt(0)") if STAMPS else None
    def VF(n, db): return Dt((n * 2 + db) % 12) if False else ACC + ((n * 2 + db) // 4) * 24 + 8 + ((n * 2 + db) % 4) * 4
    for n in range(8):
        o = 24 + 4 * n
        off = (n >> 1) * 2 * AREA + (n & 1) * 32 * PITCH
        a(f"ds_read_b64_tr_b16 v[{o}:{o+1}], v{vAdr2} offset:{off}")
        a(f"ds_read_b64_tr_b16 v[{o+2}:{o+3}], v{vAdr2} offset:{off + 16*PITCH}")
        for db in range(2):
            a(f"ds_read_b128 v[{VF(n,db)}:{VF(n,db)+3}], v{vAdr} offset:{(n>>1)*8192 + ((n&1)*2+db)*1024}")
        if n == 3 or n == 7:
            for m in range(n - 3, n + 1):
                a(f"s_waitcnt lgkmcnt({(n-m)*4})")
                for db in range(3):
                    d = 88 + 4 * db
                    A = VF(m, db) if db < 2 else PHQ
                    c = f"v[{d}:{d+3}]" if m else "0"
                    a(f"v_mfma_f32_16x16x32_bf16 v[{d}:{d+3}], v[{A}:{A+3}], v[{24+4*m}:{27+4*m}], {c}")
    a("s_nop 6")
    for n in range(8):
        a(f"buffer_atomic_add_f32 v{88+n}, v{vT2}, s[{S_WS}:{S_WS+3}], s{sT1} offen offset:{n*256}")
    a("s_mov_b64 exec, 0xffff")
    a(f"buffer_atomic_add_f32 v96, v{vT2}, s[{S_WS}:{S_WS+3}], s{sT2} offen")
    a("s_mov_b64 exec, -1")
    stamp(a, 5)
    a(f"s_lshl_b32 s{sT1}, s{sTW}, 7")
    a(f"s_add_u32 s{sT1}, s{sT1}, {F_KV}")
    def signal():
        a("s_waitcnt vmcnt(0)")
        a("s_barrier")
        a(f"s_cmp_lg_u32 s{sWave}, 0")
        a("s_cbranch_scc1 L1q_nosig")
        a(f"v_mov_b32 v{vT2}, s{sE}")
        a(f"s_lshl_b32 s{sT2}, s{sTT}, 2")
        a(f"s_add_u32 s{sT2}, s{sT2}, s{sT1}")
        a("s_mov_b64 exec, 1")
        a(f"buffer_store_dword v{vT2}, v{vZ}, s[{S_WS}:{S_WS+3}], s{sT2} offen sc1")
        a("s_mov_b64 exec, -1")
        a.label("L1q_nosig")
        a(f"v_and_b32 v{vZ}, 7, v{vLane}")
        a(f"v_lshlrev_b32 v{vZ}, 2, v{vZ}")
        if PF_W2:
            a(f"buffer_load_dword v234, v232, s[{S_W}:{S_W+3}], 0 offen")
            a(f"buffer_load_dword v234, v233, s[{S_T}:{S_T+3}], 0 offen")
    a(f"v_lshlrev_b32 v{vAdr2}, 4, v{vq}")
    a(f"v_lshl_add_u32 v{vAdr}, v{vc}, 8, v{vAdr2}")
    a(f"v_lshl_add_u32 v{vAdr}, v{vr_}, 6, v{vAdr}")
    softmax(0, mid=signal)
    stamp(a, 6)
    if KVSPLIT:
        a("s_waitcnt vmcnt(0)")
        poll_check(a, vT2)
        a("s_cbranch_vccz Lq_kv")
        poll(a, "kv", vT2, vZ, S_WS, f"s{sT1}", sT2)
    else:
        a(f"s_cmp_lg_u32 s{sWave}, 0")
        a("s_cbranch_scc1 Lq_kv")
        poll(a, "kv", vT2, vZ, S_WS, f"s{sT1}", sT2, vX=[253, 254, 255])
        a("s_barrier")
    stamp(a, 7)
    order = (0, 2, 1, 3, 8, 9, 4, 6, 5, 7, 10, 11)
    a(f"s_add_u32 s{sT1}, s{sKT}, 4096")
    a(f"s_add_u32 s{sT2}, s{sKT}, 8192")
    for t in order:
        if t < 8:
            a(f"buffer_load_dwordx4 v[{Dt(t)}:{Dt(t)+3}], v{vAdr}, s[{S_WS}:{S_WS+3}], s{(sKT, sT1)[t // 4]} offen offset:{(t%4)*1024} sc1")
        else:
            a(f"buffer_load_dwordx4 v[{Dt(t)}:{Dt(t)+3}], v{vAdr2}, s[{S_WS}:{S_WS+3}], s{sT2} offen offset:{(t-8)*64} sc1")
    for sg in range(2):
        a(f"s_waitcnt vmcnt({6 if sg == 0 else 0})")
        for db in range(3):
            o = 72 + (db * 2 + sg) * 4
            for h in range(2):
                fk = 2 * sg + h
                t = fk * 2 + db if db < 2 else 8 + fk
                a(f"v_cvt_pk_bf16_f32 v{o+2*h}, v{Dt(t)}, v{Dt(t)+1}")
                a(f"v_cvt_pk_bf16_f32 v{o+2*h+1}, v{Dt(t)+2}, v{Dt(t)+3}")
        a("s_nop 0")
        for db in range(3):
            for i in range(4):
                d = 24 + (i * 3 + db) * 4; o = 72 + (db * 2 + sg) * 4; b = PHQ + (i * 2 + sg) * 4
                c = f"v[{d}:{d+3}]" if sg else "0"
                a(f"v_mfma_f32_16x16x32_bf16 v[{d}:{d+3}], v[{o}:{o+3}], v[{b}:{b+3}], {c}")
    a("s_nop 7")
    for i in range(4):
        a(f"v_add_f32 v{96+2*i}, 0x358637bd, v{24+(i*3+2)*4}")
    for i in range(4):
        a(f"v_rcp_f32 v{96+2*i}, v{96+2*i}")
    a("s_nop 0")
    for i in range(4):
        a(f"v_mul_f32 v{96+2*i}, v{96+2*i}, v{vG+i}")
    for i in range(4):
        d = 24 + i * 12
        for n in range(0, 8, 2):
            a(pk_mul_b(d + n, d + n, 96 + 2 * i))
        for n in range(4):
            a(f"v_cvt_pk_bf16_f32 v{PHQ+4*i+n}, v{d+2*n}, v{d+2*n+1}")
        a(f"buffer_store_dwordx4 v[{PHQ+4*i}:{PHQ+4*i+3}], v{vOA}, s[{S_WS}:{S_WS+3}], s{sKW} offen offset:{i*256} {WT}")
    a("s_branch L1_fin")

    a.label("L1_g1")
    NS, TB, WB = 3, 16384, 28672
    SB = TB + WB
    MT, MW = 4, 7
    vDT = [8, 9, 10, 11]; vDW = [12, 13, 14, 15, 16, 17, 18]
    vRT = [20, 21, 22]; vRE = [23, 24, 25]; vRO = [26, 27, 28]; vR6 = [29, 30, 31]
    vF = [32, 76]; ACC = 120
    LDW = 7168
    srd(a, S_T, 4, 2048 * 1024 * 2)
    srd(a, 56, 100, 2048)
    srd(a, S_WS, sWSp, WS_BYTES)
    srd(a, S_W, 40, 2048 * 3584 * 2)
    srd(a, S_AUX, 42, 7168)
    a("s_and_b32 s39, s2, 127")
    def g_rdT(slot): return [(vRT[slot], i * 256) for i in range(MT)]
    def g_rdW(slot): return [((vRO if b & 1 else vRE)[slot], (b >> 1) * 4096, (b >> 1) * 4096 + 256) for b in range(6)] + [(vR6[slot], 0, 256)]
    def g_mf(fT, fW):
        m = []
        for i in range(MT):
            for j in range(MW):
                d = ACC + (i * MW + j) * 4
                m.append(f"v_mfma_f32_16x16x32_bf16 v[{d}:{d+3}], v[{fW(j)}:{fW(j)+3}], v[{fT(i)}:{fT(i)+3}], v[{d}:{d+3}]")
        return m
    pg = Part(srdT=S_T, srdW=S_W, vDT=vDT, vDW=vDW, stT=8 * 16384, stW=64 * LDW, rdT=g_rdT, rdW=g_rdW, mf=g_mf)
    core = Core(a, "g", NS, SB, TB, MT, MW, vF, sW1024, sN, sRho, sKT, sKW, sT1, sT2, sCnt)
    pg.auxT = "sc1"
    def hook():
        a(f"v_lshrrev_b32 v{vT1}, 2, v{vLane}")
        a(f"v_mul_u32_u24 v{vT1}, {LDW}, v{vT1}")
        a(f"v_lshl_add_u32 v{vT1}, v{vc}, 4, v{vT1}")
        a(f"v_and_b32 v{vT2}, 32, v{vLane}")
        a(f"v_xor_b32 v{vT1}, v{vT2}, v{vT1}")
        a(f"s_mul_i32 s{sT1}, s{sWave}, {16*LDW}")
        a(f"s_mul_i32 s{sT2}, s{sTW}, 448")
        a(f"s_add_u32 s{sT1}, s{sT1}, s{sT2}")
        for j, v in enumerate(vDW):
            a(f"s_add_u32 s{sT2}, s{sT1}, {j*64}")
            a(f"v_add_u32 v{v}, s{sT2}, v{vT1}")
        a(f"s_cmp_ge_u32 s{sWave}, 4")
        a("s_cbranch_scc1 L1g_h1")
        core.prologue(pg, True, "W")
        a(f"s_waitcnt vmcnt({NS*7})")
        a("s_branch L1g_h2")
        a.label("L1g_h1")
        for i in range(4): a(f"v_mov_b32 v{32+i}, 0")
        a(f"v_lshlrev_b32 v{vT1}, 4, v{vLane}")
        a(f"v_lshl_add_u32 v{vT1}, s39, 12, v{vT1}")
        a(f"s_add_u32 s{sT1}, s{sW1024}, {KV_OFF}")
        a(f"buffer_store_dwordx4 v[32:35], v{vT1}, s[{S_WS}:{S_WS+3}], s{sT1} offen sc1")
        npf = 0
        if PF_W1:
            a(f"v_lshlrev_b32 v39, 7, v{vLane}")
            a(f"v_lshl_add_u32 v39, s{sW1024}, 3, v39")
            a(f"v_lshl_add_u32 v39, s39, 15, v39")
            for n in range(4):
                if n: a(f"v_add_u32 v39, {4*MB}, v39")
                a(f"buffer_load_dword v40, v39, s[{S_W}:{S_W+3}], 0 offen")
            npf = 4
        a(f"s_cmp_lg_u32 s{sWave}, 4")
        a("s_cbranch_scc1 L1g_h3")
        a("s_memrealtime s[88:89]")
        a("v_mov_b32 v37, 0")
        a("s_waitcnt lgkmcnt(0)")
        a("s_or_b32 s88, s88, 1")
        a("v_mov_b32 v36, s88")
        a("v_mov_b32 v38, s88")
        a("s_mov_b64 exec, 1")
        a(f"buffer_atomic_cmpswap v[36:37], v37, s[{S_DBG}:{S_DBG+3}], 0 offen sc0 sc1")
        a("s_mov_b64 exec, -1")
        a(f"s_waitcnt vmcnt({2+npf})")
        a("s_branch L1g_h2")
        a.label("L1g_h3")
        a(f"s_waitcnt vmcnt({1+npf})")
        a.label("L1g_h2")
    ln_phase(a, 120, S_T, 56, S_WS, sWave, 39, hook)
    stamp(a, 2)
    srd(a, S_T, sWSp, 4 * MB, HT_OFF)
    a(f"s_mov_b32 s{sN}, 0")
    a(f"v_lshlrev_b32 v{vT1}, 4, v{vLane}")
    a(f"s_lshr_b32 s{sT1}, s{sWave}, 1")
    a(f"s_lshl_b32 s{sT1}, s{sT1}, 14")
    a(f"s_and_b32 s{sT2}, s{sWave}, 1")
    a(f"s_lshl_b32 s{sT2}, s{sT2}, 10")
    a(f"s_add_u32 s{sT1}, s{sT1}, s{sT2}")
    a(f"s_lshl_b32 s{sT2}, s{sTT}, 11")
    a(f"s_add_u32 s{sT1}, s{sT1}, s{sT2}")
    for j, v in enumerate(vDT):
        a(f"s_add_u32 s{sT2}, s{sT1}, {j*2*16384}")
        a(f"v_add_u32 v{v}, s{sT2}, v{vT1}")
    a(f"s_mul_i32 s{sT1}, s{sTW}, 448")
    a(f"s_and_b32 s{sT2}, s{sWave}, 1")
    a(f"s_lshl_b32 s{sKT}, s{sT2}, 8")
    a(f"s_add_u32 s{sKT}, s{sKT}, s{sT1}")
    a(f"s_lshl_b32 s{sT2}, s{sT2}, 5")
    a(f"s_add_u32 s{sT1}, s{sT1}, s{sT2}")
    a(f"v_lshlrev_b32 v{vT1}, 3, v{vq}")
    for b in range(6):
        a(f"buffer_load_dwordx2 v[{76+2*b}:{77+2*b}], v{vT1}, s[{S_AUX}:{S_AUX+3}], s{sKT} offen offset:{32*b}")
    a(f"buffer_load_dwordx2 v[88:89], v{vT1}, s[{S_AUX}:{S_AUX+3}], s{sT1} offen offset:192")
    (phase3w_pre if P3W else phase3_pre)(a)
    a(f"v_and_b32 v{vT1}, 15, v{vLane}")
    a(f"v_lshlrev_b32 v{vT1}, 4, v{vT1}")
    a(f"v_lshl_add_u32 v{vT1}, v{vq}, 11, v{vT1}")
    a(f"s_lshr_b32 s{sT1}, s{sWave}, 2")
    a(f"s_lshl_b32 s{sT1}, s{sT1}, 13")
    a(f"s_bfe_u32 s{sT2}, s{sWave}, 0x10001")
    a(f"s_lshl_b32 s{sT2}, s{sT2}, 10")
    a(f"s_add_u32 s{sT1}, s{sT1}, s{sT2}")
    for s in range(NS):
        a(f"s_add_u32 s{sT2}, s{sT1}, {s*SB}")
        a(f"v_add_u32 v{vRT[s]}, s{sT2}, v{vT1}")
    a(f"v_lshlrev_b32 v{vT1}, 9, v{vq}")
    a(f"v_lshl_add_u32 v{vT1}, v{vr_}, 6, v{vT1}")
    a(f"v_and_b32 v{vT2}, 1, v{vq}")
    a(f"v_lshl_add_u32 v{vT1}, v{vT2}, 5, v{vT1}")
    a(f"v_lshl_add_u32 v{vT1}, v{vc}, 3, v{vT1}")
    a(f"v_xor_b32 v{vT2}, 32, v{vT1}")
    a(f"s_lshr_b32 s{sT1}, s{sWave}, 2")
    a(f"s_lshl_b32 s{sT1}, s{sT1}, 11")
    a(f"s_add_u32 s{sT1}, s{sT1}, {TB}")
    a(f"s_and_b32 s{sT2}, s{sWave}, 1")
    a(f"s_lshl_b32 s{sKT}, s{sT2}, 5")
    a(f"v_xor_b32 v7, s{sKT}, v{vT1}")
    a(f"s_lshl_b32 s{sKT}, s{sT2}, 14")
    a(f"s_add_u32 s{sKT}, s{sKT}, s{sT1}")
    for s in range(NS):
        a(f"s_add_u32 s{sT2}, s{sKT}, {s*SB}")
        a(f"v_add_u32 v{vRE[s]}, s{sT2}, v{vT1}")
        a(f"v_add_u32 v{vRO[s]}, s{sT2}, v{vT2}")
        a(f"s_add_u32 s{sT2}, s{sT1}, {s*SB + 3*4096}")
        a(f"v_add_u32 v{vR6[s]}, s{sT2}, v7")
    def g_epi(kg):
        stamp(a, 1)
        stamp_cyc(a, CYC + 2)
        keep = (0, 1) if kg == 0 else (2, 3)
        send = (2, 3) if kg == 0 else (0, 1)
        a(f"s_mul_i32 s{sT1}, s{sW1024}, 28")
        a(f"v_lshlrev_b32 v{vT1}, 4, v{vLane}")
        a(f"v_add_u32 v{vT1}, s{sT1}, v{vT1}")
        a(f"v_and_b32 v{vT2}, 15, v{vLane}")
        a(f"v_lshlrev_b32 v{vT2}, 4, v{vT2}")
        a(f"v_lshl_add_u32 v{vT2}, v{vq}, 14, v{vT2}")
        a(f"s_lshl_b32 s{sT1}, s{sTT}, 11")
        a(f"s_bfe_u32 s{sT2}, s{sWave}, 0x10001")
        a(f"s_lshl_b32 s{sT2}, s{sT2}, 10")
        a(f"s_add_u32 s{sT1}, s{sT1}, s{sT2}")
        a(f"s_add_u32 s{sT1}, s{sT1}, {U_OFF}")
        a(f"v_add_u32 v{vT2}, s{sT1}, v{vT2}")
        a(f"s_mul_i32 s{sN}, s{sTW}, 7")
        a(f"s_and_b32 s{sT2}, s{sWave}, 1")
        a(f"s_add_u32 s{sKW}, s{sN}, 3")
        a(f"s_lshl_b32 s{sKW}, s{sKW}, 16")
        a(f"s_lshl_b32 s{sT1}, s{sT2}, 3")
        a(f"s_add_u32 s{sKW}, s{sKW}, s{sT1}")
        a(f"s_lshl_b32 s{sT2}, s{sT2}, 2")
        a(f"s_add_u32 s{sN}, s{sN}, s{sT2}")
        a(f"s_lshl_b32 s{sN}, s{sN}, 16")
        xch_clear(a, 232, 236)
        a("s_barrier")
        a("s_nop 4")
        for n in range(14):
            r = ACC + (send[0] * MW + n) * 4
            a(f"ds_write_b128 v{vT1}, v[{r}:{r+3}] offset:{kg*14336 + n*1024}")
        a("s_waitcnt lgkmcnt(0)")
        a("s_barrier")
        for n in range(14):
            a(f"ds_read_b128 v[{32+4*n}:{35+4*n}], v{vT1} offset:{(1-kg)*14336 + n*1024}")
        import struct, math
        f2u = lambda f: struct.unpack("<I", struct.pack("<f", f))[0]
        c0 = -2 * math.sqrt(2 / math.pi) * math.log2(math.e)
        a(f"s_mov_b32 s{sKT}, {f2u(c0 * 0.044715):#x}")
        a(f"v_mov_b32 v6, {f2u(c0):#x}")
        for n in range(14):
            a(f"s_waitcnt lgkmcnt({13-n})")
            i = keep[n // 7]; b = n % 7
            r = ACC + (i * MW + b) * 4; t = 32 + 4 * n; w = 96 + 4 * (((n // 7) * 4 + b // 2) % 4) + 2 * (b & 1)
            for e in (0, 2): a(pk_add(r + e, r + e, t + e))
            for e in (0, 2): a(f"v_pk_mul_f32 v[{t+e}:{t+e+1}], v[{r+e}:{r+e+1}], v[{r+e}:{r+e+1}]")
            for e in (0, 2): a(pk_fma_sL(t + e, t + e, sKT, 6, 0, 0))
            for e in (0, 2): a(f"v_pk_mul_f32 v[{t+e}:{t+e+1}], v[{t+e}:{t+e+1}], v[{r+e}:{r+e+1}]")
            for e in range(4): a(f"v_exp_f32 v{t+e}, v{t+e}")
            if b & 1: a(f"s_add_u32 s{sT1}, s{sN}, {(b//2) << 16}")
            else: a("s_nop 0")
            for e in (0, 2): a(f"v_pk_add_f32 v[{t+e}:{t+e+1}], v[{t+e}:{t+e+1}], 1.0 op_sel_hi:[1,0]")
            for e in range(4): a(f"v_rcp_f32 v{t+e}, v{t+e}")
            a("s_nop 0")
            for e in (0, 2): a(f"v_pk_mul_f32 v[{r+e}:{r+e+1}], v[{r+e}:{r+e+1}], v[{t+e}:{t+e+1}]")
            a(f"v_cvt_pk_bf16_f32 v{w}, v{r}, v{r+1}")
            a(f"v_cvt_pk_bf16_f32 v{w+1}, v{r+2}, v{r+3}")
            if b == 6:
                a(f"buffer_store_dwordx2 v[{w}:{w+1}], v{vT2}, s[{S_WS}:{S_WS+3}], s{sKW} offen offset:{i*256} {WT}")
            elif b & 1:
                a(f"buffer_store_dwordx4 v[{w-2}:{w+1}], v{vT2}, s[{S_WS}:{S_WS+3}], s{sT1} offen offset:{i*256} {WT}")
        for z in (5, 6, 7): stamp(a, z)
    a("s_waitcnt vmcnt(0)")
    a(f"v_mov_b32 v{vT1}, {90112+256}")
    a(f"s_cmp_lg_u32 s{sWave}, 4")
    a("s_cbranch_scc1 L1g_ne")
    a("v_cmp_eq_u32 vcc, 0, v36")
    a("s_nop 1")
    a("v_cndmask_b32 v36, v36, v38, vcc")
    a("s_mov_b64 exec, 1")
    a(f"ds_write_b32 v{vT1}, v36")
    a("s_mov_b64 exec, -1")
    a("s_waitcnt lgkmcnt(0)")
    a.label("L1g_ne")
    a("s_barrier")
    a(f"ds_read_b32 v{vT2}, v{vT1}")
    a(f"v_lshlrev_b32 v{vT1}, 9, v{vLane}")
    a(f"s_lshl_b32 s{sT1}, s39, 2")
    a(f"s_add_u32 s{sT1}, s{sT1}, {F_LN}")
    a("s_waitcnt lgkmcnt(0)")
    a(f"v_readfirstlane_b32 s{sE}, v{vT2}")
    stamp(a, 3)
    a(f"s_cmp_ge_u32 s{sWave}, 4")
    a("s_cbranch_scc1 L1g_nold")
    a(f"s_cmp_lg_u32 s{sWave}, 0")
    a("s_cbranch_scc1 L1g_nf")
    a("s_mov_b64 exec, 0xff")
    a(f"buffer_store_dword v{vT2}, v{vT1}, s[{S_WS}:{S_WS+3}], s{sT1} offen sc1")
    a("s_mov_b64 exec, -1")
    a.label("L1g_nf")
    for b in range(7):
        for h in range(2):
            d = ACC + b * 4 + 2 * h
            a(f"v_lshlrev_b32 v{d}, 16, v{76+2*b+h}")
            a(f"v_and_b32 v{d+1}, 0xffff0000, v{76+2*b+h}")
    for i in range(1, 4):
        for n in range(28):
            a(f"v_mov_b32 v{ACC+i*28+n}, v{ACC+n}")
    a("s_barrier")
    stamp(a, 4)
    core.prologue(pg, True, "T")
    core.fs = 0; core.first(pg, True, vm=0); core.run(pg, 32, True)
    g_epi(0)
    a("s_branch L1_fin")
    a.label("L1g_nold")
    for i in range(MT * MW * 4):
        a(f"v_mov_b32 v{ACC+i}, 0")
    a(f"v_lshlrev_b32 v8, 3, v{vLane}")
    a(f"v_and_b32 v9, 15, v{vLane}")
    a("v_lshlrev_b32 v9, 3, v9")
    a(f"s_and_b32 s{sKW}, s2, 7")
    a(f"s_lshl_b32 s{sKW}, s{sKW}, 9")
    a(f"s_add_u32 s{sKW}, s{sKW}, {F_LN}")
    a(f"s_cmp_lg_u32 s{sWave}, 4")
    a("s_cbranch_scc1 Lq_lng")
    poll(a, "lng", 36, 9 if LNPROG else 8, S_WS, f"s{sKW}", sT1, wide=True)
    a("s_barrier")
    core.fs = 0; core.first(pg, False)
    if LNPROG:
        cnt = [0]
        def chk():
            cnt[0] += 1
            t = f"lc{cnt[0]}"
            b = Asm()
            b(f"s_cmp_lg_u32 s{sWave}, 4")
            b(f"s_cbranch_scc1 Lq_{t}")
            b("s_waitcnt vmcnt(0)")
            poll_check(b, 10, wide=True)
            b(f"s_cbranch_vccz Lq_{t}")
            poll(b, t, 10, 8, S_WS, f"s{sKW}", sT1, wide=True)
            return [l.strip() for l in b.lines]
        ex = {1: [[f"s_cmp_lg_u32 s{sWave}, 4", "s_cbranch_scc1 L1g_x", f"buffer_load_dwordx2 v[10:11], v8, s[{S_WS}:{S_WS+3}], s{sKW} offen sc1", "L1g_x:"]],
              3: [chk()]}
        core.run(pg, 32, False, extra=ex)
    else:
        core.run(pg, 32, False)
    g_epi(1)
    a.label("L1_fin")
    if FUSE:
        (phase3w if P3W else phase3)(a)
        stamp_end(a, 13, 0, sWave, 8, sWSp, 8, "L1_st")
    else:
        stamp_end(a, 9, 1, sWave, 8, sWSp, S_AUX, "L1_st")
    a.label("L1_end")
    a("s_endpgm")
    return dict(name=name, grid=256, block=512, lds=135168, vgpr=256 if FUSE else 232)


def gen_k2(a):
    name = "k2_kernel"
    kernel_header(a, name)
    S_WS = 8
    a("s_cmp_ge_u32 s2, 256")
    a("s_cbranch_scc1 L2_end")
    a(f"s_load_dwordx2 s[4:5], s[0:1], {A_WS}")
    stamp(a, 0)
    stamp_cyc(a, CYC)
    stamp_cyc(a, CYC + 2)
    a("v_lshrrev_b32 v2, 6, v0")
    a("v_and_b32 v1, 63, v0")
    a("v_readfirstlane_b32 s20, v2")
    a("v_lshlrev_b32 v3, 4, v1")
    a("s_and_b32 s21, s2, 31")
    a("s_lshr_b32 s22, s2, 5")
    a("s_lshl_b32 s22, s22, 2")
    a("s_add_u32 s22, s22, s20")
    a("s_mul_i32 s23, s21, 12288")
    a(f"s_add_u32 s23, s23, {KV_OFF}")
    a("s_lshl_b32 s24, s21, 7")
    a("s_lshl_b32 s25, s22, 2")
    a("s_add_u32 s24, s24, s25")
    a("s_lshl_b32 s24, s24, 11")
    a(f"s_add_u32 s24, s24, {PQ_OFF}")
    a("v_and_b32 v4, 15, v1")
    a("v_lshlrev_b32 v5, 3, v4")
    a("s_lshl_b32 s25, s22, 9")
    a(f"s_add_u32 s25, s25, {G_OFF}")
    a("s_waitcnt lgkmcnt(0)")
    srd(a, S_WS, 4, WS_BYTES)
    for t in range(12):
        if t % 4 == 0 and t: a("s_add_u32 s23, s23, 4096")
        a(f"buffer_load_dwordx4 v[{16+4*t}:{19+4*t}], v3, s[8:11], s23 offen offset:{(t%4)*1024}")
    for n in range(8):
        if n == 4: a("s_add_u32 s24, s24, 4096")
        a(f"buffer_load_dwordx4 v[{64+4*n}:{67+4*n}], v3, s[8:11], s24 offen offset:{(n%4)*1024}")
    for i in range(4):
        a(f"buffer_load_dword v{8+i}, v5, s[8:11], s25 offen offset:{i*128}")
    a("v_lshrrev_b32 v6, 4, v1")
    a("v_lshlrev_b32 v6, 15, v6")
    a("v_lshl_add_u32 v6, v4, 4, v6")
    a("s_lshl_b32 s26, s21, 17")
    a("s_lshl_b32 s27, s22, 10")
    a("s_add_u32 s26, s26, s27")
    a(f"s_add_u32 s26, s26, {OP_OFF}")
    a("s_waitcnt vmcnt(12)")
    for db in range(3):
        for sg in range(2):
            o = 96 + (db * 2 + sg) * 4
            for h in range(2):
                fk = 2 * sg + h
                t = fk * 2 + db if db < 2 else 8 + fk
                a(f"v_cvt_pk_bf16_f32 v{o+2*h}, v{16+4*t}, v{17+4*t}")
                a(f"v_cvt_pk_bf16_f32 v{o+2*h+1}, v{18+4*t}, v{19+4*t}")
    a("s_waitcnt vmcnt(4)")
    for sg in range(2):
        for i in range(4):
            for db in range(3):
                d = 16 + (i * 3 + db) * 4; o = 96 + (db * 2 + sg) * 4; b = 64 + (i * 2 + sg) * 4
                c = f"v[{d}:{d+3}]" if sg else "0"
                a(f"v_mfma_f32_16x16x32_bf16 v[{d}:{d+3}], v[{o}:{o+3}], v[{b}:{b+3}], {c}")
    a("s_waitcnt vmcnt(0)")
    a("s_nop 7")
    for i in range(4):
        a(f"v_add_f32 v{12+i}, 0x358637bd, v{16+(i*3+2)*4}")
    for i in range(4):
        a(f"v_rcp_f32 v{12+i}, v{12+i}")
    a("s_nop 0")
    for i in range(4):
        a(f"v_mul_f32 v{12+i}, v{12+i}, v{8+i}")
    for i in range(4):
        d = 16 + i * 12
        for n in range(8):
            a(f"v_mul_f32 v{d+n}, v{d+n}, v{12+i}")
        for n in range(4):
            a(f"v_cvt_pk_bf16_f32 v{64+4*i+n}, v{d+2*n}, v{d+2*n+1}")
        a(f"buffer_store_dwordx4 v[{64+4*i}:{67+4*i}], v6, s[8:11], s26 offen offset:{i*256}")
    stamp_end(a, 2, 2, 20, 16, 4, 12, "L2_st")
    a.label("L2_end")
    a("s_endpgm")
    return dict(name=name, grid=256, block=256, lds=0, vgpr=120)

def gen_k3(a):
    name = "k3_kernel"
    kernel_header(a, name)
    S_U, S_W2, S_OP, S_WO, S_WS, S_OUT = 8, 12, 16, 20, 24, 56
    sWave, sW1024, sN, sRho, sKT, sKW, sT1, sT2, sCnt, sTD, sTS = 28, 29, 30, 31, 32, 33, 34, 35, 36, 37, 38
    sWSp = 44
    ST = 48
    vLane, vT1, vT2, vq, vr_, vc = 1, 2, 3, 4, 5, 6
    NS, TB, SB = 4, 16384, 32768
    vD1T = [8, 9, 10, 11]; vD1W = [12, 13, 14, 15]; vD2T = [16, 17, 18, 19]; vD2W = [20, 21, 22, 23]
    vR1T = [24, 25]; vR1E = [26, 27]; vR1O = [28, 29]; vR2T = [30, 31]; vR2E = [32, 33]; vR2O = [34, 35]
    vOMG = 36; vB2 = 44
    vF = [52, 84]; ACC = 116
    a("s_cmp_ge_u32 s2, 256")
    a("s_cbranch_scc1 L3_end")
    a(f"s_load_dwordx2 s[{sWSp}:{sWSp+1}], s[0:1], {A_WS}")
    a(f"s_load_dwordx4 s[4:7], s[0:1], {A_W2}")
    a(f"s_load_dwordx2 s[40:41], s[0:1], {A_WO}")
    a(f"s_load_dwordx2 s[42:43], s[0:1], {A_OUT}")
    stamp(a, 0)
    stamp_cyc(a, CYC)
    a(f"v_lshrrev_b32 v{vT1}, 6, v0")
    a(f"v_and_b32 v{vLane}, 63, v0")
    a(f"v_readfirstlane_b32 s{sWave}, v{vT1}")
    lane_bits(a, vLane, vq, vr_, vc)
    a(f"s_lshr_b32 s{sT2}, s2, 3")
    a(f"s_bfe_u32 s{sTD}, s2, 0x10001")
    a(f"s_lshl_b32 s{sTD}, s{sTD}, 2")
    a(f"s_and_b32 s3, s{sT2}, 3")
    a(f"s_add_u32 s{sTD}, s{sTD}, s3")
    a(f"s_bfe_u32 s{sTS}, s2, 0x10002")
    a(f"s_lshl_b32 s{sTS}, s{sTS}, 3")
    a(f"s_lshr_b32 s{sRho}, s{sT2}, 2")
    a(f"s_add_u32 s{sTS}, s{sTS}, s{sRho}")
    a(f"s_add_u32 s{sRho}, s{sRho}, s3")
    a(f"s_and_b32 s{sW1024}, s{sWave}, 3")
    a(f"s_lshl_b32 s{sW1024}, s{sW1024}, 10")
    a(f"s_and_b32 s{sN}, s2, 1")
    a(f"s_mul_i32 s{sN}, s{sN}, 36")
    a("s_waitcnt lgkmcnt(0)")
    srd(a, S_U, sWSp, 448 * 16384, U_OFF)
    srd(a, S_W2, 4, 3584 * 2048 * 2)
    srd(a, S_OP, sWSp, 4 * MB, OP_OFF)
    srd(a, S_WO, 40, 1024 * 1024 * 2)
    srd(a, S_WS, sWSp, WS_BYTES)
    srd(a, S_OUT, 6, 4096)
    a(f"v_lshlrev_b32 v{vT1}, 4, v{vLane}")
    for (vD, R16, sTile) in ((vD1T, 16384, sTD), (vD2T, 32768, sTS)):
        a(f"s_bfe_u32 s{sT1}, s{sWave}, 0x10001")
        a(f"s_mul_i32 s{sT1}, s{sT1}, {R16}")
        a(f"s_and_b32 s{sT2}, s{sWave}, 1")
        a(f"s_lshl_b32 s{sT2}, s{sT2}, 10")
        a(f"s_add_u32 s{sT1}, s{sT1}, s{sT2}")
        a(f"s_lshl_b32 s{sT2}, s{sTile}, 11")
        a(f"s_add_u32 s{sT1}, s{sT1}, s{sT2}")
        for j, v in enumerate(vD):
            a(f"s_add_u32 s{sT2}, s{sT1}, {j*2*R16}")
            a(f"v_add_u32 v{v}, s{sT2}, v{vT1}")
    for (vD, LD, sTile) in ((vD1W, 4096, sTS), (vD2W, 2048, sTD)):
        a(f"v_bfe_u32 v{vT1}, v{vLane}, 2, 3")
        a(f"v_mul_u32_u24 v{vT1}, {LD}, v{vT1}")
        a(f"v_lshrrev_b32 v{vT2}, 5, v{vLane}")
        a(f"v_lshl_add_u32 v{vT1}, v{vT2}, 6, v{vT1}")
        a(f"v_lshl_add_u32 v{vT1}, v{vc}, 4, v{vT1}")
        a(f"v_and_b32 v{vT2}, 16, v{vLane}")
        a(f"v_lshlrev_b32 v{vT2}, 1, v{vT2}")
        a(f"v_xor_b32 v{vT1}, v{vT2}, v{vT1}")
        a(f"s_mul_i32 s{sT1}, s{sW1024}, {8*LD//1024}")
        a(f"s_lshl_b32 s{sT2}, s{sTile}, 8")
        a(f"s_add_u32 s{sT1}, s{sT1}, s{sT2}")
        for j, v in enumerate(vD):
            a(f"s_add_u32 s{sT2}, s{sT1}, {(j&1)*32*LD + (j>>1)*128}")
            a(f"v_add_u32 v{v}, s{sT2}, v{vT1}")
    def rdT(vR): return lambda slot: [(vR[slot // 2], (slot % 2) * SB + i * 256) for i in range(4)]
    def rdW(vE, vO): return lambda slot: [((vO if b & 1 else vE)[slot // 2], (slot % 2) * SB + (b >> 1) * 512, (slot % 2) * SB + (b >> 1) * 512 + 2048) for b in range(4)]
    def mf1(fT, fW):
        return [f"v_mfma_f32_16x16x32_bf16 v[{ACC+(i*4+j)*4}:{ACC+(i*4+j)*4+3}], v[{fT(i)}:{fT(i)+3}], v[{fW(j)}:{fW(j)+3}], v[{ACC+(i*4+j)*4}:{ACC+(i*4+j)*4+3}]" for i in range(4) for j in range(4)]
    def mf2(fT, fW):
        return [f"v_mfma_f32_16x16x32_bf16 v[{ACC+(i*4+j)*4}:{ACC+(i*4+j)*4+3}], v[{fW(i)}:{fW(i)+3}], v[{fT(j)}:{fT(j)+3}], v[{ACC+(i*4+j)*4}:{ACC+(i*4+j)*4+3}]" for j in range(4) for i in range(4)]
    p1 = Part(srdT=S_U, srdW=S_W2, vDT=vD1T, vDW=vD1W, stT=8 * 16384, stW=64 * 4096, rdT=rdT(vR1T), rdW=rdW(vR1E, vR1O), mf=mf1)
    p2 = Part(srdT=S_OP, srdW=S_WO, vDT=vD2T, vDW=vD2W, stT=8 * 32768, stW=64 * 2048, rdT=rdT(vR2T), rdW=rdW(vR2E, vR2O), mf=mf2)
    core = Core(a, "k3", NS, SB, TB, 4, 4, vF, sW1024, sN, sRho, sKT, sKW, sT1, sT2, sCnt)
    a(f"v_and_b32 v{vT1}, 15, v{vLane}")
    a(f"s_lshl_b32 s{sT1}, s{sTS}, 7")
    a(f"s_and_b32 s{sT2}, s{sWave}, 1")
    a(f"s_lshl_b32 s{sT2}, s{sT2}, 6")
    a(f"s_add_u32 s{sT1}, s{sT1}, s{sT2}")
    a(f"v_add_u32 v7, s{sT1}, v{vT1}")
    a(f"v_lshlrev_b32 v{vT1}, 3, v7")
    a(f"v_lshlrev_b32 v{vT2}, 1, v7")
    a(f"s_mov_b32 s{sT1}, {G_OFF+4}")
    for j in range(4):
        a(f"buffer_load_dword v{vOMG+2*j}, v{vT1}, s[{S_WS}:{S_WS+3}], s{sT1} offen offset:{j*128}")
        a(f"buffer_load_ushort v{vB2+2*j}, v{vT2}, s[{S_OUT}:{S_OUT+3}], 0 offen offset:{j*32}")
    a(f"s_cmp_ge_u32 s{sWave}, 4")
    a("s_cbranch_scc1 L3_nold0")
    core.prologue(p1, True)
    a.label("L3_nold0")
    a(f"v_and_b32 v{vT1}, 15, v{vLane}")
    a(f"v_lshlrev_b32 v{vT1}, 4, v{vT1}")
    a(f"v_lshl_add_u32 v{vT1}, v{vq}, 11, v{vT1}")
    a(f"s_lshr_b32 s{sT1}, s{sWave}, 2")
    a(f"s_lshl_b32 s{sT1}, s{sT1}, 13")
    a(f"v_add_u32 v{vT1}, s{sT1}, v{vT1}")
    a(f"s_bfe_u32 s{sKT}, s{sWave}, 0x10001")
    a(f"s_and_b32 s{sKW}, s{sWave}, 1")
    for vR, sel in ((vR1T, sKT), (vR2T, sKW)):
        a(f"s_lshl_b32 s{sT2}, s{sel}, 10")
        a(f"v_add_u32 v{vR[0]}, s{sT2}, v{vT1}")
        a(f"v_add_u32 v{vR[1]}, {2*SB}, v{vR[0]}")
    a(f"v_lshrrev_b32 v{vT1}, 1, v{vq}")
    a(f"v_lshlrev_b32 v{vT1}, 10, v{vT1}")
    a(f"v_and_b32 v{vT2}, 1, v{vq}")
    a(f"v_mul_u32_u24 v{vT2}, 288, v{vT2}")
    a(f"v_add_u32 v{vT1}, v{vT2}, v{vT1}")
    a(f"v_lshl_add_u32 v{vT1}, v{vr_}, 6, v{vT1}")
    a(f"v_lshl_add_u32 v{vT1}, v{vc}, 3, v{vT1}")
    a(f"s_lshr_b32 s{sT1}, s{sT1}, 1")
    a(f"s_add_u32 s{sT1}, s{sT1}, {TB}")
    a(f"v_add_u32 v{vT1}, s{sT1}, v{vT1}")
    for vE, vO, sel in ((vR1E, vR1O, sKW), (vR2E, vR2O, sKT)):
        a(f"s_lshl_b32 s{sT2}, s{sel}, 13")
        a(f"v_add_u32 v{vE[0]}, s{sT2}, v{vT1}")
        a(f"v_add_u32 v{vE[1]}, {2*SB}, v{vE[0]}")
        a(f"v_xor_b32 v{vO[0]}, 32, v{vE[0]}")
        a(f"v_xor_b32 v{vO[1]}, 32, v{vE[1]}")
    for i in range(64):
        a(f"v_mov_b32 v{ACC+i}, 0")

    def epi(role, kg):
        tag = f"{role}{kg}"
        stamp(a, 1)
        stamp_cyc(a, CYC + 2)
        keep = (0, 1) if kg == 0 else (2, 3)
        send = (2, 3) if kg == 0 else (0, 1)
        a(f"s_lshl_b32 s{sT1}, s{sW1024}, 4")
        a(f"v_lshlrev_b32 v{vT1}, 4, v{vLane}")
        a(f"v_add_u32 v{vT2}, s{sT1}, v{vT1}")
        srd(a, S_OUT, 42, 2048 * 1024 * 2)
        a(f"s_lshl_b32 s{sKT}, s2, 3")
        a(f"s_add_u32 s{sKT}, s{sKT}, s{sWave}")
        a(f"s_lshl_b32 s{sKT}, s{sKT}, 12")
        a(f"s_add_u32 s{sKT}, s{sKT}, {XCH_OFF}")
        a(f"s_xor_b32 s{sKW}, s{sKT}, {8*4096}")
        a("s_barrier")
        for n in range(8):
            r = ACC + send[0] * 16 + 4 * n
            a(f"ds_write_b128 v{vT2}, v[{r}:{r+3}] offset:{kg*8192 + n*1024}")
        a("s_waitcnt lgkmcnt(0)")
        a("s_barrier")
        for n in range(8):
            a(f"ds_read_b128 v[{52+4*n}:{55+4*n}], v{vT2} offset:{(1-kg)*8192 + n*1024}")
        K0 = ACC + keep[0] * 16
        jk = (0, 2) if role == 0 else (1, 3)
        js = (1, 3) if role == 0 else (0, 2)
        order = [(ii, j) for j in js for ii in range(2)] + [(ii, j) for j in jk for ii in range(2)]
        a("s_waitcnt lgkmcnt(0)")
        cnt = 0
        for (ii, j) in order:
            n = ii * 4 + j; r = K0 + 4 * n
            for e in (0, 2): a(pk_add(r + e, r + e, 52 + 4 * n + e))
            if role == 0:
                for e in (0, 2): a(pk_mul_b(r + e, r + e, vOMG + 2 * j))
            if j in js:
                a(f"buffer_store_dwordx4 v[{r}:{r+3}], v{vT1}, s[{S_WS}:{S_WS+3}], s{sKT} offen offset:{cnt*1024} sc1")
                cnt += 1
        a(f"v_lshlrev_b32 v{vT2}, 11, v7")
        a(f"v_and_b32 v8, 1, v{vq}")
        a(f"v_lshl_add_u32 v{vT2}, v8, 5, v{vT2}")
        a(f"v_lshrrev_b32 v8, 1, v{vq}")
        a(f"v_lshl_add_u32 v{vT2}, v8, 4, v{vT2}")
        a(f"s_lshl_b32 s{sT1}, s{sTD}, 8")
        a(f"s_bfe_u32 s{sT2}, s{sWave}, 0x10001")
        a(f"s_lshl_b32 s{sT2}, s{sT2}, 7")
        a(f"s_add_u32 s{sT1}, s{sT1}, s{sT2}")
        a(f"s_add_u32 s{sN}, s{sT1}, {kg*64}")
        a(f"s_lshl_b32 s{sT1}, s2, 8")
        a(f"s_add_u32 s{sT1}, s{sT1}, {FLAG_OFF}")
        a(f"s_xor_b32 s{sT2}, s{sT1}, 256")
        a("v_mov_b32 v8, 0")
        a("v_mov_b32 v9, 1")
        a("s_waitcnt vmcnt(0)")
        a("s_barrier")
        if kg == 0:
            a(f"s_cmp_lg_u32 s{sWave}, 0")
            a(f"s_cbranch_scc1 L3_nf{tag}")
            a("s_mov_b64 exec, 1")
            a(f"buffer_store_dword v9, v8, s[{S_WS}:{S_WS+3}], s{sT1} offen sc1")
            a("s_mov_b64 exec, -1")
            a.label(f"L3_nf{tag}")
        stamp(a, 2)
        a.label(f"L3_poll{tag}")
        a(f"buffer_load_dword v9, v8, s[{S_WS}:{S_WS+3}], s{sT2} offen sc1")
        a("s_waitcnt vmcnt(0)")
        a(f"v_readfirstlane_b32 s{sCnt}, v9")
        a(f"s_cmp_eq_u32 s{sCnt}, 1")
        a(f"s_cbranch_scc1 L3_go{tag}")
        a("s_sleep 2")
        a(f"s_branch L3_poll{tag}")
        a.label(f"L3_go{tag}")
        for n in range(4):
            a(f"buffer_load_dwordx4 v[{52+4*n}:{55+4*n}], v{vT1}, s[{S_WS}:{S_WS+3}], s{sKW} offen offset:{n*1024} sc1")
        for jn, j in enumerate(jk):
            a(f"s_waitcnt vmcnt({2 if jn == 0 else 1})" if jn == 0 else "s_waitcnt vmcnt(1)")
            o = 84 + 4 * jn
            for ii in range(2):
                r = K0 + 4 * (ii * 4 + j); t = 52 + 4 * (jn * 2 + ii)
                for e in (0, 2): a(pk_add(r + e, r + e, t + e))
                a(f"v_cvt_pk_bf16_f32 v{o+2*ii}, v{r}, v{r+1}")
                a(f"v_cvt_pk_bf16_f32 v{o+2*ii+1}, v{r+2}, v{r+3}")
            a("s_nop 1")
            a(f"v_permlane16_swap_b32 v{o}, v{o+2}")
            a(f"v_permlane16_swap_b32 v{o+1}, v{o+3}")
            a(f"s_add_u32 s{sT1}, s{sN}, {j*16*2048}")
            a(f"buffer_store_dwordx4 v[{o}:{o+3}], v{vT2}, s[{S_OUT}:{S_OUT+3}], s{sT1} offen")
        a("s_branch L3_fin")

    a("s_bitcmp1_b32 s2, 0")
    a("s_cbranch_scc1 L3_B")
    a(f"s_cmp_ge_u32 s{sWave}, 4")
    a("s_cbranch_scc1 L3_A1")
    for kg in range(2):
        if kg: a.label("L3_A1")
        core.fs = 0; core.first(p1, kg == 0); core.run(p1, 36, kg == 0)
        if kg: a("s_waitcnt vmcnt(0)")
        epi(0, kg)
    a.label("L3_B")
    a(f"s_cmp_ge_u32 s{sWave}, 4")
    a("s_cbranch_scc1 L3_B1")
    for kg in range(2):
        if kg: a.label("L3_B1")
        core.fs = 0; core.first(p1, kg == 0)
        sl = core.run(p1, 20, kg == 0, nxt_part=p2)
        if kg: a("s_waitcnt vmcnt(0)")
        else:
            for j in range(4):
                a(f"v_lshlrev_b32 v{vB2+2*j}, 16, v{vB2+2*j}")
                a(f"v_mul_f32 v{vB2+2*j}, v{vB2+2*j}, v{vOMG+2*j}")
        a("s_nop 7")
        for i in range(4):
            for j in range(4):
                for e in (0, 2):
                    r = ACC + (i * 4 + j) * 4 + e
                    a(pk_fma_bb(r, r, vOMG + 2 * j, vB2 + 2 * j) if kg == 0 else pk_mul_b(r, r, vOMG + 2 * j))
        core.run(p2, 16, kg == 0, slot0=sl)
        epi(1, kg)
    a.label("L3_fin")
    stamp_end(a, 4, 2, sWave, 8, sWSp, S_U, "L3_st")
    a.label("L3_end")
    a("s_endpgm")
    return dict(name=name, grid=256, block=512, lds=131072, vgpr=180)

KERNELS = [gen_k0, gen_k1, gen_k3]

def build(kernels=None):
    a = Asm()
    infos = []
    for g in (kernels or [gen_k1]):
        infos.append(g(a))
    ref = open(f"cdna_kernels/{NAME}.s.ref").read().split("\n")
    hdr = [l for l in ref if l.startswith(";") and "@launch" not in l and "Override" not in l and "grid=ceil" not in l]
    hdr = hdr[:14]
    txt = "\n".join(hdr) + "\n"
    for i in infos:
        txt += f"; @launch {'' if SINGLE else 'kernel=' + i['name'] + ' '}grid=({i['grid']},1,1) block=({i['block']},1,1) lds={i['lds']}\n"
    txt += '.amdgcn_target "amdgcn-amd-amdhsa--gfx950"\n'
    txt += a.text().replace("STAMPWAVE", str(STAMPWAVE))
    for i in infos:
        v = (i['vgpr'] + 3) // 4 * 4
        txt += kernel_desc(i['name'], v, v)
    return txt

if __name__ == "__main__":
    STAMPS = "--stamps" in sys.argv
    for x in sys.argv:
        if x.startswith("--D"):
            k, v = x[3:].split("="); globals()[k] = eval(v)
    out = sys.argv[1] if len(sys.argv) > 1 and not sys.argv[1].startswith("--") else f"cdna_kernels/{NAME}.s"
    open(out, "w").write(build())
```

```python
import sys
from asmlib import *

NAME = "gated_mix__linear_kernel_hedgehog__mixer_token_mlp__prompt"
MB = 1 << 20
HT_OFF = 0
G_OFF = 4 * MB
U_OFF = 8 * MB
PQ_OFF = 16 * MB
KV_OFF = 24 * MB
OP_OFF = 28 * MB
XCH_OFF = 64 * MB
FLAG_OFF = 40 * MB
STAMP_OFF = 48 * MB
WS_BYTES = 268435456
A_X, A_WQKV, A_WPHI, A_WO, A_BX, A_W1, A_B1, A_W2, A_B2, A_GW, A_OUT, A_DBG, A_WS = [8 * i for i in range(13)]
STAMPS = False
STAMPWAVE = 0
DBGSTAMP = 0
PF_W2 = 0
PF_CODE = 0
PRIO = 0
P3W = 1
XBF = 1
SENT = 0
KVSPLIT = 0
PIPEPOLL = 0
SWAPQG = 0
LNPROG = 0
OUTAUX = ''
M0HOIST = 0
DMA_LO = 0
DMA_HI = 100
RD_START = 0
PF_W1 = 0
FUSE = 1
NA = 32
NSTAMP = [13]
SINGLE = 0
CYC = 60
WT = 'sc1'

def log2(x):
    l = x.bit_length() - 1
    assert 1 << l == x, x
    return l

def srd(a, s, base, nbytes, off=0):
    if off:
        a(f"s_add_u32 s{s}, s{base}, {off}")
        a(f"s_addc_u32 s{s+1}, s{base+1}, 0")
    else:
        a(f"s_mov_b32 s{s}, s{base}")
        a(f"s_mov_b32 s{s+1}, s{base+1}")
    a(f"s_mov_b32 s{s+2}, {nbytes}")
    a(f"s_mov_b32 s{s+3}, 0x20000")

def rnd_bf16(a, v, tmp=None):
    a(f"v_cvt_pk_bf16_f32 v{v}, v{v}, v{v}")
    a(f"v_and_b32 v{v}, 0xffff0000, v{v}")

SB0 = 64
def stamp(a, i):
    if STAMPS: a(f"s_memrealtime s[{SB0+2*i}:{SB0+2*i+1}]")
def stamp_cyc(a, s):
    if STAMPS: a(f"s_memtime s[{s}:{s+1}]")
def stamp_end(a, n, kidx, swave, v0, wsbase, sS, label):
    if not STAMPS: return
    a("s_waitcnt vmcnt(0)")
    stamp(a, n - 1)
    a(f"s_cmp_lg_u32 s{swave}, STAMPWAVE")
    a(f"s_cbranch_scc1 {label}")
    a("s_waitcnt lgkmcnt(0)")
    if DBGSTAMP:
        a("s_mov_b64 exec, 1")
        a(f"s_not_b32 s3, s{SB0}")
        a(f"v_mov_b32 v{v0}, s3")
        a(f"v_mov_b32 v{v0+2}, 4")
        a(f"buffer_atomic_umax v{v0}, v{v0+2}, s[52:55], 0 offen sc1")
        a("s_bfe_u32 s3, s2, 0x10007")
        a("s_lshl_b32 s3, s3, 2")
        for w, i in ((2, 0), (4, 4), (6, 1), (8, 8), (10, 9), (12, 10), (14, 12)):
            a(f"v_mov_b32 v{v0+4+w}, s{SB0+2*i}")
            a(f"buffer_atomic_umax v{v0+4+w}, v{v0+2}, s[52:55], s3 offen offset:{w*4-4} sc1")
        a.label(label)
        return
    srd(a, sS, wsbase, 64 * 1024, STAMP_OFF + kidx * 65536)
    a(f"s_lshl_b32 s3, s2, 7")
    a(f"v_mov_b32 v{v0+2}, s3")
    a("s_mov_b64 exec, 1")
    for i in range(n + 2):
        src = SB0 + 2 * i if i < n else CYC + 2 * (i - n)
        a(f"v_mov_b32 v{v0}, s{src}")
        a(f"v_mov_b32 v{v0+1}, s{src+1}")
        a(f"buffer_store_dwordx2 v[{v0}:{v0+1}], v{v0+2}, s[{sS}:{sS+3}], 0 offen offset:{8*i if i < n else 112 + 8*(i-n)}")
        a("s_nop 1")
    a.label(label)

def gen_k0(a):
    name = "k0_kernel"
    kernel_header(a, name)
    a("s_cmp_ge_u32 s2, 256")
    a("s_cbranch_scc1 L0_end")
    a(f"s_load_dwordx2 s[4:5], s[0:1], {A_X}")
    a(f"s_load_dwordx2 s[6:7], s[0:1], {A_GW}")
    a(f"s_load_dwordx2 s[24:25], s[0:1], {A_WS}")
    stamp(a, 0)
    stamp_cyc(a, CYC)
    stamp_cyc(a, CYC + 2)
    a("v_lshrrev_b32 v2, 6, v0")
    a("v_and_b32 v1, 63, v0")
    a("v_readfirstlane_b32 s20, v2")
    a("v_lshlrev_b32 v3, 3, v0")
    a("v_lshlrev_b32 v4, 4, v1")
    a("s_lshl_b32 s21, s2, 14")
    a("s_lshl_b32 s22, s20, 12")
    a("s_add_u32 s22, s22, s21")
    a("s_waitcnt lgkmcnt(0)")
    srd(a, 8, 4, 2048 * 1024 * 2)
    srd(a, 12, 6, 2048)
    srd(a, 16, 24, WS_BYTES)
    a("buffer_load_dwordx4 v[16:19], v4, s[8:11], s22 offen")
    a("buffer_load_dwordx4 v[20:23], v4, s[8:11], s22 offen offset:1024")
    a("buffer_load_dwordx4 v[24:27], v4, s[8:11], s22 offen offset:2048")
    a("buffer_load_dwordx4 v[28:31], v4, s[8:11], s22 offen offset:3072")
    a("buffer_load_dwordx4 v[32:35], v4, s[12:15], 0 offen")
    a("buffer_load_dwordx4 v[36:39], v4, s[12:15], 0 offen offset:1024")
    for r in range(8):
        if r % 2 == 0:
            a(f"s_add_u32 s23, s21, {r*2048}")
        a(f"buffer_load_dwordx2 v[{40+2*r}:{41+2*r}], v3, s[8:11], s23 offen offset:{(r%2)*2048}")
    for i in range(4):
        a(f"v_mov_b32 v{8+i}, 0")
    a("v_lshlrev_b32 v5, 4, v0")
    a("s_mul_i32 s23, s2, 1536")
    a(f"s_add_u32 s23, s23, {KV_OFF}")
    a("v_cmp_gt_u32 vcc, 96, v0")
    a("s_and_saveexec_b64 s[26:27], vcc")
    a("s_cbranch_execz L0_nz")
    a("buffer_store_dwordx4 v[8:11], v5, s[16:19], s23 offen")
    a("s_lshl_b32 s23, s2, 8")
    a(f"s_add_u32 s23, s23, {FLAG_OFF}")
    a("v_cmp_gt_u32 vcc, 16, v0")
    a("s_and_b64 exec, exec, vcc")
    a("s_cbranch_execz L0_nz")
    a("buffer_store_dwordx4 v[8:11], v5, s[16:19], s23 offen")
    a.label("L0_nz")
    a("s_mov_b64 exec, s[26:27]")
    a("s_mov_b32 s28, 0x3f803f80")
    a("v_mov_b32 v12, 0\nv_mov_b32 v13, 0\nv_mov_b32 v14, 0\nv_mov_b32 v15, 0")
    a("s_waitcnt vmcnt(8)")
    for i in range(8):
        a(f"v_dot2_f32_bf16 v12, v{16+i}, s28, v12")
        a(f"v_dot2_f32_bf16 v13, v{16+i}, v{32+i}, v13")
        a(f"v_dot2_f32_bf16 v14, v{24+i}, s28, v14")
        a(f"v_dot2_f32_bf16 v15, v{24+i}, v{32+i}, v15")
    def wave_reduce(regs):
        a("s_nop 2")
        for m in ("row_shr:1", "row_shr:2", "row_shr:4", "row_shr:8"):
            for r in regs:
                a(f"v_add_f32_dpp v{r}, v{r}, v{r} {m} row_mask:0xf bank_mask:0xf bound_ctrl:0")
            if len(regs) < 3: a("s_nop 1")
        for m, mask in (("row_bcast:15", "0xa"), ("row_bcast:31", "0xc")):
            for r in regs:
                a(f"v_add_f32_dpp v{r}, v{r}, v{r} {m} row_mask:{mask} bank_mask:0xf")
            if len(regs) < 3: a("s_nop 1")
        a("s_nop 0")
    wave_reduce([12, 13, 14, 15])
    a("v_readlane_b32 s30, v12, 63")
    a("v_readlane_b32 s31, v13, 63")
    a("v_readlane_b32 s32, v14, 63")
    a("v_readlane_b32 s33, v15, 63")
    a("s_mov_b32 s29, 0x3a800000")
    a("v_mov_b32 v6, s29")
    a("v_mul_f32 v8, s30, v6")
    a("v_mul_f32 v9, s32, v6")
    a("v_mov_b32 v12, 0\nv_mov_b32 v14, 0")
    for i in range(8):
        for base, mean, acc, t in ((16, 8, 12, 56), (24, 9, 14, 58)):
            a(f"v_lshlrev_b32 v{t}, 16, v{base+i}")
            a(f"v_and_b32 v{t+1}, 0xffff0000, v{base+i}")
            a(f"v_sub_f32 v{t}, v{t}, v{mean}")
            a(f"v_sub_f32 v{t+1}, v{t+1}, v{mean}")
            a(f"v_fmac_f32 v{acc}, v{t}, v{t}")
            a(f"v_fmac_f32 v{acc}, v{t+1}, v{t+1}")
    wave_reduce([12, 14])
    a("v_readlane_b32 s34, v12, 63")
    a("v_readlane_b32 s35, v14, 63")
    a("v_cmp_eq_u32 vcc, 1, v1")
    a("v_mov_b32 v10, s34\nv_mov_b32 v11, s35")
    a("v_mov_b32 v12, s31\nv_mov_b32 v13, s33")
    a("v_cndmask_b32 v10, v10, v11, vcc")
    a("v_cndmask_b32 v8, v8, v9, vcc")
    a("v_cndmask_b32 v12, v12, v13, vcc")
    a("v_mul_f32 v10, v10, v6")
    rnd_bf16(a, 10)
    rnd_bf16(a, 8)
    rnd_bf16(a, 12)
    a("v_add_f32 v10, 0x3727c5ac, v10")
    a("v_mul_f32 v12, 0xbfb8aa3b, v12")
    rnd_bf16(a, 10)
    a("v_exp_f32 v12, v12")
    a("v_sqrt_f32 v10, v10")
    a("s_nop 0")
    a("v_add_f32 v12, 1.0, v12")
    rnd_bf16(a, 10)
    a("v_rcp_f32 v12, v12")
    a("v_rcp_f32 v9, v10")
    a("s_nop 0")
    rnd_bf16(a, 12)
    a("v_sub_f32 v13, 1.0, v12")
    rnd_bf16(a, 13)
    a("s_lshl_b32 s23, s20, 4")
    a("v_lshlrev_b32 v5, 3, v1")
    a("v_add_u32 v7, s23, v5")
    a("s_lshl_b32 s22, s2, 6")
    a(f"s_add_u32 s22, s22, {G_OFF}")
    a("s_mov_b64 exec, 3")
    a("ds_write_b64 v7, v[8:9]")
    a("buffer_store_dwordx2 v[12:13], v7, s[16:19], s22 offen")
    a("s_mov_b64 exec, -1")
    a("v_mov_b32 v5, 0")
    a("s_waitcnt lgkmcnt(0)")
    a("s_barrier")
    for i in range(4):
        a(f"ds_read_b128 v[{16+4*i}:{19+4*i}], v5 offset:{16*i}")
    a("s_waitcnt vmcnt(0) lgkmcnt(0)")
    for r in range(8):
        b = 64 + 4 * r
        for k in range(2):
            a(f"v_lshlrev_b32 v{b+2*k}, 16, v{40+2*r+k}")
            a(f"v_and_b32 v{b+2*k+1}, 0xffff0000, v{40+2*r+k}")
        for cidx in range(4):
            a(f"v_sub_f32 v{b+cidx}, v{b+cidx}, v{16+2*r}")
        for k in range(2):
            a(f"v_cvt_pk_bf16_f32 v{56+k}, v{b+2*k}, v{b+2*k+1}")
        for k in range(2):
            a(f"v_lshlrev_b32 v{b+2*k}, 16, v{56+k}")
            a(f"v_and_b32 v{b+2*k+1}, 0xffff0000, v{56+k}")
        for cidx in range(4):
            a(f"v_mul_f32 v{b+cidx}, v{b+cidx}, v{17+2*r}")
    a("v_lshlrev_b32 v5, 6, v0")
    a("s_lshl_b32 s23, s2, 14")
    if HT_OFF: a(f"s_add_u32 s23, s23, {HT_OFF}")
    for cidx in range(4):
        o = 96 + 4 * cidx
        for p in range(4):
            a(f"v_cvt_pk_bf16_f32 v{o+p}, v{64 + 8*p + cidx}, v{64 + 8*p + 4 + cidx}")
        a(f"buffer_store_dwordx4 v[{o}:{o+3}], v5, s[16:19], s23 offen offset:{16*cidx}")
    stamp_end(a, 2, 0, 20, 16, 24, 16, "L0_st")
    a.label("L0_end")
    a("s_endpgm")
    return dict(name=name, grid=256, block=256, lds=64, vgpr=112)


class Part:
    def __init__(self, **kw): self.__dict__.update(kw)

class Core:
    def __init__(self, a, tag, NS, SB, TB, MT, MW, vF, sW1024, sN, sRho, sKT, sKW, sT1, sT2, sCnt):
        self.__dict__.update(locals()); del self.__dict__['self']
        self.fs = 0
    def rot(self, p):
        g = getattr(p, "norot", None)
        guard = [] if g is None else [f"s_cmp_eq_u32 s{self.sT2}, {g}", f"s_cselect_b32 s{self.sT1}, s{self.sN}, s{self.sT1}"]
        return [f"s_add_u32 s{self.sT1}, s{self.sN}, s{self.sRho}",
                f"s_and_b32 s{self.sT1}, s{self.sT1}, 3",
                f"s_andn2_b32 s{self.sT2}, s{self.sN}, 3",
                f"s_or_b32 s{self.sT1}, s{self.sT1}, s{self.sT2}"] + guard + [
                f"s_mul_i32 s{self.sKT}, s{self.sT1}, {p.stT}",
                f"s_mul_i32 s{self.sKW}, s{self.sT1}, {p.stW}",
                f"s_add_u32 s{self.sN}, s{self.sN}, 1"]
    def dma(self, p, slot, which="TW"):
        g = []
        aux = getattr(p, "auxT", "")
        for j, v in enumerate(p.vDT if "T" in which else []):
            g.append([f"s_add_u32 m0, s{self.sW1024}, {slot*self.SB + j*4096}", "s_nop 0",
                      f"buffer_load_dwordx4 v{v}, s[{p.srdT}:{p.srdT+3}], s{self.sKT} offen {aux} lds"])
        for j, v in enumerate(p.vDW if "W" in which else []):
            g.append([f"s_add_u32 m0, s{self.sW1024}, {slot*self.SB + getattr(p, 'TB', self.TB) + j*4096}", "s_nop 0",
                      f"buffer_load_dwordx4 v{v}, s[{p.srdW}:{p.srdW+3}], s{self.sKW} offen lds"])
        r = self.rot(p)
        g[0] = r + g[0]
        return g
    def P(self, p): return len(p.vDT) + len(p.vDW)
    def fT(self, fs, i): return self.vF[fs] + 4 * i
    def fW(self, fs, j): return self.vF[fs] + 4 * self.MT + 4 * j
    def reads(self, p, slot, fs):
        tl = [[f"ds_read_b128 v[{self.fT(fs,i)}:{self.fT(fs,i)+3}], v{vb} offset:{o}"] for i, (vb, o) in enumerate(p.rdT(slot))]
        wl = []
        for j, (vb, o1, o2) in enumerate(p.rdW(slot)):
            b = self.fW(fs, j)
            wl.append([f"ds_read_b64_tr_b16 v[{b}:{b+1}], v{vb} offset:{o1}"])
            wl.append([f"ds_read_b64_tr_b16 v[{b+2}:{b+3}], v{vb} offset:{o2}"])
        out = []
        while tl or wl:
            if tl: out.append(tl.pop(0))
            if wl: out.append(wl.pop(0))
            if wl: out.append(wl.pop(0))
        return out
    def prologue(self, p, loader, which="TW"):
        a = self.a
        if loader:
            for s in range(self.NS):
                for g in self.dma(p, s, which):
                    for l in g: a(l)
    def first(self, p, loader, vm=None):
        a = self.a
        if loader: a(f"s_waitcnt vmcnt({(self.NS-1)*self.P(p) if vm is None else vm})")
        a("s_barrier")
        for g in self.reads(p, 0, self.fs):
            for l in g: a(l)
    def stage(self, slot, cur, nxt, dmap, vm, loader, extra=None):
        a = self.a
        f = self.fs
        if nxt is not None:
            a(f"s_waitcnt vmcnt({vm}) lgkmcnt(0)" if loader else "s_waitcnt lgkmcnt(0)")
            a("s_barrier")
            rd = self.reads(nxt, (slot + 1) % self.NS, 1 - f)
        else:
            a("s_waitcnt lgkmcnt(0)")
            rd = []
        m = cur.mf(lambda i: self.fT(f, i), lambda j: self.fW(f, j))
        nm = len(m)
        slots = [[] for _ in range(nm)]
        for idx, g in enumerate(rd):
            slots[min(idx + RD_START, nm - 1)].extend(g)
        fill = []
        if dmap is not None and loader: fill = self.dma(dmap, slot)
        if extra: fill = fill + extra
        lo = nm * DMA_LO // 100; hi = max(lo + 1, nm * DMA_HI // 100)
        for idx, g in enumerate(fill):
            pos = lo + (idx * (hi - lo)) // len(fill)
            if M0HOIST and pos > 0 and "s_nop 0" in g:
                k = g.index("s_nop 0")
                slots[pos - 1].extend(g[:k]); slots[pos] = g[k+1:] + slots[pos]
            else:
                slots[pos].extend(g)
        for i in range(nm):
            a(m[i])
            for l in slots[i]: a(l)
        self.fs = 1 - f
    def run(self, p, nst, loader, nxt_part=None, count_reg_init=None, slot0=0, extra=None, nxt_n0=0, hook=None):
        a = self.a; NS = self.NS
        UN = NS if NS % 2 == 0 else 2 * NS
        nloop = (nst - NS) // UN
        ntail = nst - nloop * UN
        P = self.P(p)
        lab = f"L_{self.tag}_{len(a.lines)}"
        if nloop > 0:
            a(f"s_mov_b32 s{self.sCnt}, {nloop}" if count_reg_init is None else count_reg_init)
            a.label(lab)
            for s in range(UN):
                self.stage((slot0 + s) % NS, p, p, p, (NS - 2) * P, loader, (extra or {}).get(s))
            a(f"s_sub_u32 s{self.sCnt}, s{self.sCnt}, 1")
            a(f"s_cmp_lg_u32 s{self.sCnt}, 0")
            a(f"s_cbranch_scc1 {lab}")
        for s in range(ntail):
            rem = ntail - 1 - s
            slot = (slot0 + s) % NS
            if rem >= NS:
                self.stage(slot, p, p, p, (NS - 2) * P, loader)
            elif nxt_part is None:
                if rem == NS - 1 and hook: hook()
                self.stage(slot, p, p if rem else None, None, min(NS - 2, max(rem - 1, 0)) * P, loader)
            else:
                assert self.P(nxt_part) == P
                if rem == NS - 1 and loader: a(f"s_mov_b32 s{self.sN}, {nxt_n0}")
                if rem == NS - 1 and hook: hook()
                self.stage(slot, p, p if rem else nxt_part, nxt_part, (NS - 2) * P, loader)
        return (slot0 + ntail) % NS

sE = 51
F_LN, F_KV, F_U, F_O, F_X = FLAG_OFF, FLAG_OFF + 4096, FLAG_OFF + 8192, FLAG_OFF + 12288, FLAG_OFF + 16384
def poll(a, tag, vD, vA, srd_, sAddr, sC, wide=False, target=None, vX=None):
    def ld(d):
        if wide: a(f"buffer_load_dwordx2 v[{d}:{d+1}], v{vA}, s[{srd_}:{srd_+3}], {sAddr} offen sc1")
        else: a(f"buffer_load_dword v{d}, v{vA}, s[{srd_}:{srd_+3}], {sAddr} offen sc1")
    a(f"s_mov_b32 s{sC}, 0")
    if PIPEPOLL and vX:
        ld(vX[0]); a("s_sleep 3"); ld(vX[1]); a("s_sleep 3")
        a.label(f"Lp_{tag}")
        for n in range(3):
            ld(vX[(n + 2) % 3])
            a("s_waitcnt vmcnt(2)")
            poll_check(a, vX[n], wide, target)
            a(f"s_cbranch_vccz Lq_{tag}")
            a("s_sleep 2")
        a(f"s_add_u32 s{sC}, s{sC}, 1")
        a(f"s_cmp_lt_u32 s{sC}, 0x100000")
        a(f"s_cbranch_scc1 Lp_{tag}")
        a.label(f"Lq_{tag}")
        return
    a.label(f"Lp_{tag}")
    ld(vD)
    a(f"s_add_u32 s{sC}, s{sC}, 1")
    a("s_waitcnt vmcnt(0)")
    poll_check(a, vD, wide, target)
    a(f"s_cbranch_vccz Lq_{tag}")
    a(f"s_cmp_ge_u32 s{sC}, 0x200000")
    a(f"s_cbranch_scc1 Lq_{tag}")
    a("s_sleep 1")
    a(f"s_branch Lp_{tag}")
    a.label(f"Lq_{tag}")
def poll_check(a, vD, wide=False, target=None):
    if target == "nz":
        a(f"v_cmp_eq_u32 vcc, 0, v{vD}")
        return
    if wide:
        a(f"v_xor_b32 v{vD}, s{sE}, v{vD}")
        a(f"v_xor_b32 v{vD+1}, s{sE}, v{vD+1}")
        a(f"v_or_b32 v{vD}, v{vD}, v{vD+1}")
        a(f"v_cmp_ne_u32 vcc, 0, v{vD}")
    else:
        a(f"v_cmp_ne_u32 vcc, s{sE}, v{vD}")

S_DBG = 52

def ln_phase(a, R, S_X, S_GW, S_WS, sWave, sIdx, dma_hook):
    v = lambda n: f"v{R+n}"
    vv = lambda n, c: f"v[{R+n}:{R+n+c-1}]"
    s21, s22, s23 = 32, 33, 34
    a(f"v_lshlrev_b32 {v(4)}, 4, v1")
    a(f"s_lshl_b32 s{s21}, s{sIdx}, 15")
    a(f"s_lshl_b32 s{s22}, s{sWave}, 12")
    a(f"s_add_u32 s{s22}, s{s22}, s{s21}")
    for n in range(4):
        a(f"buffer_load_dwordx4 {vv(16+4*n,4)}, {v(4)}, s[{S_X}:{S_X+3}], s{s22} offen offset:{n*1024}")
    a(f"buffer_load_dwordx4 {vv(32,4)}, {v(4)}, s[{S_GW}:{S_GW+3}], 0 offen")
    a(f"buffer_load_dwordx4 {vv(36,4)}, {v(4)}, s[{S_GW}:{S_GW+3}], 0 offen offset:1024")
    def pre():
        a(f"s_lshr_b32 s{s23}, s{sWave}, 2")
        a(f"s_mul_i32 s{s22}, s{s23}, 45056")
        a(f"s_and_b32 s35, s{sWave}, 1")
        a(f"s_lshl_b32 s35, s35, 7")
        a(f"v_xor_b32 {v(0)}, s35, {v(4)}")
        a(f"v_xor_b32 {v(1)}, 64, {v(0)}")
        a(f"s_lshl_b32 s35, s29, 2")
        a(f"s_add_u32 s35, s35, s{s22}")
        a(f"v_add_u32 {v(0)}, s35, {v(0)}")
        a(f"v_add_u32 {v(1)}, s35, {v(1)}")
        a(f"v_lshlrev_b32 {v(2)}, 5, v4")
        a(f"v_lshl_add_u32 {v(2)}, v6, 3, {v(2)}")
        a(f"s_lshr_b32 s35, s29, 3")
        a(f"v_add_u32 {v(2)}, s35, {v(2)}")
        a(f"v_lshlrev_b32 {v(3)}, 6, v5")
        a(f"v_xor_b32 {v(2)}, {v(3)}, {v(2)}")
        a(f"v_lshl_add_u32 {v(2)}, v5, 11, {v(2)}")
        a(f"v_add_u32 {v(2)}, s{s22}, {v(2)}")
        a(f"v_add_u32 {v(3)}, s29, {v(4)}")
        a(f"s_lshl_b32 s36, s{sIdx}, 1")
        a(f"s_add_u32 s36, s36, s{s23}")
        a(f"s_lshl_b32 s36, s36, 14")
        a(f"v_lshlrev_b32 {v(7)}, 3, v1")
        a(f"v_lshl_add_u32 {v(7)}, s{sWave}, 4, {v(7)}")
        a(f"v_mov_b32 {v(6)}, 0x3a800000")
        for n in range(12, 16): a(f"v_mov_b32 {v(n)}, 0")
    pre()
    dma_hook()
    a(f"s_mov_b32 s35, 0x3f803f80")
    for i in range(8):
        a(f"v_dot2_f32_bf16 {v(12)}, {v(16+i)}, s35, {v(12)}")
        a(f"v_dot2_f32_bf16 {v(14)}, {v(24+i)}, s35, {v(14)}")
        a(f"v_dot2_f32_bf16 {v(13)}, {v(16+i)}, {v(32+i)}, {v(13)}")
        a(f"v_dot2_f32_bf16 {v(15)}, {v(24+i)}, {v(32+i)}, {v(15)}")
    unp = []
    for i in range(16):
        unp.append(f"v_lshlrev_b32 {v(40+2*i)}, 16, {v(16+i)}")
        unp.append(f"v_and_b32 {v(41+2*i)}, 0xffff0000, {v(16+i)}")
    def wave_reduce(regs, fill):
        def pad(n):
            for _ in range(n):
                a(fill.pop(0) if fill else "s_nop 0")
        pad(3)
        for m, mask, bc_ in (("row_shr:1", "0xf", 1), ("row_shr:2", "0xf", 1), ("row_shr:4", "0xf", 1), ("row_shr:8", "0xf", 1), ("row_bcast:15", "0xa", 0), ("row_bcast:31", "0xc", 0)):
            for r in regs:
                a(f"v_add_f32_dpp {v(r)}, {v(r)}, {v(r)} {m} row_mask:{mask} bank_mask:0xf" + (" bound_ctrl:0" if bc_ else ""))
            pad(max(0, 3 - len(regs)) if not fill else 2)
        pad(1)
    wave_reduce([12, 14, 13, 15], unp)
    a(f"v_readlane_b32 s88, {v(12)}, 63")
    a(f"v_readlane_b32 s90, {v(14)}, 63")
    a(f"v_readlane_b32 s89, {v(13)}, 63")
    a(f"v_readlane_b32 s91, {v(15)}, 63")
    for l in unp: a(l)
    a(f"v_mul_f32 {v(8)}, s88, {v(6)}")
    a(f"v_mul_f32 {v(10)}, s90, {v(6)}")
    for i in range(8):
        for rr, mean, acc, t in ((0, 8, 12, 72), (1, 10, 14, 74)):
            x = 40 + 16 * rr + 2 * i
            a(f"v_pk_add_f32 {vv(t,2)}, {vv(x,2)}, {vv(mean,2)} op_sel_hi:[1,0] neg_lo:[0,1] neg_hi:[0,1]")
            a(f"v_pk_fma_f32 {vv(acc,2)}, {vv(t,2)}, {vv(t,2)}, {vv(acc,2)}" if i else f"v_pk_mul_f32 {vv(acc,2)}, {vv(t,2)}, {vv(t,2)}")
    a(f"v_add_f32 {v(12)}, {v(12)}, {v(13)}")
    a(f"v_add_f32 {v(14)}, {v(14)}, {v(15)}")
    gate = ["v_cmp_eq_u32 vcc, 1, v1", f"v_mov_b32 {v(76)}, s89", f"v_mov_b32 {v(77)}, s91",
            f"v_cndmask_b32 {v(8)}, {v(8)}, {v(10)}, vcc", f"v_cndmask_b32 {v(76)}, {v(76)}, {v(77)}, vcc",
            f"v_cvt_pk_bf16_f32 {v(76)}, {v(76)}, {v(76)}", f"v_cvt_pk_bf16_f32 {v(8)}, {v(8)}, {v(8)}",
            f"v_and_b32 {v(76)}, 0xffff0000, {v(76)}", f"v_and_b32 {v(8)}, 0xffff0000, {v(8)}",
            f"v_mul_f32 {v(76)}, 0xbfb8aa3b, {v(76)}", f"v_exp_f32 {v(76)}, {v(76)}", "s_nop 0",
            f"v_add_f32 {v(76)}, 1.0, {v(76)}", f"v_rcp_f32 {v(76)}, {v(76)}", "s_nop 0", f"v_cvt_pk_bf16_f32 {v(76)}, {v(76)}, {v(76)}"]
    wave_reduce([12, 14], gate)
    for l in gate: a(l)
    a(f"v_readlane_b32 s88, {v(12)}, 63")
    a(f"v_readlane_b32 s90, {v(14)}, 63")
    a(f"v_and_b32 {v(76)}, 0xffff0000, {v(76)}")
    a(f"v_sub_f32 {v(77)}, 1.0, {v(76)}")
    a(f"v_mov_b32 {v(10)}, s88")
    a(f"v_mov_b32 {v(11)}, s90")
    a(f"v_cndmask_b32 {v(10)}, {v(10)}, {v(11)}, vcc")
    a(f"v_mul_f32 {v(10)}, {v(10)}, {v(6)}")
    rnd_bf16(a, R + 10)
    a(f"v_add_f32 {v(10)}, 0x3727c5ac, {v(10)}")
    rnd_bf16(a, R + 10)
    a(f"v_sqrt_f32 {v(10)}, {v(10)}")
    rnd_bf16(a, R + 77)
    rnd_bf16(a, R + 10)
    a(f"v_rcp_f32 {v(10)}, {v(10)}")
    a(f"s_lshl_b32 s{s22}, s{sIdx}, 7")
    a(f"s_add_u32 s{s22}, s{s22}, {G_OFF}")
    a(f"v_mul_f32 {v(8)}, {v(8)}, {v(10)}")
    a(f"v_readlane_b32 s88, {v(10)}, 0")
    a(f"v_readlane_b32 s90, {v(10)}, 1")
    a(f"v_readlane_b32 s89, {v(8)}, 0")
    a(f"v_readlane_b32 s91, {v(8)}, 1")
    a("s_mov_b64 exec, 3")
    a(f"buffer_store_dwordx2 {vv(76,2)}, {v(7)}, s[{S_WS}:{S_WS+3}], s{s22} offen sc1")
    a("s_mov_b64 exec, -1")
    a(f"v_mov_b32 {v(12)}, s89")
    a(f"v_mov_b32 {v(14)}, s91")
    for rr in range(2):
        for hf in range(2):
            o = 80 + 8 * rr + 4 * hf
            for i in range(4):
                x = 40 + 16 * rr + 8 * hf + 2 * i
                a(f"v_pk_fma_f32 {vv(x,2)}, {vv(x,2)}, s[{88+2*rr}:{89+2*rr}], {vv(12+2*rr,2)} op_sel_hi:[1,0,0] neg_lo:[0,0,1] neg_hi:[0,0,1]")
            for i in range(4):
                x = 40 + 16 * rr + 8 * hf + 2 * i
                a(f"v_cvt_pk_bf16_f32 {v(o+i)}, {v(x)}, {v(x+1)}")
            a(f"ds_write_b128 {v(rr)}, {vv(o,4)} offset:{rr*2048 + hf*1024}")
    a("s_waitcnt lgkmcnt(0)")
    a("s_barrier")
    for n in range(4):
        a(f"ds_read_b64_tr_b16 {vv(96+4*n,2)}, {v(2)} offset:{n*512}")
        a(f"ds_read_b64_tr_b16 {vv(98+4*n,2)}, {v(2)} offset:{n*512 + 8192}")
    for n in range(4):
        a(f"s_waitcnt lgkmcnt({6-2*n})")
        a(f"buffer_store_dwordx4 {vv(96+4*n,4)}, {v(3)}, s[{S_WS}:{S_WS+3}], s36 offen sc1")
        if n < 3: a("s_add_u32 s36, s36, 4096")

def lane_bits(a, vLane, vq, vr, vc):
    a(f"v_lshrrev_b32 v{vq}, 4, v{vLane}")
    a(f"v_bfe_u32 v{vr}, v{vLane}, 2, 2")
    a(f"v_and_b32 v{vc}, 3, v{vLane}")

L2E = 0x3fb8aa3b
def bc(r):
    assert r % 2 == 0, r
    return f"v[{r}:{r+1}]", 0
def pk_fma_sL(d, x, sL, m, negx, negm):
    pm, sm = bc(m)
    return (f"v_pk_fma_f32 v[{d}:{d+1}], v[{x}:{x+1}], s[{sL}:{sL+1}], {pm} op_sel:[0,0,{sm}] op_sel_hi:[1,0,{sm}] "
            f"neg_lo:[{negx},0,{negm}] neg_hi:[{negx},0,{negm}]")
def pk_mul_b(d, x, m):
    pm, sm = bc(m)
    return f"v_pk_mul_f32 v[{d}:{d+1}], v[{x}:{x+1}], {pm} op_sel:[0,{sm}] op_sel_hi:[1,{sm}]"
def pk_fma_bb(d, x, m, c):
    pm, sm = bc(m); pc, sc = bc(c)
    return f"v_pk_fma_f32 v[{d}:{d+1}], v[{x}:{x+1}], {pm}, {pc} op_sel:[0,{sm},{sc}] op_sel_hi:[1,{sm},{sc}]"
def pk_add(d, x, y): return f"v_pk_add_f32 v[{d}:{d+1}], v[{x}:{x+1}], v[{y}:{y+1}]"

PB = 244
def phase3_pre(a):
    sWave, sW1024, sT1, sT2, sTD, sTS, sA, sB = 28, 29, 34, 35, 37, 38, 32, 33
    vLane, vT1, vT2, vq, vr_, vc = 1, 2, 3, 4, 5, 6
    TB = 16384
    a(f"v_lshlrev_b32 v{vT1}, 4, v{vLane}")
    a(f"s_bfe_u32 s{sA}, s{sWave}, 0x10001")
    a(f"s_and_b32 s{sB}, s{sWave}, 1")
    for n, (R16, sTile) in enumerate(((16384, sTD), (32768, sTS))):
        a(f"s_mul_i32 s{sT1}, s{sA}, {R16}")
        a(f"s_lshl_b32 s{sT2}, s{sB}, 10")
        a(f"s_add_u32 s{sT1}, s{sT1}, s{sT2}")
        a(f"s_lshl_b32 s{sT2}, s{sTile}, 11")
        a(f"s_add_u32 s{sT1}, s{sT1}, s{sT2}")
        a(f"v_add_u32 v{PB+n}, s{sT1}, v{vT1}")
    a(f"v_lshrrev_b32 v{vT2}, 5, v{vLane}")
    a(f"v_lshlrev_b32 v{vT2}, 6, v{vT2}")
    a(f"v_lshl_add_u32 v{vT2}, v{vc}, 4, v{vT2}")
    a(f"v_and_b32 v{vT1}, 16, v{vLane}")
    a(f"v_lshlrev_b32 v{vT1}, 1, v{vT1}")
    a(f"v_xor_b32 v{vT2}, v{vT1}, v{vT2}")
    a(f"v_bfe_u32 v{vT1}, v{vLane}, 2, 3")
    for n, (LD, sTile) in enumerate(((4096, sTS), (2048, sTD))):
        a(f"v_lshl_add_u32 v{PB+2+n}, v{vT1}, {log2(LD)}, v{vT2}")
        a(f"s_mul_i32 s{sT1}, s{sW1024}, {8*LD//1024}")
        a(f"s_lshl_b32 s{sT2}, s{sTile}, 8")
        a(f"s_add_u32 s{sT1}, s{sT1}, s{sT2}")
        a(f"v_add_u32 v{PB+2+n}, s{sT1}, v{PB+2+n}")
    a(f"v_and_b32 v{PB+8}, 15, v{vLane}")
    a(f"v_lshlrev_b32 v{vT1}, 4, v{PB+8}")
    a(f"v_lshl_add_u32 v{vT1}, v{vq}, 11, v{vT1}")
    a(f"s_lshr_b32 s{sT1}, s{sWave}, 2")
    a(f"s_lshl_b32 s{sT1}, s{sT1}, 13")
    a(f"v_add_u32 v{vT1}, s{sT1}, v{vT1}")
    for n, sel in enumerate((sA, sB)):
        a(f"v_lshl_add_u32 v{PB+4+n}, s{sel}, 10, v{vT1}")
    a(f"v_lshrrev_b32 v{vT1}, 1, v{vq}")
    a(f"v_lshlrev_b32 v{vT1}, 10, v{vT1}")
    a(f"v_and_b32 v{vT2}, 1, v{vq}")
    a(f"v_mul_u32_u24 v{vT2}, 288, v{vT2}")
    a(f"v_add_u32 v{vT1}, v{vT2}, v{vT1}")
    a(f"v_lshl_add_u32 v{vT1}, v{vr_}, 6, v{vT1}")
    a(f"v_lshl_add_u32 v{vT1}, v{vc}, 3, v{vT1}")
    a(f"s_lshr_b32 s{sT1}, s{sT1}, 1")
    a(f"s_add_u32 s{sT1}, s{sT1}, {TB}")
    a(f"v_add_u32 v{vT1}, s{sT1}, v{vT1}")
    for n, sel in enumerate((sB, sA)):
        a(f"v_lshl_add_u32 v{PB+6+n}, s{sel}, 13, v{vT1}")
    a(f"s_lshl_b32 s{sT1}, s{sTS}, 7")
    a(f"s_lshl_b32 s{sT2}, s{sB}, 6")
    a(f"s_add_u32 s{sT1}, s{sT1}, s{sT2}")
    a(f"v_add_u32 v{PB+8}, s{sT1}, v{PB+8}")
    a(f"s_lshl_b32 s46, s{sTD}, 7")
    a(f"s_add_u32 s46, s46, {F_U}")
    a(f"s_lshr_b32 s47, s{sTS}, 1")
    a(f"s_lshl_b32 s47, s47, 7")
    a(f"s_add_u32 s47, s47, {F_O}")
    a(f"s_add_u32 s48, s46, {F_O - F_U}")
    a("s_bitcmp1_b32 s2, 7")
    a(f"s_cselect_b32 s47, s46, s47")
    a(f"s_cselect_b32 s48, s46, s48")
    a(f"s_lshl_b32 s{sT1}, s{sTS}, 2")
    a(f"s_add_u32 s48, s48, s{sT1}")

def phase3(a):
    S_U, S_W2, S_WS, S_OP, S_WO, S_OUT = 8, 12, 16, 20, 24, 56
    sWave, sW1024, sN, sRho, sKT, sKW, sT1, sT2, sCnt, sTD, sTS = 28, 29, 30, 31, 32, 33, 34, 35, 36, 37, 38
    sWSp = 44
    vLane, vT1, vT2, vq, vr_, vc = 1, 2, 3, 4, 5, 6
    NS, TB, SB = 4, 16384, 32768
    vD1T = [PB, 9, 10, 11]; vD1W = [PB+2, 13, 14, 15]; vD2T = [PB+1, 17, 18, 19]; vD2W = [PB+3, 21, 22, 23]
    vR1T = [PB+4, 25]; vR1E = [PB+6, 27]; vR1O = [28, 29]; vR2T = [PB+5, 31]; vR2E = [PB+7, 33]; vR2O = [34, 35]
    vS = PB + 8
    vOMG = 36; vB2 = 44
    vF = [52, 84]; ACC = 116; ACC2 = 180
    sC2 = 39; sFl = 47; sFu = 46; sSig = 48
    stamp(a, 8)
    srd(a, S_W2, 92, 3584 * 2048 * 2)
    srd(a, S_WO, 96, 1024 * 1024 * 2)
    for vD, LD in ((vD1W, 4096), (vD2W, 2048)):
        for j in range(1, 4): a(f"v_add_u32 v{vD[j]}, {(j&1)*32*LD + (j>>1)*128}, v{vD[0]}")
    a(f"s_add_u32 s{sRho}, s{sTD}, s{sTS}")
    a(f"s_mov_b32 s{sN}, 0")
    a(f"v_mov_b32 v{vT1}, 0")
    a(f"v_mov_b32 v{vT2}, s{sE}")
    a(f"v_and_b32 v16, 15, v{vLane}")
    a("v_lshlrev_b32 v16, 2, v16")
    def rdT(vR): return lambda slot: [(vR[slot // 2], (slot % 2) * SB + i * 256) for i in range(4)]
    def rdW(vE, vO): return lambda slot: [((vO if b & 1 else vE)[slot // 2], (slot % 2) * SB + (b >> 1) * 512, (slot % 2) * SB + (b >> 1) * 512 + 2048) for b in range(4)]
    def mf1(fT, fW):
        return [f"v_mfma_f32_16x16x32_bf16 v[{ACC+(i*4+j)*4}:{ACC+(i*4+j)*4+3}], v[{fT(i)}:{fT(i)+3}], v[{fW(j)}:{fW(j)+3}], v[{ACC+(i*4+j)*4}:{ACC+(i*4+j)*4+3}]" for i in range(4) for j in range(4)]
    def mf2(fT, fW):
        return [f"v_mfma_f32_16x16x32_bf16 v[{ACC2+(i*4+j)*4}:{ACC2+(i*4+j)*4+3}], v[{fW(i)}:{fW(i)+3}], v[{fT(j)}:{fT(j)+3}], v[{ACC2+(i*4+j)*4}:{ACC2+(i*4+j)*4+3}]" for j in range(4) for i in range(4)]
    p1 = Part(srdT=S_U, srdW=S_W2, vDT=vD1T, vDW=vD1W, stT=8 * 16384, stW=64 * 4096, rdT=rdT(vR1T), rdW=rdW(vR1E, vR1O), mf=mf1, auxT='sc1')
    p2 = Part(srdT=S_OP, srdW=S_WO, vDT=vD2T, vDW=vD2W, stT=8 * 32768, stW=64 * 2048, rdT=rdT(vR2T), rdW=rdW(vR2E, vR2O), mf=mf2, auxT='sc1')
    if NA % 4: p1.norot = NA & ~3
    core = Core(a, "p3", NS, SB, TB, 4, 4, vF, sW1024, sN, sRho, sKT, sKW, sT1, sT2, sCnt)
    a("s_waitcnt vmcnt(0)")
    a("s_barrier")
    a(f"s_cmp_lg_u32 s{sWave}, 0")
    a("s_cbranch_scc1 P3_nosig")
    a("s_mov_b64 exec, 1")
    a(f"buffer_store_dword v{vT2}, v{vT1}, s[{S_WS}:{S_WS+3}], s{sSig} offen sc1")
    a("s_mov_b64 exec, -1")
    a.label("P3_nosig")
    a(f"s_cmp_ge_u32 s{sWave}, 4")
    a("s_cbranch_scc1 P3_nold0")
    a("s_bitcmp1_b32 s2, 7")
    a("s_cbranch_scc1 P3_wA")
    core.prologue(p2, True, "W")
    a("s_branch P3_nold0")
    a.label("P3_wA")
    core.prologue(p1, True, "W")
    a.label("P3_nold0")
    a(f"s_mov_b32 s{sN}, 0")
    srd(a, S_OUT, 94, 4096)
    a(f"v_lshlrev_b32 v8, 3, v{vS}")
    a(f"v_lshlrev_b32 v12, 1, v{vS}")
    a(f"s_mov_b32 s{sT1}, {G_OFF+4}")
    for j in range(4):
        a(f"buffer_load_dword v{vOMG+2*j}, v8, s[{S_WS}:{S_WS+3}], s{sT1} offen offset:{j*128} sc1")
        a(f"buffer_load_ushort v{vB2+2*j}, v12, s[{S_OUT}:{S_OUT+3}], 0 offen offset:{j*32}")
    srd(a, S_U, sWSp, 448 * 16384, U_OFF)
    srd(a, S_OP, sWSp, 4 * MB, OP_OFF)
    for vD, R16 in ((vD1T, 16384), (vD2T, 32768)):
        for j in range(1, 4): a(f"v_add_u32 v{vD[j]}, {j*2*R16}, v{vD[0]}")
    for vR in (vR1T, vR2T, vR1E, vR2E):
        a(f"v_add_u32 v{vR[1]}, {2*SB}, v{vR[0]}")
    for vE, vO in ((vR1E, vR1O), (vR2E, vR2O)):
        a(f"v_xor_b32 v{vO[0]}, 32, v{vE[0]}")
        a(f"v_xor_b32 v{vO[1]}, 32, v{vE[1]}")
    a(f"v_lshrrev_b32 v{vq}, 4, v{vLane}")
    for i in range(0, 64, 2):
        a(f"v_pk_mul_f32 v[{ACC+i}:{ACC+i+1}], v[{vT1}:{vT1+1}], v[{vT1}:{vT1+1}] op_sel_hi:[0,0]")

    def epi(role, kg):
        tag = f"{role}{kg}"
        stamp(a, 10)
        keep = (0, 1) if kg == 0 else (2, 3)
        send = (2, 3) if kg == 0 else (0, 1)
        a(f"s_lshl_b32 s{sT1}, s{sW1024}, 4")
        a(f"v_lshlrev_b32 v{vT1}, 4, v{vLane}")
        a(f"v_add_u32 v{vT2}, s{sT1}, v{vT1}")
        srd(a, S_OUT, 98, 2048 * 1024 * 2)
        a(f"s_lshl_b32 s{sKT}, s2, 3")
        a(f"s_add_u32 s{sKT}, s{sKT}, s{sWave}")
        a(f"s_lshl_b32 s{sKT}, s{sKT}, 12")
        a(f"s_add_u32 s{sKT}, s{sKT}, {XCH_OFF}")
        a(f"s_xor_b32 s{sKW}, s{sKT}, {128*8*4096}")
        a("s_barrier")
        for n in range(8):
            r = ACC + send[0] * 16 + 4 * n
            a(f"ds_write_b128 v{vT2}, v[{r}:{r+3}] offset:{kg*8192 + n*1024}")
        a("s_waitcnt lgkmcnt(0)")
        a("s_barrier")
        for n in range(8):
            a(f"ds_read_b128 v[{52+4*n}:{55+4*n}], v{vT2} offset:{(1-kg)*8192 + n*1024}")
        K0 = ACC + keep[0] * 16
        jk = (0, 2) if role == 0 else (1, 3)
        js = (1, 3) if role == 0 else (0, 2)
        order = [(ii, j) for j in js for ii in range(2)] + [(ii, j) for j in jk for ii in range(2)]
        a("s_waitcnt lgkmcnt(0)")
        cnt = 0
        for (ii, j) in order:
            n = ii * 4 + j; r = K0 + 4 * n
            for e in (0, 2): a(pk_add(r + e, r + e, 52 + 4 * n + e))
            if role == 0:
                for e in (0, 2): a(pk_mul_b(r + e, r + e, vOMG + 2 * j))
            if j in js:
                a(f"buffer_store_dwordx4 v[{r}:{r+3}], v{vT1}, s[{S_WS}:{S_WS+3}], s{sKT} offen offset:{cnt*1024} sc1")
                cnt += 1
        a(f"v_lshlrev_b32 v{vT2}, 11, v{vS}")
        a(f"v_and_b32 v8, 1, v{vq}")
        a(f"v_lshl_add_u32 v{vT2}, v8, 5, v{vT2}")
        a(f"v_lshrrev_b32 v8, 1, v{vq}")
        a(f"v_lshl_add_u32 v{vT2}, v8, 4, v{vT2}")
        a(f"s_lshl_b32 s{sT1}, s{sTD}, 8")
        a(f"s_bfe_u32 s{sT2}, s{sWave}, 0x10001")
        a(f"s_lshl_b32 s{sT2}, s{sT2}, 7")
        a(f"s_add_u32 s{sT1}, s{sT1}, s{sT2}")
        a(f"s_add_u32 s{sN}, s{sT1}, {kg*64}")
        a(f"s_lshl_b32 s{sT1}, s2, 7")
        a(f"s_add_u32 s{sT1}, s{sT1}, {F_X}")
        a(f"s_xor_b32 s{sT2}, s2, 128")
        a(f"s_lshl_b32 s{sT2}, s{sT2}, 7")
        a(f"s_add_u32 s{sT2}, s{sT2}, {F_X}")
        a("v_mov_b32 v8, 0")
        a(f"v_mov_b32 v9, s{sE}")
        a("s_waitcnt vmcnt(0)")
        a("s_barrier")
        if kg == 0:
            a(f"s_cmp_lg_u32 s{sWave}, 0")
            a(f"s_cbranch_scc1 P3_nf{tag}")
            a("s_mov_b64 exec, 1")
            a(f"buffer_store_dword v9, v8, s[{S_WS}:{S_WS+3}], s{sT1} offen sc1")
            a("s_mov_b64 exec, -1")
            a.label(f"P3_nf{tag}")
        stamp(a, 11)
        poll(a, f"x{tag}", 10, 8, S_WS, f"s{sT2}", sC2)
        for n in range(4):
            a(f"buffer_load_dwordx4 v[{52+4*n}:{55+4*n}], v{vT1}, s[{S_WS}:{S_WS+3}], s{sKW} offen offset:{n*1024} sc1")
        for jn, j in enumerate(jk):
            a(f"s_waitcnt vmcnt({2 if jn == 0 else 1})" if jn == 0 else "s_waitcnt vmcnt(1)")
            o = 84 + 4 * jn
            for ii in range(2):
                r = K0 + 4 * (ii * 4 + j); t = 52 + 4 * (jn * 2 + ii)
                for e in (0, 2): a(pk_add(r + e, r + e, t + e))
                a(f"v_cvt_pk_bf16_f32 v{o+2*ii}, v{r}, v{r+1}")
                a(f"v_cvt_pk_bf16_f32 v{o+2*ii+1}, v{r+2}, v{r+3}")
            a("s_nop 1")
            a(f"v_permlane16_swap_b32 v{o}, v{o+2}")
            a(f"v_permlane16_swap_b32 v{o+1}, v{o+3}")
            a(f"s_add_u32 s{sT1}, s{sN}, {j*16*2048}")
            a(f"buffer_store_dwordx4 v[{o}:{o+3}], v{vT2}, s[{S_OUT}:{S_OUT+3}], s{sT1} offen")
        a("s_branch P3_fin")

    a("s_bitcmp1_b32 s2, 7")
    a("s_cbranch_scc0 P3_B")
    a(f"s_cmp_ge_u32 s{sWave}, 4")
    a("s_cbranch_scc1 P3_A1")
    for kg in range(2):
        if kg:
            a.label("P3_A1")
            (a(f"s_cmp_lg_u32 s{sWave}, 4"), a("s_cbranch_scc1 Lq_depA"), poll(a, "depA", vT2, 16, S_WS, f"s{sFl}", sC2))
        if kg: a("s_waitcnt vmcnt(0)")
        a("s_barrier")
        stamp(a, 9)
        core.prologue(p1, kg == 0, "T")
        core.fs = 0; core.first(p1, kg == 0, vm=0); core.run(p1, NA, kg == 0)
        epi(0, kg)
    a.label("P3_B")
    a(f"s_cmp_ge_u32 s{sWave}, 4")
    a("s_cbranch_scc1 P3_B1")
    for kg in range(2):
        if kg:
            a.label("P3_B1")
            for i in range(0, 64, 2):
                a(f"v_pk_mul_f32 v[{ACC2+i}:{ACC2+i+1}], v[{vT1}:{vT1+1}], v[{vT1}:{vT1+1}] op_sel_hi:[0,0]")
            (a(f"s_cmp_lg_u32 s{sWave}, 4"), a("s_cbranch_scc1 Lq_depB"), poll(a, "depB", vT2, 16, S_WS, f"s{sFl}", sC2))
        if kg: a("s_waitcnt vmcnt(0)")
        a("s_barrier")
        stamp(a, 9)
        core.prologue(p2, kg == 0, "T")
        if kg == 0:
            a("s_waitcnt vmcnt(16)")
            for j in range(4):
                a(f"v_lshlrev_b32 v{vB2+2*j}, 16, v{vB2+2*j}")
                a(f"v_mul_f32 v{vB2+2*j}, v{vB2+2*j}, v{vOMG+2*j}")
            for i in range(4):
                for j in range(4):
                    for e in (0, 2):
                        r = ACC2 + (i * 4 + j) * 4 + e
                        a(f"v_pk_add_f32 v[{r}:{r+1}], v[{vB2+2*j}:{vB2+2*j+1}], v[{vT1}:{vT1+1}] op_sel_hi:[0,0]")
        core.fs = 0; core.first(p2, kg == 0, vm=0)
        hook = None if kg == 0 else (lambda: (a(f"s_cmp_lg_u32 s{sWave}, 4"), a("s_cbranch_scc1 Lq_dep2"), poll(a, "dep2", vT2, 16, S_WS, f"s{sFu}", sC2)))
        sl = core.run(p2, 16, kg == 0, nxt_part=p1, nxt_n0=NA, hook=hook)
        core.run(p1, 56 - NA, kg == 0, slot0=sl)
        a("s_nop 7")
        for i in range(4):
            for j in range(4):
                for e in (0, 2):
                    r = (i * 4 + j) * 4 + e
                    a(f"v_pk_fma_f32 v[{ACC+r}:{ACC+r+1}], v[{ACC+r}:{ACC+r+1}], v[{vOMG+2*j}:{vOMG+2*j+1}], v[{ACC2+r}:{ACC2+r+1}] op_sel_hi:[1,0,1]")
        epi(1, kg)
    a.label("P3_fin")


def phase3w_pre(a):
    sWave, sW1024, sT1, sT2, sA, sB = 28, 29, 34, 35, 32, 33
    vLane, vT1, vT2, vq, vr_, vc = 1, 2, 3, 4, 5, 6
    sTD, sTS, sRole, sN1 = 40, 41, 42, 43
    a(f"s_bfe_u32 s{sTD}, s2, 0x10001")
    a(f"s_lshl_b32 s{sTD}, s{sTD}, 2")
    a(f"s_and_b32 s{sT1}, s37, 3")
    a(f"s_add_u32 s{sTD}, s{sTD}, s{sT1}")
    a(f"s_bfe_u32 s{sTS}, s2, 0x10002")
    a(f"s_lshl_b32 s{sTS}, s{sTS}, 2")
    a(f"s_and_b32 s{sT1}, s38, 3")
    a(f"s_add_u32 s{sTS}, s{sTS}, s{sT1}")
    a(f"s_and_b32 s{sA}, s2, 1")
    a(f"s_mul_i32 s{sT1}, s{sA}, {NA}")
    a(f"s_mul_i32 s{sT2}, s{sA}, {56-NA}")
    a(f"s_add_u32 s{sT2}, s{sT2}, {2*NA}")
    a(f"s_add_u32 s{sB}, s{sA}, 2")
    a("s_bitcmp1_b32 s2, 7")
    a(f"s_cselect_b32 s{sRole}, s{sA}, s{sB}")
    a(f"s_cselect_b32 s{sN1}, s{sT1}, s{sT2}")
    a(f"v_lshlrev_b32 v{vT1}, 4, v{vLane}")
    a(f"s_bfe_u32 s{sT1}, s{sWave}, 0x10001")
    a(f"s_lshl_b32 s{sT1}, s{sT1}, 14")
    a(f"s_and_b32 s{sT2}, s{sWave}, 1")
    a(f"s_lshl_b32 s{sT2}, s{sT2}, 10")
    a(f"s_add_u32 s{sT1}, s{sT1}, s{sT2}")
    a(f"s_lshl_b32 s{sT2}, s{sTD}, 11")
    a(f"s_add_u32 s{sT1}, s{sT1}, s{sT2}")
    a(f"v_add_u32 v{PB}, s{sT1}, v{vT1}")
    a(f"s_lshl_b32 s{sT1}, s{sTS}, 12")
    a(f"s_add_u32 s{sT1}, s{sT1}, s{sW1024}")
    a(f"v_add_u32 v{PB+1}, s{sT1}, v{vT1}")
    a(f"v_lshrrev_b32 v{vT2}, 5, v{vLane}")
    a(f"v_lshlrev_b32 v{vT2}, 6, v{vT2}")
    a(f"v_lshl_add_u32 v{vT2}, v{vc}, 4, v{vT2}")
    a(f"v_and_b32 v{vT1}, 16, v{vLane}")
    a(f"v_lshlrev_b32 v{vT1}, 1, v{vT1}")
    a(f"v_xor_b32 v{vT2}, v{vT1}, v{vT2}")
    a(f"v_bfe_u32 v{vT1}, v{vLane}, 2, 3")
    for n, (LD, sTile, sh) in enumerate(((4096, sTS, 9), (2048, sTD, 8))):
        a(f"v_lshl_add_u32 v{PB+2+n}, v{vT1}, {log2(LD)}, v{vT2}")
        a(f"s_mul_i32 s{sT1}, s{sW1024}, {8*LD//1024}")
        a(f"s_lshl_b32 s{sT2}, s{sTile}, {sh}")
        a(f"s_add_u32 s{sT1}, s{sT1}, s{sT2}")
        a(f"v_add_u32 v{PB+2+n}, s{sT1}, v{PB+2+n}")
    a(f"s_lshr_b32 s{sA}, s{sWave}, 2")
    a(f"v_and_b32 v{PB+8}, 15, v{vLane}")
    a(f"v_lshlrev_b32 v{vT1}, 4, v{PB+8}")
    a(f"v_lshl_add_u32 v{PB+4}, v{vq}, 11, v{vT1}")
    a(f"v_lshl_add_u32 v{PB+4}, s{sA}, 10, v{PB+4}")
    a(f"v_lshl_add_u32 v{PB+5}, v{vq}, 12, v{vT1}")
    a(f"v_add_u32 v{PB+5}, s{sW1024}, v{PB+5}")
    a(f"v_lshrrev_b32 v{vT1}, 1, v{vq}")
    a(f"v_lshlrev_b32 v{vT1}, 10, v{vT1}")
    a(f"v_and_b32 v{vT2}, 1, v{vq}")
    a(f"v_mul_u32_u24 v{vT2}, 288, v{vT2}")
    a(f"v_add_u32 v{vT1}, v{vT2}, v{vT1}")
    a(f"v_lshl_add_u32 v{vT1}, v{vr_}, 6, v{vT1}")
    a(f"v_lshl_add_u32 v{vT1}, v{vc}, 3, v{vT1}")
    a(f"v_lshl_add_u32 v{PB+6}, s{sW1024}, 2, v{vT1}")
    a(f"v_add_u32 v{PB+6}, 8192, v{PB+6}")
    a(f"v_lshl_add_u32 v{PB+7}, s{sA}, 12, v{vT1}")
    a(f"v_add_u32 v{PB+7}, 16384, v{PB+7}")
    a(f"s_lshl_b32 s{sT1}, s{sTS}, 8")
    a(f"s_lshr_b32 s{sT2}, s{sW1024}, 4")
    a(f"s_add_u32 s{sT1}, s{sT1}, s{sT2}")
    a(f"v_add_u32 v{PB+8}, s{sT1}, v{PB+8}")
    a(f"s_lshl_b32 s46, s{sTD}, 7")
    a(f"s_add_u32 s46, s46, {F_U}")
    a(f"s_lshl_b32 s47, s{sTS}, 7")
    a(f"s_add_u32 s47, s47, {F_O}")
    a(f"s_lshl_b32 s48, s37, 7")
    a(f"s_lshl_b32 s{sT1}, s38, 2")
    a(f"s_add_u32 s48, s48, s{sT1}")
    a("s_bitcmp1_b32 s2, 7")
    a(f"s_cselect_b32 s47, s46, s47")
    a(f"s_cselect_b32 s{sT1}, 0, {F_O - F_U}")
    a(f"s_add_u32 s48, s48, s{sT1}")
    a(f"s_add_u32 s48, s48, {F_U}")
    if SENT:
        a(f"s_lshl_b32 s{sT1}, s{sTD}, 3")
        a(f"s_add_u32 s{sT1}, s{sT1}, s{sTS}")
        a(f"s_lshl_b32 s{sT1}, s{sT1}, 2")
        a(f"s_add_u32 s{sT1}, s{sT1}, s{sRole}")
        a(f"s_lshl_b32 s{sT1}, s{sT1}, 16")
        a(f"s_lshl_b32 s{sT2}, s{sWave}, 11")
        a(f"s_add_u32 s{sT1}, s{sT1}, s{sT2}")
        a(f"s_add_u32 s{sT1}, s{sT1}, {XCH_OFF}")
        for k, dst in ((1, 49), (2, 50), (3, 3)):
            a(f"s_add_u32 s{sT2}, s{sRole}, {k}")
            a(f"s_and_b32 s{sT2}, s{sT2}, 3")
            a(f"s_lshl_b32 s{sT2}, s{sT2}, 14")
            a(f"s_add_u32 s{dst}, s{sT1}, s{sT2}")

def xch_clear(a, vA, vD):
    if not (SENT and P3W): return
    a(f"v_lshlrev_b32 v{vA}, 4, v1")
    for n in range(4): a(f"v_mov_b32 v{vD+n}, -1")
    for sr_ in (49, 50, 3):
        for h in range(2):
            a(f"buffer_store_dwordx4 v[{vD}:{vD+3}], v{vA}, s[16:19], s{sr_} offen offset:{h*1024} sc1")

def phase3w(a):
    S_U, S_W2, S_WS, S_OP, S_WO, S_OUT = 8, 12, 16, 20, 24, 56
    sWave, sW1024, sN, sRho, sKT, sKW, sT1, sT2, sCnt = 28, 29, 30, 31, 32, 33, 34, 35, 36
    sTD, sTS, sRole, sN1 = 40, 41, 42, 43
    sWSp = 44
    vLane, vT1, vT2, vq = 1, 2, 3, 4
    NS, SB = 4, 24576
    vD1T = [PB, 9]; vD1W = [PB+2, 13, 14, 15]; vD2T = [PB+1, 17, 18, 19]; vD2W = [PB+3, 21]
    vR1T = [PB+4, 25]; vR1E = [PB+6, 27]; vR1O = [28, 29]; vR2T = [PB+5, 31]; vR2E = [PB+7, 33]; vR2O = [34, 35]
    vS = PB + 8
    vOMG = 36; vB2 = 44
    vF = [52, 84]; ACC = 116; ACC2 = 180
    sC2 = 39; sFl = 47; sFu = 46; sSig = 48
    NB = 56 - NA
    stamp(a, 8)
    srd(a, S_W2, 92, 3584 * 2048 * 2)
    srd(a, S_WO, 96, 1024 * 1024 * 2)
    for vD in (vD1W, vD2W):
        for j in range(1, len(vD)): a(f"v_add_u32 v{vD[j]}, {j*128}, v{vD[0]}")
    a(f"s_add_u32 s{sRho}, s{sTD}, s{sTS}")
    a(f"s_and_b32 s59, s2, 1")
    a(f"s_lshl_b32 s59, s59, 4")
    a("s_bitcmp1_b32 s2, 7")
    a(f"s_cselect_b32 s59, s{sN1}, s59")
    a(f"s_mov_b32 s{sN}, s59")
    a(f"v_mov_b32 v{vT1}, 0")
    a(f"v_mov_b32 v{vT2}, s{sE}")
    rng = [(r_ * NA, (r_ + 1) * NA) for r_ in range(2)] + [(2 * NA + r_ * NB, 2 * NA + (r_ + 1) * NB) for r_ in range(2)]
    lo = [32 * x // 224 for x, _ in rng]; hi = [(32 * y - 1) // 224 for _, y in rng]
    packed = sum((lo[r_] | (hi[r_] << 4)) << (8 * r_) for r_ in range(4))
    a(f"s_lshl_b32 s{sT1}, s{sRole}, 3")
    a(f"s_lshr_b32 s{sT1}, {packed:#x}, s{sT1}")
    a(f"s_bfe_u32 s{sT2}, s{sT1}, 0x40004")
    a(f"s_and_b32 s{sT1}, s{sT1}, 15")
    a(f"v_add_u32 v20, s{sT1}, v{vLane}")
    a(f"v_min_u32 v20, s{sT2}, v20")
    a(f"v_lshl_add_u32 v20, v20, 2, s{sFu}")
    a(f"s_lshl_b32 s{sKT}, s{sTD}, 3")
    a(f"s_add_u32 s{sKT}, s{sKT}, s{sTS}")
    a(f"s_lshl_b32 s{sKT}, s{sKT}, 7")
    a(f"s_add_u32 s{sKT}, s{sKT}, {F_X}")
    a(f"v_and_b32 v22, 3, v{vLane}")
    a(f"v_lshl_add_u32 v22, v22, 2, s{sKT}")
    a(f"v_cmp_gt_u32 vcc, 32, v{vLane}")
    a(f"s_lshl_b32 s{sKW}, s{sRole}, 2")
    a(f"s_add_u32 s{sKW}, s{sKW}, s{sKT}")
    if SENT: a("v_cndmask_b32 v20, v22, v20, vcc")
    a(f"v_and_b32 v16, 7, v{vLane}")
    a(f"s_and_b32 s{sT1}, s2, 1")
    a(f"s_lshl_b32 s{sT1}, s{sT1}, 5")
    a(f"s_add_u32 s{sT1}, s{sT1}, s{sFl}")
    a(f"v_lshl_add_u32 v16, v16, 2, s{sT1}")
    def rdT(vR): return lambda slot: [(vR[slot // 2], (slot % 2) * SB + i * 256) for i in range(4)]
    def rdW(vE, vO): return lambda slot: [((vO if b & 1 else vE)[slot // 2], (slot % 2) * SB + (b >> 1) * 512, (slot % 2) * SB + (b >> 1) * 512 + 2048) for b in range(4)]
    def mf1(fT, fW):
        return [f"v_mfma_f32_16x16x32_bf16 v[{ACC+(i*4+j)*4}:{ACC+(i*4+j)*4+3}], v[{fT(i)}:{fT(i)+3}], v[{fW(j)}:{fW(j)+3}], v[{ACC+(i*4+j)*4}:{ACC+(i*4+j)*4+3}]" for i in range(4) for j in range(4)]
    def mf2(fT, fW):
        return [f"v_mfma_f32_16x16x32_bf16 v[{ACC2+(i*4+j)*4}:{ACC2+(i*4+j)*4+3}], v[{fW(i)}:{fW(i)+3}], v[{fT(j)}:{fT(j)+3}], v[{ACC2+(i*4+j)*4}:{ACC2+(i*4+j)*4+3}]" for j in range(4) for i in range(4)]
    p1 = Part(srdT=S_U, srdW=S_W2, vDT=vD1T, vDW=vD1W, stT=4 * 16384, stW=32 * 4096, rdT=rdT(vR1T), rdW=rdW(vR1E, vR1O), mf=mf1, auxT='sc1', TB=8192)
    p2 = Part(srdT=S_OP, srdW=S_WO, vDT=vD2T, vDW=vD2W, stT=4 * 32768, stW=32 * 2048, rdT=rdT(vR2T), rdW=rdW(vR2E, vR2O), mf=mf2, auxT='sc1', TB=16384)
    core = Core(a, "p3", NS, SB, 0, 4, 4, vF, sW1024, sN, sRho, sKT, sKW, sT1, sT2, sCnt)
    a("s_waitcnt vmcnt(0)")
    a("s_barrier")
    a(f"s_cmp_lg_u32 s{sWave}, 0")
    a("s_cbranch_scc1 P3_nosig")
    a("s_mov_b64 exec, 1")
    a(f"buffer_store_dword v{vT2}, v{vT1}, s[{S_WS}:{S_WS+3}], s{sSig} offen sc1")
    if SENT: a(f"buffer_store_dword v{vT2}, v{vT1}, s[{S_WS}:{S_WS+3}], s{sKW} offen sc1")
    a("s_mov_b64 exec, -1")
    a.label("P3_nosig")
    a(f"s_cmp_ge_u32 s{sWave}, 4")
    a("s_cbranch_scc1 P3_nold0")
    a("s_bitcmp1_b32 s2, 7")
    a("s_cbranch_scc1 P3_wA")
    core.prologue(p2, True, "W")
    a("s_branch P3_nold0")
    a.label("P3_wA")
    core.prologue(p1, True, "W")
    a.label("P3_nold0")
    a(f"s_mov_b32 s{sN}, s59")
    srd(a, S_OUT, 94, 4096)
    a(f"v_lshlrev_b32 v8, 3, v{vS}")
    a(f"v_lshlrev_b32 v12, 1, v{vS}")
    a(f"s_mov_b32 s{sT1}, {G_OFF+4}")
    for j in range(4):
        a(f"buffer_load_dword v{vOMG+2*j}, v8, s[{S_WS}:{S_WS+3}], s{sT1} offen offset:{j*128} sc1")
        a(f"buffer_load_ushort v{vB2+2*j}, v12, s[{S_OUT}:{S_OUT+3}], 0 offen offset:{j*32}")
    srd(a, S_U, sWSp, 448 * 16384, U_OFF)
    srd(a, S_OP, sWSp, 4 * MB, OP_OFF)
    a(f"v_add_u32 v{vD1T[1]}, {2*16384}, v{vD1T[0]}")
    for j in range(1, 4): a(f"v_add_u32 v{vD2T[j]}, {j*32768}, v{vD2T[0]}")
    for vR in (vR1T, vR2T, vR1E, vR2E):
        a(f"v_add_u32 v{vR[1]}, {2*SB}, v{vR[0]}")
    for vE, vO in ((vR1E, vR1O), (vR2E, vR2O)):
        a(f"v_xor_b32 v{vO[0]}, 32, v{vE[0]}")
        a(f"v_xor_b32 v{vO[1]}, 32, v{vE[1]}")
    a(f"v_lshrrev_b32 v{vq}, 4, v{vLane}")
    for i in range(0, 64, 2):
        a(f"v_pk_mul_f32 v[{ACC+i}:{ACC+i+1}], v[{vT1}:{vT1+1}], v[{vT1}:{vT1+1}] op_sel_hi:[0,0]")
    def w4poll(tag, addr):
        a(f"s_cmp_lg_u32 s{sWave}, 4")
        a(f"s_cbranch_scc1 Lq_{tag}")
        poll(a, tag, vT2, addr, S_WS, "0", sC2, vX=[253, 254, 255])
    a("s_bitcmp1_b32 s2, 7")
    a("s_cbranch_scc0 P3_B")
    a(f"s_cmp_ge_u32 s{sWave}, 4")
    a("s_cbranch_scc1 P3_A1")
    for nl in range(2):
        if nl:
            a.label("P3_A1")
            w4poll("depA", 20)
            a("s_waitcnt vmcnt(0)")
        a("s_barrier")
        stamp(a, 9)
        core.prologue(p1, nl == 0, "T")
        core.fs = 0; core.first(p1, nl == 0, vm=0); core.run(p1, NA, nl == 0)
        if nl == 0: a("s_branch P3_Aend")
    a.label("P3_Aend")
    a("s_nop 6")
    for j in range(4):
        for i in range(4):
            for e in (0, 2):
                r = ACC + (i * 4 + j) * 4 + e
                a(pk_mul_b(r, r, vOMG + 2 * j))
    a("s_branch P3_epi")
    a.label("P3_B")
    a("s_waitcnt vmcnt(0)")
    a("s_bitcmp0_b32 s2, 0")
    a(f"s_cselect_b32 s{sT1}, 1.0, 0")
    for j in range(4):
        a(f"v_lshlrev_b32 v{vB2+2*j}, 16, v{vB2+2*j}")
        a(f"v_mul_f32 v{vB2+2*j}, v{vB2+2*j}, v{vOMG+2*j}")
        a(f"v_mul_f32 v{vB2+2*j}, s{sT1}, v{vB2+2*j}")
    for i in range(4):
        for j in range(4):
            for e in (0, 2):
                r = ACC2 + (i * 4 + j) * 4 + e
                a(f"v_pk_add_f32 v[{r}:{r+1}], v[{vB2+2*j}:{vB2+2*j+1}], v[{vT1}:{vT1+1}] op_sel_hi:[0,0]")
    a(f"s_cmp_ge_u32 s{sWave}, 4")
    a("s_cbranch_scc1 P3_B1")
    for nl in range(2):
        if nl:
            a.label("P3_B1")
            w4poll("depB", 16)
        a("s_barrier")
        stamp(a, 9)
        core.prologue(p2, nl == 0, "T")
        core.fs = 0; core.first(p2, nl == 0, vm=0)
        hook = None if nl == 0 else (lambda: w4poll("dep2", 20))
        sl = core.run(p2, 16, nl == 0, nxt_part=p1, nxt_n0=f"s{sN1}", hook=hook)
        core.run(p1, NB, nl == 0, slot0=sl)
        if nl == 0: a("s_branch P3_Bend")
    a.label("P3_Bend")
    a("s_nop 6")
    for j in range(4):
        for i in range(4):
            for e in (0, 2):
                r = (i * 4 + j) * 4 + e
                a(f"v_pk_fma_f32 v[{ACC+r}:{ACC+r+1}], v[{ACC+r}:{ACC+r+1}], v[{vOMG+2*j}:{vOMG+2*j+1}], v[{ACC2+r}:{ACC2+r+1}] op_sel_hi:[1,0,1]")
    a.label("P3_epi")
    stamp(a, 10)
    if SENT:
        a(f"s_lshl_b32 s{sT1}, s{sTD}, 3")
        a(f"s_add_u32 s{sT1}, s{sT1}, s{sTS}")
        a(f"s_lshl_b32 s{sT1}, s{sT1}, 18")
        a(f"s_lshl_b32 s{sT2}, s{sWave}, 11")
        a(f"s_add_u32 s{sT1}, s{sT1}, s{sT2}")
        a(f"s_lshl_b32 s{sKT}, s{sRole}, 14")
        a(f"s_add_u32 s{sKT}, s{sKT}, s{sT1}")
        a(f"s_add_u32 s{sKT}, s{sKT}, {XCH_OFF}")
        a(f"v_lshlrev_b32 v8, 4, v{vLane}")
        for role in range(3):
            a(f"s_cmp_eq_u32 s{sRole}, {role+1}")
            a(f"s_cbranch_scc1 P3_e{role+1}")
        for role in range(4):
            a.label(f"P3_e{role}")
            for j in [(role + k) % 4 for k in (1, 2, 3)]:
                a(f"s_add_u32 s{sT1}, s{sKT}, {j << 16}")
                o = ACC2 + 8 * j
                for i in range(4):
                    r = ACC + (i * 4 + j) * 4
                    a(f"v_cvt_pk_bf16_f32 v{o+2*i}, v{r}, v{r+1}")
                    a(f"v_cvt_pk_bf16_f32 v{o+2*i+1}, v{r+2}, v{r+3}")
                    if i & 1: a(f"buffer_store_dwordx4 v[{o+2*i-2}:{o+2*i+1}], v8, s[{S_WS}:{S_WS+3}], s{sT1} offen offset:{(i>>1)*1024} sc1")
            for i in range(4):
                r = ACC + (i * 4 + role) * 4
                for e in (0, 2): a(f"v_pk_add_f32 v[{52+4*i+e}:{53+4*i+e}], v[{r+e}:{r+e+1}], v[{vT1}:{vT1+1}] op_sel_hi:[1,0]")
            if role < 3: a("s_branch P3_e4")
        a.label("P3_e4")
        stamp(a, 11)
        a(f"s_mov_b32 s{sC2}, 0")
        a.label("P3_rx")
        for k, sr_ in enumerate((49, 50, 3)):
            for i in range(2):
                r = ACC + k * 8 + i * 4
                a(f"buffer_load_dwordx4 v[{r}:{r+3}], v8, s[{S_WS}:{S_WS+3}], s{sr_} offen offset:{i*1024} sc1")
        srd(a, S_OUT, 98, 2048 * 1024 * 2)
        a(f"v_lshl_add_u32 v9, s{sRole}, 4, v{vS}")
        a("v_lshlrev_b32 v9, 11, v9")
        a(f"v_and_b32 v10, 1, v{vq}")
        a("v_lshl_add_u32 v9, v10, 5, v9")
        a(f"v_lshrrev_b32 v10, 1, v{vq}")
        a("v_lshl_add_u32 v9, v10, 4, v9")
        a(f"s_lshl_b32 s{sCnt}, s{sTD}, 8")
        a(f"s_lshr_b32 s{sT2}, s{sWave}, 2")
        a(f"s_lshl_b32 s{sT2}, s{sT2}, 7")
        a(f"s_add_u32 s{sCnt}, s{sCnt}, s{sT2}")
        a(f"s_add_u32 s{sC2}, s{sC2}, 1")
        for k in range(3):
            a(f"s_waitcnt vmcnt({2*(2-k)})")
            r = ACC + 8 * k
            a(f"v_max3_u32 v10, v{r}, v{r+1}, v{r+2}" if k == 0 else f"v_max3_u32 v10, v10, v{r}, v{r+1}")
            rest = list(range(r + 3, r + 8)) if k == 0 else list(range(r + 2, r + 8))
            while len(rest) >= 2:
                a(f"v_max3_u32 v10, v10, v{rest[0]}, v{rest[1]}"); rest = rest[2:]
            if rest: a(f"v_max_u32 v10, v10, v{rest[0]}")
        a("v_cmp_eq_u32 vcc, -1, v10")
        a("s_cbranch_vccz P3_rxok")
        a(f"s_cmp_ge_u32 s{sC2}, 0x4000")
        a("s_cbranch_scc1 P3_rxok")
        a("s_sleep 2")
        a("s_branch P3_rx")
        a.label("P3_rxok")
        for n in range(24):
            r = ACC + n; t = ACC2 + 2 * (n % 8)
            a(f"v_lshlrev_b32 v{t}, 16, v{r}")
            a(f"v_and_b32 v{t+1}, 0xffff0000, v{r}")
            a(pk_add(52 + 2 * (n % 8), 52 + 2 * (n % 8), t))
        for h in range(2):
            o = 84 + 4 * h
            for ii in range(2):
                r = 52 + 4 * (2 * h + ii)
                a(f"v_cvt_pk_bf16_f32 v{o+2*ii}, v{r}, v{r+1}")
                a(f"v_cvt_pk_bf16_f32 v{o+2*ii+1}, v{r+2}, v{r+3}")
        for h in range(2):
            o = 84 + 4 * h
            if h == 1: a("s_nop 0")
            a(f"v_permlane16_swap_b32 v{o}, v{o+2}")
            a(f"v_permlane16_swap_b32 v{o+1}, v{o+3}")
            a(f"buffer_store_dwordx4 v[{o}:{o+3}], v9, s[{S_OUT}:{S_OUT+3}], s{sCnt} offen offset:{h*64} {OUTAUX}")
        return
    a(f"s_lshl_b32 s{sT1}, s{sTD}, 3")
    a(f"s_add_u32 s{sT1}, s{sT1}, s{sTS}")
    a(f"s_lshl_b32 s{sN}, s{sT1}, 7")
    a(f"s_add_u32 s{sN}, s{sN}, {F_X}")
    a(f"s_lshl_b32 s{sT1}, s{sT1}, 19")
    a(f"s_lshl_b32 s{sT2}, s{sWave}, 12")
    a(f"s_add_u32 s{sT1}, s{sT1}, s{sT2}")
    a(f"s_add_u32 s{sT1}, s{sT1}, {XCH_OFF}")
    a(f"s_lshl_b32 s{sKT}, s{sRole}, 15")
    a(f"s_add_u32 s{sKT}, s{sKT}, s{sT1}")
    a(f"s_lshl_b32 s{sKW}, s{sRole}, 17")
    a(f"s_add_u32 s{sKW}, s{sKW}, s{sT1}")
    a(f"v_lshlrev_b32 v8, 4, v{vLane}")
    for role in range(4):
        a(f"s_cmp_eq_u32 s{sRole}, {role}")
        a(f"s_cbranch_scc1 P3_e{role}")
    for role in range(4):
        a.label(f"P3_e{role}")
        others = [(role + k) % 4 for k in (1, 2, 3)]
        for j in others:
            a(f"s_add_u32 s{sT1}, s{sKT}, {j << 17}")
            if XBF:
                o = ACC2 + 8 * j
                for i in range(4):
                    r = ACC + (i * 4 + j) * 4
                    a(f"v_cvt_pk_bf16_f32 v{o+2*i}, v{r}, v{r+1}")
                    a(f"v_cvt_pk_bf16_f32 v{o+2*i+1}, v{r+2}, v{r+3}")
                    if i & 1: a(f"buffer_store_dwordx4 v[{o+2*i-2}:{o+2*i+1}], v8, s[{S_WS}:{S_WS+3}], s{sT1} offen offset:{(i>>1)*1024} sc1")
                continue
            for i in range(4):
                r = ACC + (i * 4 + j) * 4
                a(f"buffer_store_dwordx4 v[{r}:{r+3}], v8, s[{S_WS}:{S_WS+3}], s{sT1} offen offset:{i*1024} sc1")
        for i in range(4):
            r = ACC + (i * 4 + role) * 4
            for e in (0, 2): a(f"v_pk_add_f32 v[{52+4*i+e}:{53+4*i+e}], v[{r+e}:{r+e+1}], v[{vT1}:{vT1+1}] op_sel_hi:[1,0]")
        if role < 3: a("s_branch P3_e4")
    a.label("P3_e4")
    srd(a, S_OUT, 98, 2048 * 1024 * 2)
    a(f"v_lshl_add_u32 v9, s{sRole}, 4, v{vS}")
    a("v_lshlrev_b32 v9, 11, v9")
    a(f"v_and_b32 v10, 1, v{vq}")
    a("v_lshl_add_u32 v9, v10, 5, v9")
    a(f"v_lshrrev_b32 v10, 1, v{vq}")
    a("v_lshl_add_u32 v9, v10, 4, v9")
    a(f"s_lshl_b32 s{sCnt}, s{sTD}, 8")
    a(f"s_lshr_b32 s{sT2}, s{sWave}, 2")
    a(f"s_lshl_b32 s{sT2}, s{sT2}, 7")
    a(f"s_add_u32 s{sCnt}, s{sCnt}, s{sT2}")
    a(f"v_mov_b32 v{vT2}, s{sE}")
    a(f"v_and_b32 v16, 3, v{vLane}")
    a("v_lshlrev_b32 v16, 2, v16")
    a(f"s_lshl_b32 s{sT2}, s{sRole}, 2")
    a(f"s_add_u32 s{sT2}, s{sT2}, s{sN}")
    for k in (1, 2, 3):
        a(f"s_add_u32 s{sT1}, s{sRole}, {k}")
        a(f"s_and_b32 s{sT1}, s{sT1}, 3")
        a(f"s_lshl_b32 s{sT1}, s{sT1}, 15")
        a(f"s_add_u32 s{8+k}, s{sT1}, s{sKW}")
    a("s_waitcnt vmcnt(0)")
    a("s_barrier")
    a(f"s_cmp_lg_u32 s{sWave}, 0")
    a("s_cbranch_scc1 P3_nf")
    a("s_mov_b64 exec, 1")
    a(f"buffer_store_dword v{vT2}, v{vT1}, s[{S_WS}:{S_WS+3}], s{sT2} offen sc1")
    a("s_mov_b64 exec, -1")
    a.label("P3_nf")
    stamp(a, 11)
    poll(a, "x", 10, 16, S_WS, f"s{sN}", sC2, vX=[253, 254, 255])
    nld = 2 if XBF else 4
    for k in (1, 2, 3):
        for i in range(nld):
            r = ACC + ((k - 1) * 4 + i) * 4
            a(f"buffer_load_dwordx4 v[{r}:{r+3}], v8, s[{S_WS}:{S_WS+3}], s{8+k} offen offset:{i*1024} sc1")
    for k in (1, 2, 3):
        a(f"s_waitcnt vmcnt({nld*(3-k)})")
        if XBF:
            for n in range(8):
                r = ACC + (k - 1) * 16 + n
                a(f"v_lshlrev_b32 v{ACC2+2*n}, 16, v{r}")
                a(f"v_and_b32 v{ACC2+2*n+1}, 0xffff0000, v{r}")
                a(pk_add(52 + 2 * n, 52 + 2 * n, ACC2 + 2 * n))
            continue
        for i in range(4):
            r = ACC + ((k - 1) * 4 + i) * 4
            for e in (0, 2): a(pk_add(52 + 4 * i + e, 52 + 4 * i + e, r + e))
    for h in range(2):
        o = 84 + 4 * h
        for ii in range(2):
            r = 52 + 4 * (2 * h + ii)
            a(f"v_cvt_pk_bf16_f32 v{o+2*ii}, v{r}, v{r+1}")
            a(f"v_cvt_pk_bf16_f32 v{o+2*ii+1}, v{r+2}, v{r+3}")
    for h in range(2):
        o = 84 + 4 * h
        if h == 1: a("s_nop 0")
        a(f"v_permlane16_swap_b32 v{o}, v{o+2}")
        a(f"v_permlane16_swap_b32 v{o+1}, v{o+3}")
        a(f"buffer_store_dwordx4 v[{o}:{o+3}], v9, s[{S_OUT}:{S_OUT+3}], s{sCnt} offen offset:{h*64} {OUTAUX}")

def gen_k1(a):
    name = NAME + "_kernel"
    kernel_header(a, name)
    S_T, S_W, S_WS, S_AUX = 8, 12, 16, 24
    sWave, sW1024, sN, sRho, sKT, sKW, sT1, sT2, sCnt, sTT, sTW = 28, 29, 30, 31, 32, 33, 34, 35, 36, 37, 38
    sWSp = 44
    ST = 48
    vLane, vT1, vT2, vq, vr_, vc = 1, 2, 3, 4, 5, 6
    a("s_cmp_ge_u32 s2, 256")
    a("s_cbranch_scc1 L1_end")
    if SWAPQG: a("s_xor_b32 s2, s2, 128")
    a(f"s_load_dwordx2 s[{sWSp}:{sWSp+1}], s[0:1], {A_WS}")
    a(f"s_load_dwordx4 s[4:7], s[0:1], {A_X}")
    a(f"s_load_dwordx2 s[20:21], s[0:1], {A_WPHI}")
    a(f"s_load_dwordx4 s[40:43], s[0:1], {A_W1}")
    if FUSE:
        a(f"s_load_dwordx4 s[92:95], s[0:1], {A_W2}")
        a(f"s_load_dwordx2 s[96:97], s[0:1], {A_WO}")
        a(f"s_load_dwordx2 s[98:99], s[0:1], {A_OUT}")
        a(f"s_load_dwordx2 s[22:23], s[0:1], {A_DBG}")
        a(f"s_load_dwordx2 s[100:101], s[0:1], {A_GW}")
    stamp(a, 0)
    stamp_cyc(a, CYC)
    a(f"v_lshrrev_b32 v{vT1}, 6, v0")
    a(f"v_and_b32 v{vLane}, 63, v0")
    a(f"v_readfirstlane_b32 s{sWave}, v{vT1}")
    lane_bits(a, vLane, vq, vr_, vc)
    a(f"s_and_b32 s{sT1}, s2, 7")
    a(f"s_lshr_b32 s{sT2}, s2, 3")
    a(f"s_and_b32 s{sTT}, s{sT1}, 1")
    a(f"s_lshl_b32 s{sTT}, s{sTT}, 2")
    a(f"s_and_b32 s3, s{sT2}, 3")
    a(f"s_add_u32 s{sTT}, s{sTT}, s3")
    a(f"s_lshr_b32 s{sTW}, s{sT1}, 1")
    a(f"s_lshl_b32 s{sTW}, s{sTW}, 2")
    a(f"s_bfe_u32 s{sRho}, s{sT2}, 0x20002")
    a(f"s_add_u32 s{sTW}, s{sTW}, s{sRho}")
    a(f"s_add_u32 s{sRho}, s{sRho}, s3")
    a(f"s_and_b32 s{sW1024}, s{sWave}, 3")
    a(f"s_lshl_b32 s{sW1024}, s{sW1024}, 10")
    a(f"s_mov_b32 s{sN}, 0")
    if PRIO:
        a(f"s_cmp_ge_u32 s{sWave}, 4")
        a("s_cbranch_scc1 L1_p0" if PRIO == 1 else "s_cbranch_scc0 L1_p0")
        a("s_setprio 1")
        a.label("L1_p0")
    if PF_CODE:
        a(f"s_cmp_lg_u32 s{sWave}, 7")
        a("s_cbranch_scc1 L1_npc")
        a("s_getpc_b64 s[88:89]")
        a.label("L1_pc")
        a(f"v_lshlrev_b32 v8, 7, v{vLane}")
        a("v_lshl_add_u32 v8, s3, 14, v8")
        a("v_add_u32 v9, 8192, v8")
        a("v_min_u32 v8, L1_end-L1_pc, v8")
        a("v_min_u32 v9, L1_end-L1_pc, v9")
        a("global_load_dword v10, v8, s[88:89]")
        a("global_load_dword v10, v9, s[88:89]")
        a.label("L1_npc")
    a(f"s_cmp_ge_u32 s{sT2}, 16")
    a("s_waitcnt lgkmcnt(0)")
    srd(a, S_DBG, 22, 256)
    a("s_cbranch_scc1 L1_g1")

    NS, TB, WB = 4, 16384, 12288
    SB = TB + WB
    WPHI = NS * SB
    MT, MW = 4, 6
    vDT = [8, 9, 10, 11]; vDW = [12, 13, 14]
    vRT = [16, 17]; vRE = [18, 19]; vRO = [20, 21]
    vF = [24, 64]; ACC = 104
    srd(a, S_T, 4, 2048 * 1024 * 2)
    srd(a, S_W, 6, 1024 * 3072 * 2)
    srd(a, S_AUX, 20, 65536)
    srd(a, S_WS, sWSp, WS_BYTES)
    a(f"v_lshrrev_b32 v{vT1}, 2, v{vLane}")
    a(f"v_lshlrev_b32 v{vT1}, 11, v{vT1}")
    a(f"v_lshl_add_u32 v{vT1}, v{vc}, 4, v{vT1}")
    a(f"v_and_b32 v{vT2}, 32, v{vLane}")
    a(f"v_xor_b32 v{vT1}, v{vT2}, v{vT1}")
    a(f"s_lshl_b32 s{sT1}, s{sTT}, 19")
    a(f"s_lshl_b32 s{sT2}, s{sWave}, 15")
    a(f"s_add_u32 s{sT1}, s{sT1}, s{sT2}")
    for j, v in enumerate(vDT):
        a(f"s_add_u32 s{sT2}, s{sT1}, {j*64*2048}")
        a(f"v_add_u32 v{v}, s{sT2}, v{vT1}")
    a(f"v_bfe_u32 v{vT1}, v{vLane}, 2, 3")
    a(f"v_mul_u32_u24 v{vT1}, 6144, v{vT1}")
    a(f"v_lshrrev_b32 v{vT2}, 5, v{vLane}")
    a(f"v_lshl_add_u32 v{vT1}, v{vT2}, 6, v{vT1}")
    a(f"v_lshl_add_u32 v{vT1}, v{vc}, 4, v{vT1}")
    a(f"s_and_b32 s{sT1}, s{sWave}, 1")
    a(f"s_lshl_b32 s{sT1}, s{sT1}, 5")
    a(f"v_xor_b32 v{vT1}, s{sT1}, v{vT1}")
    a(f"s_mul_i32 s{sT1}, s{sWave}, {8*6144}")
    a(f"s_lshl_b32 s{sT2}, s{sTW}, 7")
    a(f"s_add_u32 s{sT1}, s{sT1}, s{sT2}")
    for j, v in enumerate(vDW):
        a(f"s_add_u32 s{sT2}, s{sT1}, {j*2048}")
        a(f"v_add_u32 v{v}, s{sT2}, v{vT1}")
    def q_rdT(slot): return [(vRT[slot // 2], (slot % 2) * SB + i * 1024) for i in range(MT)]
    def q_rdW(slot): return [((vRO if b & 1 else vRE)[slot // 2], (slot % 2) * SB + (b >> 1) * 4096, (slot % 2) * SB + (b >> 1) * 4096 + 256) for b in range(MW)]
    def q_mf(fT, fW):
        m = []
        for i in range(MT):
            for j in range(MW):
                d = ACC + (i * MW + j) * 4
                A, B = (fW(j), fT(i)) if j < 4 else (fT(i), fW(j))
                m.append(f"v_mfma_f32_16x16x32_bf16 v[{d}:{d+3}], v[{A}:{A+3}], v[{B}:{B+3}], v[{d}:{d+3}]")
        return m
    pq = Part(srdT=S_T, srdW=S_W, vDT=vDT, vDW=vDW, stT=64, stW=32 * 6144, rdT=q_rdT, rdW=q_rdW, mf=q_mf)
    core = Core(a, "q", NS, SB, TB, MT, MW, vF, sW1024, sN, sRho, sKT, sKW, sT1, sT2, sCnt)
    a(f"s_cmp_ge_u32 s{sWave}, 4")
    a("s_cbranch_scc1 L1q_nold0")
    a(f"v_lshlrev_b32 v{vT1}, 4, v{vLane}")
    a(f"s_lshl_b32 s{sT1}, s{sTW}, 12")
    a(f"s_add_u32 s{sT1}, s{sT1}, s{sW1024}")
    a(f"s_add_u32 m0, s{sW1024}, {WPHI}")
    a("s_nop 0")
    a(f"buffer_load_dwordx4 v{vT1}, s[{S_AUX}:{S_AUX+3}], s{sT1} offen lds")
    core.prologue(pq, True)
    a.label("L1q_nold0")
    (phase3w_pre if P3W else phase3_pre)(a)
    a(f"v_and_b32 v{vT1}, 15, v{vLane}")
    a(f"v_lshlrev_b32 v{vT1}, 6, v{vT1}")
    a(f"v_lshl_add_u32 v{vT1}, v{vq}, 4, v{vT1}")
    a(f"v_and_b32 v{vT2}, 8, v{vLane}")
    a(f"v_lshlrev_b32 v{vT2}, 2, v{vT2}")
    a(f"v_xor_b32 v{vT1}, v{vT2}, v{vT1}")
    a(f"s_lshr_b32 s{sT1}, s{sWave}, 1")
    a(f"s_lshl_b32 s{sT1}, s{sT1}, 12")
    a(f"v_add_u32 v{vRT[0]}, s{sT1}, v{vT1}")
    a(f"v_add_u32 v{vRT[1]}, {2*SB}, v{vRT[0]}")
    a(f"v_lshlrev_b32 v{vT1}, 10, v{vq}")
    a(f"v_lshl_add_u32 v{vT1}, v{vr_}, 6, v{vT1}")
    a(f"v_and_b32 v{vT2}, 1, v{vq}")
    a(f"v_lshl_add_u32 v{vT1}, v{vT2}, 5, v{vT1}")
    a(f"v_lshl_add_u32 v{vT1}, v{vc}, 3, v{vT1}")
    a(f"s_and_b32 s{sT1}, s{sWave}, 1")
    a(f"s_lshl_b32 s{sT1}, s{sT1}, 9")
    a(f"s_add_u32 s{sT1}, s{sT1}, {TB}")
    a(f"v_add_u32 v{vRE[0]}, s{sT1}, v{vT1}")
    a(f"v_add_u32 v{vRE[1]}, {2*SB}, v{vRE[0]}")
    a(f"v_xor_b32 v{vRO[0]}, 32, v{vRE[0]}")
    a(f"v_xor_b32 v{vRO[1]}, 32, v{vRE[1]}")
    for i in range(MT * MW * 4):
        a(f"v_mov_b32 v{ACC+i}, 0")
    a(f"s_cmp_ge_u32 s{sWave}, 4")
    a("s_cbranch_scc1 L1q_nold")
    def q_hook():
        a(f"s_cmp_lg_u32 s{sWave}, 4")
        a("s_cbranch_scc1 L1q_h")
        a(f"v_lshlrev_b32 v8, 3, v{vLane}")
        a("v_mov_b32 v9, 0")
        a("s_and_b32 s39, s2, 7")
        a("s_lshl_b32 s39, s39, 9")
        a(f"s_add_u32 s39, s39, {F_LN}")
        a(f"buffer_load_dword v7, v9, s[{S_DBG}:{S_DBG+3}], 0 offen sc1")
        a(f"buffer_load_dwordx2 v[10:11], v8, s[{S_WS}:{S_WS+3}], s39 offen sc1")
        a.label("L1q_h")
    def q_check(tag):
        a(f"s_cmp_lg_u32 s{sWave}, 4")
        a("s_cbranch_scc1 L1q_epi")
        a("s_waitcnt vmcnt(0)")
        poll_check(a, 7, target="nz")
        a(f"s_cbranch_vccz Lq_e{tag}")
        poll(a, "e" + tag, 7, 9, S_DBG, "0", sT1, target="nz")
        a(f"v_readfirstlane_b32 s{sE}, v7")
        a("s_nop 1")
        poll_check(a, 10, wide=True)
        a(f"s_cbranch_vccz Lq_{tag}")
        poll(a, tag, 10, 8, S_WS, "s39", sT1, wide=True)
        a(f"v_mov_b32 v9, {WPHI+4096}")
        a("ds_write_b32 v9, v7")
        a("s_waitcnt lgkmcnt(0)")
    core.fs = 0; core.first(pq, True); core.run(pq, 32, True)
    a("s_branch L1q_epi")
    a.label("L1q_nold")
    core.fs = 0; core.first(pq, False)
    core.run(pq, 32, False, hook=q_hook)
    q_check("lnq")
    a.label("L1q_epi")
    stamp(a, 1)
    stamp_cyc(a, CYC + 2)
    a("s_barrier")
    stamp(a, 2)
    a(f"v_mov_b32 v7, {WPHI+4096}")
    a("ds_read_b32 v7, v7")
    vPhiA = 8
    vAdr, vAdr2, vOA, vZ = 16, 17, 18, 19
    vG = 20
    PHQ = 200
    PITCH = 136
    AREA = 64 * PITCH
    sHead, sL = sRho, sN
    def Dt(t): return ACC + (t // 4) * 24 + 8 + (t % 4) * 4
    a(f"v_lshl_add_u32 v{vT1}, v{vq}, 2, v{vr_}")
    a(f"v_lshlrev_b32 v{vT2}, 6, v{vT1}")
    a(f"v_lshl_add_u32 v{vT2}, v{vc}, 3, v{vT2}")
    a(f"s_and_b32 s{sT1}, s{sWave}, 1")
    a(f"s_lshl_b32 s{sT2}, s{sT1}, 11")
    a(f"s_add_u32 s{sT2}, s{sT2}, {WPHI}")
    a(f"v_add_u32 v{vT2}, s{sT2}, v{vT2}")
    for fb in range(2):
        a(f"ds_read_b64_tr_b16 v[{vPhiA+4*fb}:{vPhiA+4*fb+1}], v{vT2} offset:{fb*32}")
        a(f"ds_read_b64_tr_b16 v[{vPhiA+4*fb+2}:{vPhiA+4*fb+3}], v{vT2} offset:{fb*32+1024}")
    a(f"s_mul_i32 s{sT2}, s{sT1}, {AREA}")
    a(f"s_lshr_b32 s{sKW}, s{sWave}, 1")
    a(f"s_lshl_b32 s{sKW}, s{sKW}, 5")
    a(f"s_add_u32 s{sT2}, s{sT2}, s{sKW}")
    a(f"v_mul_u32_u24 v{vAdr2}, {PITCH}, v{vT1}")
    a(f"v_lshl_add_u32 v{vAdr2}, v{vc}, 3, v{vAdr2}")
    a(f"v_add_u32 v{vAdr2}, s{sT2}, v{vAdr2}")
    a(f"s_mul_i32 s{sT2}, s{sWave}, {AREA}")
    a(f"v_and_b32 v{vT1}, 15, v{vLane}")
    a(f"v_mul_u32_u24 v{vAdr}, {PITCH}, v{vT1}")
    a(f"v_lshl_add_u32 v{vAdr}, v{vq}, 3, v{vAdr}")
    a(f"v_add_u32 v{vAdr}, s{sT2}, v{vAdr}")
    a(f"s_lshl_b32 s{sHead}, s{sTW}, 1")
    a(f"s_add_u32 s{sHead}, s{sHead}, s{sT1}")
    a(f"s_lshl_b32 s{sKW}, s{sTT}, 2")
    a(f"s_lshr_b32 s{sT2}, s{sWave}, 1")
    a(f"s_add_u32 s{sKW}, s{sKW}, s{sT2}")
    a(f"v_lshlrev_b32 v{vOA}, 3, v{vT1}")
    a(f"s_lshl_b32 s{sT2}, s{sKW}, 9")
    a(f"s_add_u32 s{sT2}, s{sT2}, {G_OFF}")
    for i in range(4):
        a(f"buffer_load_dword v{vG+i}, v{vOA}, s[{S_WS}:{S_WS+3}], s{sT2} offen offset:{i*128} sc1")
    a(f"v_lshlrev_b32 v{vOA}, 15, v{vq}")
    a(f"v_lshl_add_u32 v{vOA}, v{vT1}, 4, v{vOA}")
    a(f"s_lshl_b32 s{sKW}, s{sKW}, 10")
    a(f"s_lshl_b32 s{sT2}, s{sHead}, 17")
    a(f"s_add_u32 s{sKW}, s{sKW}, s{sT2}")
    a(f"s_add_u32 s{sKW}, s{sKW}, {OP_OFF}")
    a(f"s_mov_b32 s{sL}, {L2E}")
    a(f"v_mov_b32 v{vZ}, 0")
    xch_clear(a, 232, 236)
    if PF_W2:
        srd(a, S_T, 92, 3584 * 2048 * 2)
        srd(a, S_W, 96, 1024 * 1024 * 2)
        a(f"v_lshlrev_b32 v232, 7, v{vLane}")
        a(f"v_lshl_add_u32 v232, s{sWave}, 13, v232")
        a(f"v_lshl_add_u32 v232, s2, 16, v232")
        a(f"v_add_u32 v233, {8*MB}, v232")
        a(f"buffer_load_dword v234, v232, s[{S_T}:{S_T+3}], 0 offen")
    def red4x2(r1, op1, r2, op2, post=None):
        def seq(r, op):
            A, B, C, D = r, r + 2, r + 4, r + 6
            return [[f"v_permlane32_swap_b32 v{A}, v{B}", f"v_permlane32_swap_b32 v{C}, v{D}"],
                    [f"{op} v{A}, v{A}, v{B}", f"{op} v{C}, v{C}, v{D}"],
                    [f"v_permlane16_swap_b32 v{A}, v{C}"],
                    [f"{op} v{A}, v{A}, v{C}"],
                    post(A) if post else [],
                    [f"v_mov_b32 v{C}, v{A}"],
                    [f"v_permlane16_swap_b32 v{A}, v{C}"],
                    [f"v_mov_b32 v{B}, v{A}", f"v_mov_b32 v{D}, v{C}"],
                    [f"v_permlane32_swap_b32 v{A}, v{B}", f"v_permlane32_swap_b32 v{C}, v{D}"]]
        A, B = seq(r1, op1), seq(r2, op2)
        a("s_nop 1")
        for n, (x, y) in enumerate(zip(A, B)):
            for l in x: a(l)
            for l in y: a(l)
            if n in (1, 4, 5): a("s_nop 0")
    def softmax(X, mid=None):
        for i in range(4):
            for h in range(2):
                s0 = ACC + (i * MW + 2 * X + h) * 4
                a(f"v_cvt_pk_bf16_f32 v{24+4*i+2*h}, v{s0}, v{s0+1}")
                a(f"v_cvt_pk_bf16_f32 v{24+4*i+2*h+1}, v{s0+2}, v{s0+3}")
        if X == 1:
            a("s_waitcnt lgkmcnt(0)")
            a(f"v_readfirstlane_b32 s{sE}, v7")
        a("s_nop 1")
        for i in range(4):
            for fb in range(2):
                d = 40 + 8 * i + 4 * fb
                a(f"v_mfma_f32_16x16x32_bf16 v[{d}:{d+3}], v[{vPhiA+4*fb}:{vPhiA+4*fb+3}], v[{24+4*i}:{27+4*i}], 0")
        a("s_nop 3")
        for i in range(4):
            p = 40 + 8 * i
            if i == 3: a("s_nop 0")
            for (op3, op2, dst) in (("v_max3_f32", "v_max_f32", 72 + 2 * i), ("v_min3_f32", "v_min_f32", 80 + 2 * i)):
                a(f"{op3} v{dst}, v{p}, v{p+1}, v{p+2}")
                a(f"{op3} v{dst}, v{dst}, v{p+3}, v{p+4}")
                a(f"{op3} v{dst}, v{dst}, v{p+5}, v{p+6}")
                a(f"{op2} v{dst}, v{dst}, v{p+7}")
        red4x2(72, "v_max_f32", 80, "v_min_f32", post=lambda r: [f"v_mul_f32 v{r}, s{sL}, v{r}"])
        for i in range(4):
            p = 40 + 8 * i; e = ACC + (i * MW + 2 * X) * 4
            for n in range(0, 8, 2):
                a(pk_fma_sL(e + n, p + n, sL, 72 + 2 * i, 0, 1))
                a(pk_fma_sL(p + n, p + n, sL, 80 + 2 * i, 1, 0))
                for z in (e + n, e + n + 1, p + n, p + n + 1): a(f"v_exp_f32 v{z}, v{z}")
                if n == 4:
                    a(pk_add(24, e, e + 2)); a(pk_add(26, p, p + 2))
                if n == 6:
                    a(pk_add(24, 24, e + 4)); a(pk_add(26, 26, p + 4))
            a(pk_add(24, 24, e + 6)); a(pk_add(26, 26, p + 6))
            a(f"v_add_f32 v{72+2*i}, v24, v25")
            a(f"v_add_f32 v{80+2*i}, v26, v27")
            if mid and i == 1: mid()
        if X == 0 and KVSPLIT:
            a(f"buffer_load_dword v{vT2}, v{vZ}, s[{S_WS}:{S_WS+3}], s{sT1} offen sc1")
        red4x2(72, "v_add_f32", 80, "v_add_f32", post=lambda r: [f"v_rcp_f32 v{r}, v{r}"])
        for i in range(4):
            p = 40 + 8 * i; e = ACC + (i * MW + 2 * X) * 4
            for sg, (src, rs) in enumerate(((e, 72 + 2 * i), (p, 80 + 2 * i))):
                for n in range(0, 8, 2):
                    a(pk_mul_b(src + n, src + n, rs))
                o = (88 + 8 * (i % 2) + 4 * sg) if X == 1 else PHQ + (i * 2 + sg) * 4
                for n in range(4):
                    a(f"v_cvt_pk_bf16_f32 v{o+n}, v{src+2*n}, v{src+2*n+1}")
                if X == 1:
                    for fb in range(2):
                        a(f"ds_write_b64 v{vAdr}, v[{o+2*fb}:{o+2*fb+1}] offset:{i*16*PITCH + sg*64 + fb*32}")
    softmax(1)
    stamp(a, 3)
    VAREA = 8 * AREA
    a(f"s_lshl_b32 s{sT2}, s{sWave}, 12")
    a(f"s_add_u32 s{sT2}, s{sT2}, {VAREA}")
    a(f"v_lshlrev_b32 v{vT1}, 4, v{vLane}")
    a(f"v_add_u32 v{vAdr}, s{sT2}, v{vT1}")
    for I in range(2):
        for db in range(2):
            o = 56 + 8 * I + 4 * db
            for h in range(2):
                s0 = ACC + ((2 * I + h) * MW + 4 + db) * 4
                a(f"v_cvt_pk_bf16_f32 v{o+2*h}, v{s0}, v{s0+1}")
                a(f"v_cvt_pk_bf16_f32 v{o+2*h+1}, v{s0+2}, v{s0+3}")
            a(f"ds_write_b128 v{vAdr}, v[{o}:{o+3}] offset:{(I*2+db)*1024}")
    for n in range(4): a(f"v_mov_b32 v{PHQ+n}, 0x3f803f80")
    a(f"s_and_b32 s{sT1}, s{sWave}, 1")
    a(f"s_lshl_b32 s{sT2}, s{sT1}, 12")
    a(f"s_add_u32 s{sT2}, s{sT2}, {VAREA}")
    a(f"v_add_u32 v{vAdr}, s{sT2}, v{vT1}")
    a(f"v_lshlrev_b32 v{vT2}, 2, v{vLane}")
    a(f"s_mul_i32 s{sKT}, s{sHead}, 12288")
    a(f"s_add_u32 s{sKT}, s{sKT}, {KV_OFF}")
    a(f"s_lshr_b32 s{sT2}, s{sWave}, 1")
    a(f"s_lshl_b32 s{sT1}, s{sT2}, 11")
    a(f"s_add_u32 s{sT1}, s{sT1}, s{sKT}")
    a(f"s_lshl_b32 s{sT2}, s{sT2}, 6")
    a(f"s_add_u32 s{sT2}, s{sT2}, s{sKT}")
    a(f"s_add_u32 s{sT2}, s{sT2}, 8192")
    a("s_waitcnt lgkmcnt(0)")
    a("s_barrier")
    stamp(a, 4)
    a("s_waitcnt lgkmcnt(0)") if STAMPS else None
    def VF(n, db): return Dt((n * 2 + db) % 12) if False else ACC + ((n * 2 + db) // 4) * 24 + 8 + ((n * 2 + db) % 4) * 4
    for n in range(8):
        o = 24 + 4 * n
        off = (n >> 1) * 2 * AREA + (n & 1) * 32 * PITCH
        a(f"ds_read_b64_tr_b16 v[{o}:{o+1}], v{vAdr2} offset:{off}")
        a(f"ds_read_b64_tr_b16 v[{o+2}:{o+3}], v{vAdr2} offset:{off + 16*PITCH}")
        for db in range(2):
            a(f"ds_read_b128 v[{VF(n,db)}:{VF(n,db)+3}], v{vAdr} offset:{(n>>1)*8192 + ((n&1)*2+db)*1024}")
        if n == 3 or n == 7:
            for m in range(n - 3, n + 1):
                a(f"s_waitcnt lgkmcnt({(n-m)*4})")
                for db in range(3):
                    d = 88 + 4 * db
                    A = VF(m, db) if db < 2 else PHQ
                    c = f"v[{d}:{d+3}]" if m else "0"
                    a(f"v_mfma_f32_16x16x32_bf16 v[{d}:{d+3}], v[{A}:{A+3}], v[{24+4*m}:{27+4*m}], {c}")
    a("s_nop 6")
    for n in range(8):
        a(f"buffer_atomic_add_f32 v{88+n}, v{vT2}, s[{S_WS}:{S_WS+3}], s{sT1} offen offset:{n*256}")
    a("s_mov_b64 exec, 0xffff")
    a(f"buffer_atomic_add_f32 v96, v{vT2}, s[{S_WS}:{S_WS+3}], s{sT2} offen")
    a("s_mov_b64 exec, -1")
    stamp(a, 5)
    a(f"s_lshl_b32 s{sT1}, s{sTW}, 7")
    a(f"s_add_u32 s{sT1}, s{sT1}, {F_KV}")
    def signal():
        a("s_waitcnt vmcnt(0)")
        a("s_barrier")
        a(f"s_cmp_lg_u32 s{sWave}, 0")
        a("s_cbranch_scc1 L1q_nosig")
        a(f"v_mov_b32 v{vT2}, s{sE}")
        a(f"s_lshl_b32 s{sT2}, s{sTT}, 2")
        a(f"s_add_u32 s{sT2}, s{sT2}, s{sT1}")
        a("s_mov_b64 exec, 1")
        a(f"buffer_store_dword v{vT2}, v{vZ}, s[{S_WS}:{S_WS+3}], s{sT2} offen sc1")
        a("s_mov_b64 exec, -1")
        a.label("L1q_nosig")
        a(f"v_and_b32 v{vZ}, 7, v{vLane}")
        a(f"v_lshlrev_b32 v{vZ}, 2, v{vZ}")
        if PF_W2:
            a(f"buffer_load_dword v234, v232, s[{S_W}:{S_W+3}], 0 offen")
            a(f"buffer_load_dword v234, v233, s[{S_T}:{S_T+3}], 0 offen")
    a(f"v_lshlrev_b32 v{vAdr2}, 4, v{vq}")
    a(f"v_lshl_add_u32 v{vAdr}, v{vc}, 8, v{vAdr2}")
    a(f"v_lshl_add_u32 v{vAdr}, v{vr_}, 6, v{vAdr}")
    softmax(0, mid=signal)
    stamp(a, 6)
    if KVSPLIT:
        a("s_waitcnt vmcnt(0)")
        poll_check(a, vT2)
        a("s_cbranch_vccz Lq_kv")
        poll(a, "kv", vT2, vZ, S_WS, f"s{sT1}", sT2)
    else:
        a(f"s_cmp_lg_u32 s{sWave}, 0")
        a("s_cbranch_scc1 Lq_kv")
        poll(a, "kv", vT2, vZ, S_WS, f"s{sT1}", sT2, vX=[253, 254, 255])
        a("s_barrier")
    stamp(a, 7)
    order = (0, 2, 1, 3, 8, 9, 4, 6, 5, 7, 10, 11)
    a(f"s_add_u32 s{sT1}, s{sKT}, 4096")
    a(f"s_add_u32 s{sT2}, s{sKT}, 8192")
    for t in order:
        if t < 8:
            a(f"buffer_load_dwordx4 v[{Dt(t)}:{Dt(t)+3}], v{vAdr}, s[{S_WS}:{S_WS+3}], s{(sKT, sT1)[t // 4]} offen offset:{(t%4)*1024} sc1")
        else:
            a(f"buffer_load_dwordx4 v[{Dt(t)}:{Dt(t)+3}], v{vAdr2}, s[{S_WS}:{S_WS+3}], s{sT2} offen offset:{(t-8)*64} sc1")
    for sg in range(2):
        a(f"s_waitcnt vmcnt({6 if sg == 0 else 0})")
        for db in range(3):
            o = 72 + (db * 2 + sg) * 4
            for h in range(2):
                fk = 2 * sg + h
                t = fk * 2 + db if db < 2 else 8 + fk
                a(f"v_cvt_pk_bf16_f32 v{o+2*h}, v{Dt(t)}, v{Dt(t)+1}")
                a(f"v_cvt_pk_bf16_f32 v{o+2*h+1}, v{Dt(t)+2}, v{Dt(t)+3}")
        a("s_nop 0")
        for db in range(3):
            for i in range(4):
                d = 24 + (i * 3 + db) * 4; o = 72 + (db * 2 + sg) * 4; b = PHQ + (i * 2 + sg) * 4
                c = f"v[{d}:{d+3}]" if sg else "0"
                a(f"v_mfma_f32_16x16x32_bf16 v[{d}:{d+3}], v[{o}:{o+3}], v[{b}:{b+3}], {c}")
    a("s_nop 7")
    for i in range(4):
        a(f"v_add_f32 v{96+2*i}, 0x358637bd, v{24+(i*3+2)*4}")
    for i in range(4):
        a(f"v_rcp_f32 v{96+2*i}, v{96+2*i}")
    a("s_nop 0")
    for i in range(4):
        a(f"v_mul_f32 v{96+2*i}, v{96+2*i}, v{vG+i}")
    for i in range(4):
        d = 24 + i * 12
        for n in range(0, 8, 2):
            a(pk_mul_b(d + n, d + n, 96 + 2 * i))
        for n in range(4):
            a(f"v_cvt_pk_bf16_f32 v{PHQ+4*i+n}, v{d+2*n}, v{d+2*n+1}")
        a(f"buffer_store_dwordx4 v[{PHQ+4*i}:{PHQ+4*i+3}], v{vOA}, s[{S_WS}:{S_WS+3}], s{sKW} offen offset:{i*256} {WT}")
    a("s_branch L1_fin")

    a.label("L1_g1")
    NS, TB, WB = 3, 16384, 28672
    SB = TB + WB
    MT, MW = 4, 7
    vDT = [8, 9, 10, 11]; vDW = [12, 13, 14, 15, 16, 17, 18]
    vRT = [20, 21, 22]; vRE = [23, 24, 25]; vRO = [26, 27, 28]; vR6 = [29, 30, 31]
    vF = [32, 76]; ACC = 120
    LDW = 7168
    srd(a, S_T, 4, 2048 * 1024 * 2)
    srd(a, 56, 100, 2048)
    srd(a, S_WS, sWSp, WS_BYTES)
    srd(a, S_W, 40, 2048 * 3584 * 2)
    srd(a, S_AUX, 42, 7168)
    a("s_and_b32 s39, s2, 127")
    def g_rdT(slot): return [(vRT[slot], i * 256) for i in range(MT)]
    def g_rdW(slot): return [((vRO if b & 1 else vRE)[slot], (b >> 1) * 4096, (b >> 1) * 4096 + 256) for b in range(6)] + [(vR6[slot], 0, 256)]
    def g_mf(fT, fW):
        m = []
        for i in range(MT):
            for j in range(MW):
                d = ACC + (i * MW + j) * 4
                m.append(f"v_mfma_f32_16x16x32_bf16 v[{d}:{d+3}], v[{fW(j)}:{fW(j)+3}], v[{fT(i)}:{fT(i)+3}], v[{d}:{d+3}]")
        return m
    pg = Part(srdT=S_T, srdW=S_W, vDT=vDT, vDW=vDW, stT=8 * 16384, stW=64 * LDW, rdT=g_rdT, rdW=g_rdW, mf=g_mf)
    core = Core(a, "g", NS, SB, TB, MT, MW, vF, sW1024, sN, sRho, sKT, sKW, sT1, sT2, sCnt)
    pg.auxT = "sc1"
    def hook():
        a(f"v_lshrrev_b32 v{vT1}, 2, v{vLane}")
        a(f"v_mul_u32_u24 v{vT1}, {LDW}, v{vT1}")
        a(f"v_lshl_add_u32 v{vT1}, v{vc}, 4, v{vT1}")
        a(f"v_and_b32 v{vT2}, 32, v{vLane}")
        a(f"v_xor_b32 v{vT1}, v{vT2}, v{vT1}")
        a(f"s_mul_i32 s{sT1}, s{sWave}, {16*LDW}")
        a(f"s_mul_i32 s{sT2}, s{sTW}, 448")
        a(f"s_add_u32 s{sT1}, s{sT1}, s{sT2}")
        for j, v in enumerate(vDW):
            a(f"s_add_u32 s{sT2}, s{sT1}, {j*64}")
            a(f"v_add_u32 v{v}, s{sT2}, v{vT1}")
        a(f"s_cmp_ge_u32 s{sWave}, 4")
        a("s_cbranch_scc1 L1g_h1")
        core.prologue(pg, True, "W")
        a(f"s_waitcnt vmcnt({NS*7})")
        a("s_branch L1g_h2")
        a.label("L1g_h1")
        for i in range(4): a(f"v_mov_b32 v{32+i}, 0")
        a(f"v_lshlrev_b32 v{vT1}, 4, v{vLane}")
        a(f"v_lshl_add_u32 v{vT1}, s39, 12, v{vT1}")
        a(f"s_add_u32 s{sT1}, s{sW1024}, {KV_OFF}")
        a(f"buffer_store_dwordx4 v[32:35], v{vT1}, s[{S_WS}:{S_WS+3}], s{sT1} offen sc1")
        npf = 0
        if PF_W1:
            a(f"v_lshlrev_b32 v39, 7, v{vLane}")
            a(f"v_lshl_add_u32 v39, s{sW1024}, 3, v39")
            a(f"v_lshl_add_u32 v39, s39, 15, v39")
            for n in range(4):
                if n: a(f"v_add_u32 v39, {4*MB}, v39")
                a(f"buffer_load_dword v40, v39, s[{S_W}:{S_W+3}], 0 offen")
            npf = 4
        a(f"s_cmp_lg_u32 s{sWave}, 4")
        a("s_cbranch_scc1 L1g_h3")
        a("s_memrealtime s[88:89]")
        a("v_mov_b32 v37, 0")
        a("s_waitcnt lgkmcnt(0)")
        a("s_or_b32 s88, s88, 1")
        a("v_mov_b32 v36, s88")
        a("v_mov_b32 v38, s88")
        a("s_mov_b64 exec, 1")
        a(f"buffer_atomic_cmpswap v[36:37], v37, s[{S_DBG}:{S_DBG+3}], 0 offen sc0 sc1")
        a("s_mov_b64 exec, -1")
        a(f"s_waitcnt vmcnt({2+npf})")
        a("s_branch L1g_h2")
        a.label("L1g_h3")
        a(f"s_waitcnt vmcnt({1+npf})")
        a.label("L1g_h2")
    ln_phase(a, 120, S_T, 56, S_WS, sWave, 39, hook)
    stamp(a, 2)
    srd(a, S_T, sWSp, 4 * MB, HT_OFF)
    a(f"s_mov_b32 s{sN}, 0")
    a(f"v_lshlrev_b32 v{vT1}, 4, v{vLane}")
    a(f"s_lshr_b32 s{sT1}, s{sWave}, 1")
    a(f"s_lshl_b32 s{sT1}, s{sT1}, 14")
    a(f"s_and_b32 s{sT2}, s{sWave}, 1")
    a(f"s_lshl_b32 s{sT2}, s{sT2}, 10")
    a(f"s_add_u32 s{sT1}, s{sT1}, s{sT2}")
    a(f"s_lshl_b32 s{sT2}, s{sTT}, 11")
    a(f"s_add_u32 s{sT1}, s{sT1}, s{sT2}")
    for j, v in enumerate(vDT):
        a(f"s_add_u32 s{sT2}, s{sT1}, {j*2*16384}")
        a(f"v_add_u32 v{v}, s{sT2}, v{vT1}")
    a(f"s_mul_i32 s{sT1}, s{sTW}, 448")
    a(f"s_and_b32 s{sT2}, s{sWave}, 1")
    a(f"s_lshl_b32 s{sKT}, s{sT2}, 8")
    a(f"s_add_u32 s{sKT}, s{sKT}, s{sT1}")
    a(f"s_lshl_b32 s{sT2}, s{sT2}, 5")
    a(f"s_add_u32 s{sT1}, s{sT1}, s{sT2}")
    a(f"v_lshlrev_b32 v{vT1}, 3, v{vq}")
    for b in range(6):
        a(f"buffer_load_dwordx2 v[{76+2*b}:{77+2*b}], v{vT1}, s[{S_AUX}:{S_AUX+3}], s{sKT} offen offset:{32*b}")
    a(f"buffer_load_dwordx2 v[88:89], v{vT1}, s[{S_AUX}:{S_AUX+3}], s{sT1} offen offset:192")
    (phase3w_pre if P3W else phase3_pre)(a)
    a(f"v_and_b32 v{vT1}, 15, v{vLane}")
    a(f"v_lshlrev_b32 v{vT1}, 4, v{vT1}")
    a(f"v_lshl_add_u32 v{vT1}, v{vq}, 11, v{vT1}")
    a(f"s_lshr_b32 s{sT1}, s{sWave}, 2")
    a(f"s_lshl_b32 s{sT1}, s{sT1}, 13")
    a(f"s_bfe_u32 s{sT2}, s{sWave}, 0x10001")
    a(f"s_lshl_b32 s{sT2}, s{sT2}, 10")
    a(f"s_add_u32 s{sT1}, s{sT1}, s{sT2}")
    for s in range(NS):
        a(f"s_add_u32 s{sT2}, s{sT1}, {s*SB}")
        a(f"v_add_u32 v{vRT[s]}, s{sT2}, v{vT1}")
    a(f"v_lshlrev_b32 v{vT1}, 9, v{vq}")
    a(f"v_lshl_add_u32 v{vT1}, v{vr_}, 6, v{vT1}")
    a(f"v_and_b32 v{vT2}, 1, v{vq}")
    a(f"v_lshl_add_u32 v{vT1}, v{vT2}, 5, v{vT1}")
    a(f"v_lshl_add_u32 v{vT1}, v{vc}, 3, v{vT1}")
    a(f"v_xor_b32 v{vT2}, 32, v{vT1}")
    a(f"s_lshr_b32 s{sT1}, s{sWave}, 2")
    a(f"s_lshl_b32 s{sT1}, s{sT1}, 11")
    a(f"s_add_u32 s{sT1}, s{sT1}, {TB}")
    a(f"s_and_b32 s{sT2}, s{sWave}, 1")
    a(f"s_lshl_b32 s{sKT}, s{sT2}, 5")
    a(f"v_xor_b32 v7, s{sKT}, v{vT1}")
    a(f"s_lshl_b32 s{sKT}, s{sT2}, 14")
    a(f"s_add_u32 s{sKT}, s{sKT}, s{sT1}")
    for s in range(NS):
        a(f"s_add_u32 s{sT2}, s{sKT}, {s*SB}")
        a(f"v_add_u32 v{vRE[s]}, s{sT2}, v{vT1}")
        a(f"v_add_u32 v{vRO[s]}, s{sT2}, v{vT2}")
        a(f"s_add_u32 s{sT2}, s{sT1}, {s*SB + 3*4096}")
        a(f"v_add_u32 v{vR6[s]}, s{sT2}, v7")
    def g_epi(kg):
        stamp(a, 1)
        stamp_cyc(a, CYC + 2)
        keep = (0, 1) if kg == 0 else (2, 3)
        send = (2, 3) if kg == 0 else (0, 1)
        a(f"s_mul_i32 s{sT1}, s{sW1024}, 28")
        a(f"v_lshlrev_b32 v{vT1}, 4, v{vLane}")
        a(f"v_add_u32 v{vT1}, s{sT1}, v{vT1}")
        a(f"v_and_b32 v{vT2}, 15, v{vLane}")
        a(f"v_lshlrev_b32 v{vT2}, 4, v{vT2}")
        a(f"v_lshl_add_u32 v{vT2}, v{vq}, 14, v{vT2}")
        a(f"s_lshl_b32 s{sT1}, s{sTT}, 11")
        a(f"s_bfe_u32 s{sT2}, s{sWave}, 0x10001")
        a(f"s_lshl_b32 s{sT2}, s{sT2}, 10")
        a(f"s_add_u32 s{sT1}, s{sT1}, s{sT2}")
        a(f"s_add_u32 s{sT1}, s{sT1}, {U_OFF}")
        a(f"v_add_u32 v{vT2}, s{sT1}, v{vT2}")
        a(f"s_mul_i32 s{sN}, s{sTW}, 7")
        a(f"s_and_b32 s{sT2}, s{sWave}, 1")
        a(f"s_add_u32 s{sKW}, s{sN}, 3")
        a(f"s_lshl_b32 s{sKW}, s{sKW}, 16")
        a(f"s_lshl_b32 s{sT1}, s{sT2}, 3")
        a(f"s_add_u32 s{sKW}, s{sKW}, s{sT1}")
        a(f"s_lshl_b32 s{sT2}, s{sT2}, 2")
        a(f"s_add_u32 s{sN}, s{sN}, s{sT2}")
        a(f"s_lshl_b32 s{sN}, s{sN}, 16")
        xch_clear(a, 232, 236)
        a("s_barrier")
        a("s_nop 4")
        for n in range(14):
            r = ACC + (send[0] * MW + n) * 4
            a(f"ds_write_b128 v{vT1}, v[{r}:{r+3}] offset:{kg*14336 + n*1024}")
        a("s_waitcnt lgkmcnt(0)")
        a("s_barrier")
        for n in range(14):
            a(f"ds_read_b128 v[{32+4*n}:{35+4*n}], v{vT1} offset:{(1-kg)*14336 + n*1024}")
        import struct, math
        f2u = lambda f: struct.unpack("<I", struct.pack("<f", f))[0]
        c0 = -2 * math.sqrt(2 / math.pi) * math.log2(math.e)
        a(f"s_mov_b32 s{sKT}, {f2u(c0 * 0.044715):#x}")
        a(f"v_mov_b32 v6, {f2u(c0):#x}")
        for n in range(14):
            a(f"s_waitcnt lgkmcnt({13-n})")
            i = keep[n // 7]; b = n % 7
            r = ACC + (i * MW + b) * 4; t = 32 + 4 * n; w = 96 + 4 * (((n // 7) * 4 + b // 2) % 4) + 2 * (b & 1)
            for e in (0, 2): a(pk_add(r + e, r + e, t + e))
            for e in (0, 2): a(f"v_pk_mul_f32 v[{t+e}:{t+e+1}], v[{r+e}:{r+e+1}], v[{r+e}:{r+e+1}]")
            for e in (0, 2): a(pk_fma_sL(t + e, t + e, sKT, 6, 0, 0))
            for e in (0, 2): a(f"v_pk_mul_f32 v[{t+e}:{t+e+1}], v[{t+e}:{t+e+1}], v[{r+e}:{r+e+1}]")
            for e in range(4): a(f"v_exp_f32 v{t+e}, v{t+e}")
            if b & 1: a(f"s_add_u32 s{sT1}, s{sN}, {(b//2) << 16}")
            else: a("s_nop 0")
            for e in (0, 2): a(f"v_pk_add_f32 v[{t+e}:{t+e+1}], v[{t+e}:{t+e+1}], 1.0 op_sel_hi:[1,0]")
            for e in range(4): a(f"v_rcp_f32 v{t+e}, v{t+e}")
            a("s_nop 0")
            for e in (0, 2): a(f"v_pk_mul_f32 v[{r+e}:{r+e+1}], v[{r+e}:{r+e+1}], v[{t+e}:{t+e+1}]")
            a(f"v_cvt_pk_bf16_f32 v{w}, v{r}, v{r+1}")
            a(f"v_cvt_pk_bf16_f32 v{w+1}, v{r+2}, v{r+3}")
            if b == 6:
                a(f"buffer_store_dwordx2 v[{w}:{w+1}], v{vT2}, s[{S_WS}:{S_WS+3}], s{sKW} offen offset:{i*256} {WT}")
            elif b & 1:
                a(f"buffer_store_dwordx4 v[{w-2}:{w+1}], v{vT2}, s[{S_WS}:{S_WS+3}], s{sT1} offen offset:{i*256} {WT}")
        for z in (5, 6, 7): stamp(a, z)
    a("s_waitcnt vmcnt(0)")
    a(f"v_mov_b32 v{vT1}, {90112+256}")
    a(f"s_cmp_lg_u32 s{sWave}, 4")
    a("s_cbranch_scc1 L1g_ne")
    a("v_cmp_eq_u32 vcc, 0, v36")
    a("s_nop 1")
    a("v_cndmask_b32 v36, v36, v38, vcc")
    a("s_mov_b64 exec, 1")
    a(f"ds_write_b32 v{vT1}, v36")
    a("s_mov_b64 exec, -1")
    a("s_waitcnt lgkmcnt(0)")
    a.label("L1g_ne")
    a("s_barrier")
    a(f"ds_read_b32 v{vT2}, v{vT1}")
    a(f"v_lshlrev_b32 v{vT1}, 9, v{vLane}")
    a(f"s_lshl_b32 s{sT1}, s39, 2")
    a(f"s_add_u32 s{sT1}, s{sT1}, {F_LN}")
    a("s_waitcnt lgkmcnt(0)")
    a(f"v_readfirstlane_b32 s{sE}, v{vT2}")
    stamp(a, 3)
    a(f"s_cmp_ge_u32 s{sWave}, 4")
    a("s_cbranch_scc1 L1g_nold")
    a(f"s_cmp_lg_u32 s{sWave}, 0")
    a("s_cbranch_scc1 L1g_nf")
    a("s_mov_b64 exec, 0xff")
    a(f"buffer_store_dword v{vT2}, v{vT1}, s[{S_WS}:{S_WS+3}], s{sT1} offen sc1")
    a("s_mov_b64 exec, -1")
    a.label("L1g_nf")
    for b in range(7):
        for h in range(2):
            d = ACC + b * 4 + 2 * h
            a(f"v_lshlrev_b32 v{d}, 16, v{76+2*b+h}")
            a(f"v_and_b32 v{d+1}, 0xffff0000, v{76+2*b+h}")
    for i in range(1, 4):
        for n in range(28):
            a(f"v_mov_b32 v{ACC+i*28+n}, v{ACC+n}")
    a("s_barrier")
    stamp(a, 4)
    core.prologue(pg, True, "T")
    core.fs = 0; core.first(pg, True, vm=0); core.run(pg, 32, True)
    g_epi(0)
    a("s_branch L1_fin")
    a.label("L1g_nold")
    for i in range(MT * MW * 4):
        a(f"v_mov_b32 v{ACC+i}, 0")
    a(f"v_lshlrev_b32 v8, 3, v{vLane}")
    a(f"v_and_b32 v9, 15, v{vLane}")
    a("v_lshlrev_b32 v9, 3, v9")
    a(f"s_and_b32 s{sKW}, s2, 7")
    a(f"s_lshl_b32 s{sKW}, s{sKW}, 9")
    a(f"s_add_u32 s{sKW}, s{sKW}, {F_LN}")
    a(f"s_cmp_lg_u32 s{sWave}, 4")
    a("s_cbranch_scc1 Lq_lng")
    poll(a, "lng", 36, 9 if LNPROG else 8, S_WS, f"s{sKW}", sT1, wide=True)
    a("s_barrier")
    core.fs = 0; core.first(pg, False)
    if LNPROG:
        cnt = [0]
        def chk():
            cnt[0] += 1
            t = f"lc{cnt[0]}"
            b = Asm()
            b(f"s_cmp_lg_u32 s{sWave}, 4")
            b(f"s_cbranch_scc1 Lq_{t}")
            b("s_waitcnt vmcnt(0)")
            poll_check(b, 10, wide=True)
            b(f"s_cbranch_vccz Lq_{t}")
            poll(b, t, 10, 8, S_WS, f"s{sKW}", sT1, wide=True)
            return [l.strip() for l in b.lines]
        ex = {1: [[f"s_cmp_lg_u32 s{sWave}, 4", "s_cbranch_scc1 L1g_x", f"buffer_load_dwordx2 v[10:11], v8, s[{S_WS}:{S_WS+3}], s{sKW} offen sc1", "L1g_x:"]],
              3: [chk()]}
        core.run(pg, 32, False, extra=ex)
    else:
        core.run(pg, 32, False)
    g_epi(1)
    a.label("L1_fin")
    if FUSE:
        (phase3w if P3W else phase3)(a)
        stamp_end(a, 13, 0, sWave, 8, sWSp, 8, "L1_st")
    else:
        stamp_end(a, 9, 1, sWave, 8, sWSp, S_AUX, "L1_st")
    a.label("L1_end")
    a("s_endpgm")
    return dict(name=name, grid=256, block=512, lds=135168, vgpr=256 if FUSE else 232)


def gen_k2(a):
    name = "k2_kernel"
    kernel_header(a, name)
    S_WS = 8
    a("s_cmp_ge_u32 s2, 256")
    a("s_cbranch_scc1 L2_end")
    a(f"s_load_dwordx2 s[4:5], s[0:1], {A_WS}")
    stamp(a, 0)
    stamp_cyc(a, CYC)
    stamp_cyc(a, CYC + 2)
    a("v_lshrrev_b32 v2, 6, v0")
    a("v_and_b32 v1, 63, v0")
    a("v_readfirstlane_b32 s20, v2")
    a("v_lshlrev_b32 v3, 4, v1")
    a("s_and_b32 s21, s2, 31")
    a("s_lshr_b32 s22, s2, 5")
    a("s_lshl_b32 s22, s22, 2")
    a("s_add_u32 s22, s22, s20")
    a("s_mul_i32 s23, s21, 12288")
    a(f"s_add_u32 s23, s23, {KV_OFF}")
    a("s_lshl_b32 s24, s21, 7")
    a("s_lshl_b32 s25, s22, 2")
    a("s_add_u32 s24, s24, s25")
    a("s_lshl_b32 s24, s24, 11")
    a(f"s_add_u32 s24, s24, {PQ_OFF}")
    a("v_and_b32 v4, 15, v1")
    a("v_lshlrev_b32 v5, 3, v4")
    a("s_lshl_b32 s25, s22, 9")
    a(f"s_add_u32 s25, s25, {G_OFF}")
    a("s_waitcnt lgkmcnt(0)")
    srd(a, S_WS, 4, WS_BYTES)
    for t in range(12):
        if t % 4 == 0 and t: a("s_add_u32 s23, s23, 4096")
        a(f"buffer_load_dwordx4 v[{16+4*t}:{19+4*t}], v3, s[8:11], s23 offen offset:{(t%4)*1024}")
    for n in range(8):
        if n == 4: a("s_add_u32 s24, s24, 4096")
        a(f"buffer_load_dwordx4 v[{64+4*n}:{67+4*n}], v3, s[8:11], s24 offen offset:{(n%4)*1024}")
    for i in range(4):
        a(f"buffer_load_dword v{8+i}, v5, s[8:11], s25 offen offset:{i*128}")
    a("v_lshrrev_b32 v6, 4, v1")
    a("v_lshlrev_b32 v6, 15, v6")
    a("v_lshl_add_u32 v6, v4, 4, v6")
    a("s_lshl_b32 s26, s21, 17")
    a("s_lshl_b32 s27, s22, 10")
    a("s_add_u32 s26, s26, s27")
    a(f"s_add_u32 s26, s26, {OP_OFF}")
    a("s_waitcnt vmcnt(12)")
    for db in range(3):
        for sg in range(2):
            o = 96 + (db * 2 + sg) * 4
            for h in range(2):
                fk = 2 * sg + h
                t = fk * 2 + db if db < 2 else 8 + fk
                a(f"v_cvt_pk_bf16_f32 v{o+2*h}, v{16+4*t}, v{17+4*t}")
                a(f"v_cvt_pk_bf16_f32 v{o+2*h+1}, v{18+4*t}, v{19+4*t}")
    a("s_waitcnt vmcnt(4)")
    for sg in range(2):
        for i in range(4):
            for db in range(3):
                d = 16 + (i * 3 + db) * 4; o = 96 + (db * 2 + sg) * 4; b = 64 + (i * 2 + sg) * 4
                c = f"v[{d}:{d+3}]" if sg else "0"
                a(f"v_mfma_f32_16x16x32_bf16 v[{d}:{d+3}], v[{o}:{o+3}], v[{b}:{b+3}], {c}")
    a("s_waitcnt vmcnt(0)")
    a("s_nop 7")
    for i in range(4):
        a(f"v_add_f32 v{12+i}, 0x358637bd, v{16+(i*3+2)*4}")
    for i in range(4):
        a(f"v_rcp_f32 v{12+i}, v{12+i}")
    a("s_nop 0")
    for i in range(4):
        a(f"v_mul_f32 v{12+i}, v{12+i}, v{8+i}")
    for i in range(4):
        d = 16 + i * 12
        for n in range(8):
            a(f"v_mul_f32 v{d+n}, v{d+n}, v{12+i}")
        for n in range(4):
            a(f"v_cvt_pk_bf16_f32 v{64+4*i+n}, v{d+2*n}, v{d+2*n+1}")
        a(f"buffer_store_dwordx4 v[{64+4*i}:{67+4*i}], v6, s[8:11], s26 offen offset:{i*256}")
    stamp_end(a, 2, 2, 20, 16, 4, 12, "L2_st")
    a.label("L2_end")
    a("s_endpgm")
    return dict(name=name, grid=256, block=256, lds=0, vgpr=120)

def gen_k3(a):
    name = "k3_kernel"
    kernel_header(a, name)
    S_U, S_W2, S_OP, S_WO, S_WS, S_OUT = 8, 12, 16, 20, 24, 56
    sWave, sW1024, sN, sRho, sKT, sKW, sT1, sT2, sCnt, sTD, sTS = 28, 29, 30, 31, 32, 33, 34, 35, 36, 37, 38
    sWSp = 44
    ST = 48
    vLane, vT1, vT2, vq, vr_, vc = 1, 2, 3, 4, 5, 6
    NS, TB, SB = 4, 16384, 32768
    vD1T = [8, 9, 10, 11]; vD1W = [12, 13, 14, 15]; vD2T = [16, 17, 18, 19]; vD2W = [20, 21, 22, 23]
    vR1T = [24, 25]; vR1E = [26, 27]; vR1O = [28, 29]; vR2T = [30, 31]; vR2E = [32, 33]; vR2O = [34, 35]
    vOMG = 36; vB2 = 44
    vF = [52, 84]; ACC = 116
    a("s_cmp_ge_u32 s2, 256")
    a("s_cbranch_scc1 L3_end")
    a(f"s_load_dwordx2 s[{sWSp}:{sWSp+1}], s[0:1], {A_WS}")
    a(f"s_load_dwordx4 s[4:7], s[0:1], {A_W2}")
    a(f"s_load_dwordx2 s[40:41], s[0:1], {A_WO}")
    a(f"s_load_dwordx2 s[42:43], s[0:1], {A_OUT}")
    stamp(a, 0)
    stamp_cyc(a, CYC)
    a(f"v_lshrrev_b32 v{vT1}, 6, v0")
    a(f"v_and_b32 v{vLane}, 63, v0")
    a(f"v_readfirstlane_b32 s{sWave}, v{vT1}")
    lane_bits(a, vLane, vq, vr_, vc)
    a(f"s_lshr_b32 s{sT2}, s2, 3")
    a(f"s_bfe_u32 s{sTD}, s2, 0x10001")
    a(f"s_lshl_b32 s{sTD}, s{sTD}, 2")
    a(f"s_and_b32 s3, s{sT2}, 3")
    a(f"s_add_u32 s{sTD}, s{sTD}, s3")
    a(f"s_bfe_u32 s{sTS}, s2, 0x10002")
    a(f"s_lshl_b32 s{sTS}, s{sTS}, 3")
    a(f"s_lshr_b32 s{sRho}, s{sT2}, 2")
    a(f"s_add_u32 s{sTS}, s{sTS}, s{sRho}")
    a(f"s_add_u32 s{sRho}, s{sRho}, s3")
    a(f"s_and_b32 s{sW1024}, s{sWave}, 3")
    a(f"s_lshl_b32 s{sW1024}, s{sW1024}, 10")
    a(f"s_and_b32 s{sN}, s2, 1")
    a(f"s_mul_i32 s{sN}, s{sN}, 36")
    a("s_waitcnt lgkmcnt(0)")
    srd(a, S_U, sWSp, 448 * 16384, U_OFF)
    srd(a, S_W2, 4, 3584 * 2048 * 2)
    srd(a, S_OP, sWSp, 4 * MB, OP_OFF)
    srd(a, S_WO, 40, 1024 * 1024 * 2)
    srd(a, S_WS, sWSp, WS_BYTES)
    srd(a, S_OUT, 6, 4096)
    a(f"v_lshlrev_b32 v{vT1}, 4, v{vLane}")
    for (vD, R16, sTile) in ((vD1T, 16384, sTD), (vD2T, 32768, sTS)):
        a(f"s_bfe_u32 s{sT1}, s{sWave}, 0x10001")
        a(f"s_mul_i32 s{sT1}, s{sT1}, {R16}")
        a(f"s_and_b32 s{sT2}, s{sWave}, 1")
        a(f"s_lshl_b32 s{sT2}, s{sT2}, 10")
        a(f"s_add_u32 s{sT1}, s{sT1}, s{sT2}")
        a(f"s_lshl_b32 s{sT2}, s{sTile}, 11")
        a(f"s_add_u32 s{sT1}, s{sT1}, s{sT2}")
        for j, v in enumerate(vD):
            a(f"s_add_u32 s{sT2}, s{sT1}, {j*2*R16}")
            a(f"v_add_u32 v{v}, s{sT2}, v{vT1}")
    for (vD, LD, sTile) in ((vD1W, 4096, sTS), (vD2W, 2048, sTD)):
        a(f"v_bfe_u32 v{vT1}, v{vLane}, 2, 3")
        a(f"v_mul_u32_u24 v{vT1}, {LD}, v{vT1}")
        a(f"v_lshrrev_b32 v{vT2}, 5, v{vLane}")
        a(f"v_lshl_add_u32 v{vT1}, v{vT2}, 6, v{vT1}")
        a(f"v_lshl_add_u32 v{vT1}, v{vc}, 4, v{vT1}")
        a(f"v_and_b32 v{vT2}, 16, v{vLane}")
        a(f"v_lshlrev_b32 v{vT2}, 1, v{vT2}")
        a(f"v_xor_b32 v{vT1}, v{vT2}, v{vT1}")
        a(f"s_mul_i32 s{sT1}, s{sW1024}, {8*LD//1024}")
        a(f"s_lshl_b32 s{sT2}, s{sTile}, 8")
        a(f"s_add_u32 s{sT1}, s{sT1}, s{sT2}")
        for j, v in enumerate(vD):
            a(f"s_add_u32 s{sT2}, s{sT1}, {(j&1)*32*LD + (j>>1)*128}")
            a(f"v_add_u32 v{v}, s{sT2}, v{vT1}")
    def rdT(vR): return lambda slot: [(vR[slot // 2], (slot % 2) * SB + i * 256) for i in range(4)]
    def rdW(vE, vO): return lambda slot: [((vO if b & 1 else vE)[slot // 2], (slot % 2) * SB + (b >> 1) * 512, (slot % 2) * SB + (b >> 1) * 512 + 2048) for b in range(4)]
    def mf1(fT, fW):
        return [f"v_mfma_f32_16x16x32_bf16 v[{ACC+(i*4+j)*4}:{ACC+(i*4+j)*4+3}], v[{fT(i)}:{fT(i)+3}], v[{fW(j)}:{fW(j)+3}], v[{ACC+(i*4+j)*4}:{ACC+(i*4+j)*4+3}]" for i in range(4) for j in range(4)]
    def mf2(fT, fW):
        return [f"v_mfma_f32_16x16x32_bf16 v[{ACC+(i*4+j)*4}:{ACC+(i*4+j)*4+3}], v[{fW(i)}:{fW(i)+3}], v[{fT(j)}:{fT(j)+3}], v[{ACC+(i*4+j)*4}:{ACC+(i*4+j)*4+3}]" for j in range(4) for i in range(4)]
    p1 = Part(srdT=S_U, srdW=S_W2, vDT=vD1T, vDW=vD1W, stT=8 * 16384, stW=64 * 4096, rdT=rdT(vR1T), rdW=rdW(vR1E, vR1O), mf=mf1)
    p2 = Part(srdT=S_OP, srdW=S_WO, vDT=vD2T, vDW=vD2W, stT=8 * 32768, stW=64 * 2048, rdT=rdT(vR2T), rdW=rdW(vR2E, vR2O), mf=mf2)
    core = Core(a, "k3", NS, SB, TB, 4, 4, vF, sW1024, sN, sRho, sKT, sKW, sT1, sT2, sCnt)
    a(f"v_and_b32 v{vT1}, 15, v{vLane}")
    a(f"s_lshl_b32 s{sT1}, s{sTS}, 7")
    a(f"s_and_b32 s{sT2}, s{sWave}, 1")
    a(f"s_lshl_b32 s{sT2}, s{sT2}, 6")
    a(f"s_add_u32 s{sT1}, s{sT1}, s{sT2}")
    a(f"v_add_u32 v7, s{sT1}, v{vT1}")
    a(f"v_lshlrev_b32 v{vT1}, 3, v7")
    a(f"v_lshlrev_b32 v{vT2}, 1, v7")
    a(f"s_mov_b32 s{sT1}, {G_OFF+4}")
    for j in range(4):
        a(f"buffer_load_dword v{vOMG+2*j}, v{vT1}, s[{S_WS}:{S_WS+3}], s{sT1} offen offset:{j*128}")
        a(f"buffer_load_ushort v{vB2+2*j}, v{vT2}, s[{S_OUT}:{S_OUT+3}], 0 offen offset:{j*32}")
    a(f"s_cmp_ge_u32 s{sWave}, 4")
    a("s_cbranch_scc1 L3_nold0")
    core.prologue(p1, True)
    a.label("L3_nold0")
    a(f"v_and_b32 v{vT1}, 15, v{vLane}")
    a(f"v_lshlrev_b32 v{vT1}, 4, v{vT1}")
    a(f"v_lshl_add_u32 v{vT1}, v{vq}, 11, v{vT1}")
    a(f"s_lshr_b32 s{sT1}, s{sWave}, 2")
    a(f"s_lshl_b32 s{sT1}, s{sT1}, 13")
    a(f"v_add_u32 v{vT1}, s{sT1}, v{vT1}")
    a(f"s_bfe_u32 s{sKT}, s{sWave}, 0x10001")
    a(f"s_and_b32 s{sKW}, s{sWave}, 1")
    for vR, sel in ((vR1T, sKT), (vR2T, sKW)):
        a(f"s_lshl_b32 s{sT2}, s{sel}, 10")
        a(f"v_add_u32 v{vR[0]}, s{sT2}, v{vT1}")
        a(f"v_add_u32 v{vR[1]}, {2*SB}, v{vR[0]}")
    a(f"v_lshrrev_b32 v{vT1}, 1, v{vq}")
    a(f"v_lshlrev_b32 v{vT1}, 10, v{vT1}")
    a(f"v_and_b32 v{vT2}, 1, v{vq}")
    a(f"v_mul_u32_u24 v{vT2}, 288, v{vT2}")
    a(f"v_add_u32 v{vT1}, v{vT2}, v{vT1}")
    a(f"v_lshl_add_u32 v{vT1}, v{vr_}, 6, v{vT1}")
    a(f"v_lshl_add_u32 v{vT1}, v{vc}, 3, v{vT1}")
    a(f"s_lshr_b32 s{sT1}, s{sT1}, 1")
    a(f"s_add_u32 s{sT1}, s{sT1}, {TB}")
    a(f"v_add_u32 v{vT1}, s{sT1}, v{vT1}")
    for vE, vO, sel in ((vR1E, vR1O, sKW), (vR2E, vR2O, sKT)):
        a(f"s_lshl_b32 s{sT2}, s{sel}, 13")
        a(f"v_add_u32 v{vE[0]}, s{sT2}, v{vT1}")
        a(f"v_add_u32 v{vE[1]}, {2*SB}, v{vE[0]}")
        a(f"v_xor_b32 v{vO[0]}, 32, v{vE[0]}")
        a(f"v_xor_b32 v{vO[1]}, 32, v{vE[1]}")
    for i in range(64):
        a(f"v_mov_b32 v{ACC+i}, 0")

    def epi(role, kg):
        tag = f"{role}{kg}"
        stamp(a, 1)
        stamp_cyc(a, CYC + 2)
        keep = (0, 1) if kg == 0 else (2, 3)
        send = (2, 3) if kg == 0 else (0, 1)
        a(f"s_lshl_b32 s{sT1}, s{sW1024}, 4")
        a(f"v_lshlrev_b32 v{vT1}, 4, v{vLane}")
        a(f"v_add_u32 v{vT2}, s{sT1}, v{vT1}")
        srd(a, S_OUT, 42, 2048 * 1024 * 2)
        a(f"s_lshl_b32 s{sKT}, s2, 3")
        a(f"s_add_u32 s{sKT}, s{sKT}, s{sWave}")
        a(f"s_lshl_b32 s{sKT}, s{sKT}, 12")
        a(f"s_add_u32 s{sKT}, s{sKT}, {XCH_OFF}")
        a(f"s_xor_b32 s{sKW}, s{sKT}, {8*4096}")
        a("s_barrier")
        for n in range(8):
            r = ACC + send[0] * 16 + 4 * n
            a(f"ds_write_b128 v{vT2}, v[{r}:{r+3}] offset:{kg*8192 + n*1024}")
        a("s_waitcnt lgkmcnt(0)")
        a("s_barrier")
        for n in range(8):
            a(f"ds_read_b128 v[{52+4*n}:{55+4*n}], v{vT2} offset:{(1-kg)*8192 + n*1024}")
        K0 = ACC + keep[0] * 16
        jk = (0, 2) if role == 0 else (1, 3)
        js = (1, 3) if role == 0 else (0, 2)
        order = [(ii, j) for j in js for ii in range(2)] + [(ii, j) for j in jk for ii in range(2)]
        a("s_waitcnt lgkmcnt(0)")
        cnt = 0
        for (ii, j) in order:
            n = ii * 4 + j; r = K0 + 4 * n
            for e in (0, 2): a(pk_add(r + e, r + e, 52 + 4 * n + e))
            if role == 0:
                for e in (0, 2): a(pk_mul_b(r + e, r + e, vOMG + 2 * j))
            if j in js:
                a(f"buffer_store_dwordx4 v[{r}:{r+3}], v{vT1}, s[{S_WS}:{S_WS+3}], s{sKT} offen offset:{cnt*1024} sc1")
                cnt += 1
        a(f"v_lshlrev_b32 v{vT2}, 11, v7")
        a(f"v_and_b32 v8, 1, v{vq}")
        a(f"v_lshl_add_u32 v{vT2}, v8, 5, v{vT2}")
        a(f"v_lshrrev_b32 v8, 1, v{vq}")
        a(f"v_lshl_add_u32 v{vT2}, v8, 4, v{vT2}")
        a(f"s_lshl_b32 s{sT1}, s{sTD}, 8")
        a(f"s_bfe_u32 s{sT2}, s{sWave}, 0x10001")
        a(f"s_lshl_b32 s{sT2}, s{sT2}, 7")
        a(f"s_add_u32 s{sT1}, s{sT1}, s{sT2}")
        a(f"s_add_u32 s{sN}, s{sT1}, {kg*64}")
        a(f"s_lshl_b32 s{sT1}, s2, 8")
        a(f"s_add_u32 s{sT1}, s{sT1}, {FLAG_OFF}")
        a(f"s_xor_b32 s{sT2}, s{sT1}, 256")
        a("v_mov_b32 v8, 0")
        a("v_mov_b32 v9, 1")
        a("s_waitcnt vmcnt(0)")
        a("s_barrier")
        if kg == 0:
            a(f"s_cmp_lg_u32 s{sWave}, 0")
            a(f"s_cbranch_scc1 L3_nf{tag}")
            a("s_mov_b64 exec, 1")
            a(f"buffer_store_dword v9, v8, s[{S_WS}:{S_WS+3}], s{sT1} offen sc1")
            a("s_mov_b64 exec, -1")
            a.label(f"L3_nf{tag}")
        stamp(a, 2)
        a.label(f"L3_poll{tag}")
        a(f"buffer_load_dword v9, v8, s[{S_WS}:{S_WS+3}], s{sT2} offen sc1")
        a("s_waitcnt vmcnt(0)")
        a(f"v_readfirstlane_b32 s{sCnt}, v9")
        a(f"s_cmp_eq_u32 s{sCnt}, 1")
        a(f"s_cbranch_scc1 L3_go{tag}")
        a("s_sleep 2")
        a(f"s_branch L3_poll{tag}")
        a.label(f"L3_go{tag}")
        for n in range(4):
            a(f"buffer_load_dwordx4 v[{52+4*n}:{55+4*n}], v{vT1}, s[{S_WS}:{S_WS+3}], s{sKW} offen offset:{n*1024} sc1")
        for jn, j in enumerate(jk):
            a(f"s_waitcnt vmcnt({2 if jn == 0 else 1})" if jn == 0 else "s_waitcnt vmcnt(1)")
            o = 84 + 4 * jn
            for ii in range(2):
                r = K0 + 4 * (ii * 4 + j); t = 52 + 4 * (jn * 2 + ii)
                for e in (0, 2): a(pk_add(r + e, r + e, t + e))
                a(f"v_cvt_pk_bf16_f32 v{o+2*ii}, v{r}, v{r+1}")
                a(f"v_cvt_pk_bf16_f32 v{o+2*ii+1}, v{r+2}, v{r+3}")
            a("s_nop 1")
            a(f"v_permlane16_swap_b32 v{o}, v{o+2}")
            a(f"v_permlane16_swap_b32 v{o+1}, v{o+3}")
            a(f"s_add_u32 s{sT1}, s{sN}, {j*16*2048}")
            a(f"buffer_store_dwordx4 v[{o}:{o+3}], v{vT2}, s[{S_OUT}:{S_OUT+3}], s{sT1} offen")
        a("s_branch L3_fin")

    a("s_bitcmp1_b32 s2, 0")
    a("s_cbranch_scc1 L3_B")
    a(f"s_cmp_ge_u32 s{sWave}, 4")
    a("s_cbranch_scc1 L3_A1")
    for kg in range(2):
        if kg: a.label("L3_A1")
        core.fs = 0; core.first(p1, kg == 0); core.run(p1, 36, kg == 0)
        if kg: a("s_waitcnt vmcnt(0)")
        epi(0, kg)
    a.label("L3_B")
    a(f"s_cmp_ge_u32 s{sWave}, 4")
    a("s_cbranch_scc1 L3_B1")
    for kg in range(2):
        if kg: a.label("L3_B1")
        core.fs = 0; core.first(p1, kg == 0)
        sl = core.run(p1, 20, kg == 0, nxt_part=p2)
        if kg: a("s_waitcnt vmcnt(0)")
        else:
            for j in range(4):
                a(f"v_lshlrev_b32 v{vB2+2*j}, 16, v{vB2+2*j}")
                a(f"v_mul_f32 v{vB2+2*j}, v{vB2+2*j}, v{vOMG+2*j}")
        a("s_nop 7")
        for i in range(4):
            for j in range(4):
                for e in (0, 2):
                    r = ACC + (i * 4 + j) * 4 + e
                    a(pk_fma_bb(r, r, vOMG + 2 * j, vB2 + 2 * j) if kg == 0 else pk_mul_b(r, r, vOMG + 2 * j))
        core.run(p2, 16, kg == 0, slot0=sl)
        epi(1, kg)
    a.label("L3_fin")
    stamp_end(a, 4, 2, sWave, 8, sWSp, S_U, "L3_st")
    a.label("L3_end")
    a("s_endpgm")
    return dict(name=name, grid=256, block=512, lds=131072, vgpr=180)

KERNELS = [gen_k0, gen_k1, gen_k3]

def build(kernels=None):
    a = Asm()
    infos = []
    for g in (kernels or [gen_k1]):
        infos.append(g(a))
    ref = open(f"cdna_kernels/{NAME}.s.ref").read().split("\n")
    hdr = [l for l in ref if l.startswith(";") and "@launch" not in l and "Override" not in l and "grid=ceil" not in l]
    hdr = hdr[:14]
    txt = "\n".join(hdr) + "\n"
    for i in infos:
        txt += f"; @launch {'' if SINGLE else 'kernel=' + i['name'] + ' '}grid=({i['grid']},1,1) block=({i['block']},1,1) lds={i['lds']}\n"
    txt += '.amdgcn_target "amdgcn-amd-amdhsa--gfx950"\n'
    txt += a.text().replace("STAMPWAVE", str(STAMPWAVE))
    for i in infos:
        v = (i['vgpr'] + 3) // 4 * 4
        txt += kernel_desc(i['name'], v, v)
    return txt

if __name__ == "__main__":
    STAMPS = "--stamps" in sys.argv
    for x in sys.argv:
        if x.startswith("--D"):
            k, v = x[3:].split("="); globals()[k] = eval(v)
    out = sys.argv[1] if len(sys.argv) > 1 and not sys.argv[1].startswith("--") else f"cdna_kernels/{NAME}.s"
    open(out, "w").write(build())
```
